```python
import torch

def _softmax(x, axis=-1):
    return torch.softmax(x, dim=axis)
def _gelu(x):
    return torch.nn.functional.gelu(x, approximate="tanh")
def _silu(x):
    return torch.nn.functional.silu(x)
def _sigmoid(x):
    return torch.sigmoid(x)
def _layernorm(x, axis=-1, eps=1e-5):
    m = x.mean(dim=axis, keepdim=True)
    v = x.var(dim=axis, keepdim=True, unbiased=False)
    return (x - m) / torch.sqrt(v + eps)
def _scatter_add(tgt, idx, src, axis=0):
    return tgt.clone().index_add_(axis, idx, src)
def _segment_sum(src, seg, n):
    out = torch.zeros((n,) + src.shape[1:], dtype=src.dtype)
    return out.index_add_(0, seg, src)
def _pad(x, pw):
    flat = tuple(v for pair in reversed(pw) for v in pair)
    return torch.nn.functional.pad(x, flat)

kernel_name = 'standalone__gqa_block_cached__sampling'

def setup_inputs():

    _w = (lambda a: (lambda t: t.to(torch.bfloat16) if t.is_floating_point() else t)(torch.as_tensor(a)))
    B, Sq, D = 32, 4, 576
    Hq, Hkv, Sk, Dh = 32, 16, 2048, 128
    assert Hq % Hkv == 0, (Hq, Hkv)
    return {
        "x": _w((lambda *s: torch.randn(*s, dtype=torch.bfloat16) * 0.8)(B, Sq, D)),
        "k_cache": _w((lambda *s: torch.randn(*s, dtype=torch.bfloat16) * 0.8)(B, Hkv, Sk, Dh)),
        "v_cache": _w((lambda *s: torch.randn(*s, dtype=torch.bfloat16) * 0.05)(B, Hkv, Sk, Dh)),
        "wq": _w((lambda *s: torch.randn(*s, dtype=torch.bfloat16) * 0.8)(D, Hq * Dh) * (D ** -0.5)),
        "wo": _w((lambda *s: torch.randn(*s, dtype=torch.bfloat16) * 0.05)(Hq * Dh, D) * ((Hq * Dh) ** -0.5)),
    }

def reference(x, k_cache, v_cache, wq, wo):
    B, Sq, D = x.shape
    Hq, Dh = 32, 128
    Hkv = k_cache.shape[1]
    rep = Hq // Hkv
    q = (lambda x, *d: x.permute(*d))((x @ wq).reshape(B, Sq, Hq, Dh), 0, 2, 1, 3)
    k = (lambda x, n, axis: torch.repeat_interleave(x, n, dim=axis))(k_cache, rep, axis=1)
    v = (lambda x, n, axis: torch.repeat_interleave(x, n, dim=axis))(v_cache, rep, axis=1)
    scores = torch.einsum("bhqd,bhkd->bhqk", q, k) * (Dh ** -0.5)
    p = _softmax(scores, axis=-1)
    o = torch.einsum("bhqk,bhkd->bhqd", p, v)
    return (lambda x, *d: x.permute(*d))(o, 0, 2, 1, 3).reshape(B, Sq, Hq * Dh) @ wo
```

```python
import sys, math

HEADER = """; Kernarg layout for this problem (64 bytes, ptrs only, base s[0:1]):
"""

class E:
    def __init__(self):
        self.l = []
    def __call__(self, s):
        self.l.append("  " + s)
    def label(self, s):
        self.l.append(s + ":")
    def raw(self, s):
        self.l.append(s)
    def text(self):
        return "\n".join(self.l) + "\n"

def vr(a, n=1):
    return f"v{a}" if n == 1 else f"v[{a}:{a+n-1}]"

V_LANE, V_KOFF, V_VOFF, V_WOFF, V_WOFF2, V_XOFF, V_XOFF2, V_T7 = 0, 1, 2, 3, 4, 5, 6, 7
V_MC, V_L, V_AL, V_T0, V_T1, V_T2, V_N, V_G = 8, 9, 10, 11, 12, 13, 14, 15
QF, OA, KB, VB, WP, W9, ST, PP, XT = 16, 32, 64, 96, 128, 224, 240, 248, 252
S_K, S_V, S_WQ, S_X, S_WO, S_WS = 8, 12, 16, 20, 24, 28
S_WAVE, S_HKV, S_BP = 3, 44, 45
S_LO, S_HI, S_C = 46, 47, 48
S_IT, S_OFF, S_T0, S_T1, S_T2, S_T3 = 49, 50, 51, 52, 53, 54
S_BURST = 55
S_MASK = 56

QP_ROW = 256 * 4 + 16
LDS_QP = 0
OP_ROW = 128 * 4 + 16
LDS_OP = 0
LDS_ML = 33792
LDS_OB = LDS_ML + 512
OB_ROW = 512 + 16
LDS_R9 = LDS_OB + 8 * OB_ROW
R9_ROW = 256 + 16
LDS_QP = LDS_R9 + 64 * R9_ROW
LDS_TOTAL = LDS_QP + 16 * QP_ROW

def gen(name, pol="nt", order="mix", stamps=False):
    e = E()
    e.raw(HEADER.rstrip("\n"))
    e.raw(f"; @launch kernel=attn_kernel grid=(256,1,1) block=(512,1,1) lds={LDS_TOTAL}")
    e.raw(f"; @launch kernel=reduce_kernel grid=(72,1,1) block=(256,1,1) lds=0")
    e.raw('.amdgcn_target "amdgcn-amd-amdhsa--gfx950"')
    e.raw(".text")
    e.raw(".globl attn_kernel\n.p2align 8\n.type attn_kernel,@function\nattn_kernel:")
    e("s_cmp_ge_u32 s2, 256")
    e("s_cbranch_scc1 L_end")
    e("s_load_dwordx8 s[32:39], s[0:1], 0")
    e("s_load_dwordx2 s[40:41], s[0:1], 32")
    e("s_load_dwordx2 s[42:43], s[0:1], 56")
    e("v_lshrrev_b32 v1, 6, v0")
    e("v_and_b32 v0, 63, v0")
    e(f"v_readfirstlane_b32 s{S_WAVE}, v1")
    e(f"v_and_b32 v{V_N}, 15, v0")
    e(f"v_lshrrev_b32 v{V_G}, 4, v0")
    e(f"s_and_b32 s{S_HKV}, s2, 7")
    e(f"s_lshl_b32 s{S_HKV}, s{S_HKV}, 1")
    e(f"s_bfe_u32 s{S_T0}, s2, 0x10003")
    e(f"s_add_u32 s{S_HKV}, s{S_HKV}, s{S_T0}")
    e(f"s_lshr_b32 s{S_BP}, s2, 4")
    e(f"s_mov_b32 s{S_LO}, 0x05040100")
    e(f"s_mov_b32 s{S_HI}, 0x07060302")
    c = math.log2(math.e) / math.sqrt(128.0)
    import struct
    cbits = struct.unpack("<I", struct.pack("<f", c))[0]
    e(f"s_mov_b32 s{S_C}, 0x{cbits:08x}")
    e(f"s_mov_b32 s{S_MASK}, 0xff00ff00")
    e(f"s_mov_b32 s{S_MASK+1}, 0xff00ff00")
    e(f"v_lshrrev_b32 v{V_T0}, 2, v{V_N}")
    e(f"v_lshlrev_b32 v{V_T0}, 11, v{V_T0}")
    e(f"v_and_b32 v{V_T1}, 3, v{V_N}")
    e(f"v_lshlrev_b32 v{V_T1}, 8, v{V_T1}")
    e(f"v_lshlrev_b32 v{V_T2}, 4, v{V_G}")
    e(f"v_add3_u32 v{V_KOFF}, v{V_T0}, v{V_T1}, v{V_T2}")
    e(f"v_lshlrev_b32 v{V_T0}, 11, v{V_G}")
    e(f"v_lshl_add_u32 v{V_VOFF}, v{V_N}, 4, v{V_T0}")
    e(f"v_lshrrev_b32 v{V_T0}, 2, v{V_N}")
    e(f"v_lshlrev_b32 v{V_T0}, 5, v{V_T0}")
    e(f"v_and_b32 v{V_T1}, 1, v{V_N}")
    e(f"v_lshl_add_u32 v{V_T7}, v{V_T1}, 4, v{V_T0}")
    e(f"v_bfe_u32 v{V_T2}, v{V_N}, 1, 1")
    e(f"v_lshlrev_b32 v{V_T0}, 4, v{V_T2}")
    e(f"v_lshl_add_u32 v{V_T0}, v{V_G}, 2, v{V_T0}")
    e(f"v_lshl_add_u32 v{V_WOFF2}, v{V_T0}, 13, v{V_T7}")
    e(f"v_lshl_add_u32 v{V_WOFF}, v{V_T0}, 14, v{V_T7}")
    e(f"v_and_b32 v{V_T1}, 7, v{V_N}")
    e(f"v_mul_u32_u24 v{V_T1}, 1152, v{V_T1}")
    e(f"v_lshrrev_b32 v{V_T2}, 3, v{V_N}")
    e(f"v_lshlrev_b32 v{V_T2}, 4, v{V_T2}")
    e(f"v_lshl_add_u32 v{V_T2}, v{V_G}, 2, v{V_T2}")
    e(f"v_lshl_add_u32 v{V_XOFF2}, v{V_T2}, 1, v{V_T1}")
    e(f"v_lshl_add_u32 v{V_XOFF}, v{V_T2}, 2, v{V_T1}")
    e(f"s_lshr_b32 s{S_T0}, s{S_WAVE}, 2")
    e(f"s_lshl_b32 s{S_T1}, s{S_BP}, 1")
    e(f"s_add_u32 s{S_T0}, s{S_T0}, s{S_T1}")
    e(f"s_lshl_b32 s{S_T0}, s{S_T0}, 4")
    e(f"s_add_u32 s{S_T0}, s{S_T0}, s{S_HKV}")
    e(f"s_lshl_b32 s{S_T0}, s{S_T0}, 19")
    e(f"s_and_b32 s{S_T1}, s{S_WAVE}, 3")
    e(f"s_lshl_b32 s{S_T1}, s{S_T1}, 13")
    e(f"s_add_u32 s{S_T0}, s{S_T0}, s{S_T1}")
    e(f"s_sub_u32 s{S_K+2}, 0x80000, s{S_T1}")
    e(f"s_mov_b32 s{S_V+2}, s{S_K+2}")
    e(f"s_mov_b32 s{S_K+3}, 0x00020000")
    e(f"s_mov_b32 s{S_V+3}, 0x00020000")
    e(f"s_mov_b32 s{S_WQ+3}, 0x00020000")
    e(f"s_mov_b32 s{S_X+3}, 0x00020000")
    e(f"s_mov_b32 s{S_WO+3}, 0x00020000")
    e(f"s_mov_b32 s{S_WS+3}, 0x00020000")
    e(f"s_and_b32 s{S_T1}, s{S_WAVE}, 1")
    e(f"s_mul_i32 s{S_T2}, s{S_T1}, {288*8192}")
    e(f"s_lshl_b32 s{S_T3}, s{S_HKV}, 9")
    e(f"s_add_u32 s{S_T2}, s{S_T2}, s{S_T3}")
    e(f"s_lshr_b32 s{S_T3}, s{S_WAVE}, 1")
    e(f"s_lshl_b32 s{S_T3}, s{S_T3}, 7")
    e(f"s_add_u32 s{S_T2}, s{S_T2}, s{S_T3}")
    e(f"s_sub_u32 s{S_WQ+2}, {576*8192}, s{S_T2}")
    e(f"s_mul_i32 s{S_T1}, s{S_T1}, 576")
    e(f"s_mul_i32 s{S_T3}, s{S_BP}, {8*1152}")
    e(f"s_add_u32 s{S_T1}, s{S_T1}, s{S_T3}")
    e(f"s_sub_u32 s{S_X+2}, {128*1152}, s{S_T1}")
    e("s_waitcnt lgkmcnt(0)")
    e(f"s_add_u32 s{S_X}, s32, s{S_T1}")
    e(f"s_addc_u32 s{S_X+1}, s33, 0")
    e(f"s_add_u32 s{S_WQ}, s38, s{S_T2}")
    e(f"s_addc_u32 s{S_WQ+1}, s39, 0")
    e(f"s_add_u32 s{S_K}, s34, s{S_T0}")
    e(f"s_addc_u32 s{S_K+1}, s35, 0")
    e(f"s_add_u32 s{S_V}, s36, s{S_T0}")
    e(f"s_addc_u32 s{S_V+1}, s37, 0")

    def ld_x():
        L = []
        for u in range(4):
            L.append([f"buffer_load_dwordx4 {vr(QF+4*u,4)}, v{V_XOFF}, s[{S_X}:{S_X+3}], 0 offen offset:{u*128}"])
        L.append([f"buffer_load_dwordx2 {vr(PP,2)}, v{V_XOFF2}, s[{S_X}:{S_X+3}], 0 offen offset:512"])
        return L
    wqbuf = [VB, WP, WP+32, WP+64]
    def ld_wq(u):
        L = []
        for t in range(8):
            L.append([f"s_mov_b32 s{S_OFF}, {(u*64+t)*8192}",
                      f"buffer_load_dwordx4 {vr(wqbuf[u]+4*t,4)}, v{V_WOFF}, s[{S_WQ}:{S_WQ+3}], s{S_OFF} offen"])
        return L
    def ld_wq_half():
        L = []
        for t in range(4):
            L.append([f"s_mov_b32 s{S_OFF}, {(256+t)*8192}",
                      f"buffer_load_dwordx4 {vr(W9+4*t,4)}, v{V_WOFF2}, s[{S_WQ}:{S_WQ+3}], s{S_OFF} offen"])
        return L
    def ld_k(soff):
        return [[f"buffer_load_dwordx4 {vr(KB+(sub*4+j)*4,4)}, v{V_KOFF}, s[{S_K}:{S_K+3}], {soff} offen offset:{sub*1024+j*64} {pol}"]
                for sub in range(2) for j in range(4)]
    def ld_v(soff):
        return [[f"buffer_load_dwordx4 {vr(VB+t*4,4)}, v{V_VOFF}, s[{S_V}:{S_V+3}], {soff} offen offset:{t*256} {pol}"]
                for t in range(8)]

    seq = []
    for l in ld_x(): seq.append(("x", l))
    W = []
    for u in range(4):
        for l in ld_wq(u): W.append((f"u{u}", l))
    for l in ld_wq_half(): W.append(("h", l))
    K = [("k", l) for l in ld_k("0")]
    if order == "mix":
        ki = 0
        for i, w in enumerate(W):
            seq.append(w)
            if (i % 4 == 3 or False) and ki < 8 and i < 32:
                seq.append(K[ki]); ki += 1
        assert ki == 8
    elif order == "kfirst":
        seq += K + W
    elif order == "klast":
        seq += W + K
    issued = []
    for tag, lines in seq:
        for l in lines: e(l)
        issued.append(tag)
    def wait_for(tags):
        last = max(i for i, t in enumerate(issued) if t in tags)
        n = len(issued) - 1 - last
        e(f"s_waitcnt vmcnt({n})")

    e(f"s_mul_i32 s{S_T0}, s{S_HKV}, {256*1152}")
    e(f"s_add_u32 s{S_WO}, s40, s{S_T0}")
    e(f"s_addc_u32 s{S_WO+1}, s41, 0")
    e(f"s_mov_b32 s{S_WO+2}, {256*1152}")
    e(f"s_mul_i32 s{S_T0}, s{S_HKV}, {128*2304}")
    e(f"s_mul_i32 s{S_T1}, s{S_BP}, {8*2304}")
    e(f"s_add_u32 s{S_T0}, s{S_T0}, s{S_T1}")
    e(f"s_add_u32 s{S_WS}, s42, s{S_T0}")
    e(f"s_addc_u32 s{S_WS+1}, s43, 0")
    e(f"s_mov_b32 s{S_WS+2}, {8*2304}")

    def unit_mma(buf, bfrag, acc, first):
        def perms(i):
            w_, h = i >> 1, i & 1
            sel = S_HI if h else S_LO
            T = ST + (i & 1) * 4
            for u_ in range(4):
                e(f"v_perm_b32 v{T+u_}, v{buf+(2*u_+1)*4+w_}, v{buf+(2*u_)*4+w_}, s{sel}")
        perms(0)
        for i in range(8):
            if i + 1 < 8:
                perms(i + 1)
            else:
                e("s_nop 1")
            T = ST + (i & 1) * 4
            cc = "0" if first else vr(acc+4*i, 4)
            e(f"v_mfma_f32_16x16x32_bf16 {vr(acc+4*i,4)}, {vr(T,4)}, {vr(bfrag,4)}, {cc}")
    def half_mma(buf, bfrag, acc, first):
        def perms(i):
            w_, h = i >> 1, i & 1
            sel = S_HI if h else S_LO
            T = ST + (i & 3) * 2
            for u_ in range(2):
                e(f"v_perm_b32 v{T+u_}, v{buf+(2*u_+1)*4+w_}, v{buf+(2*u_)*4+w_}, s{sel}")
        perms(0)
        for i in range(8):
            if i + 1 < 8:
                perms(i + 1)
            else:
                e("s_nop 1")
            T = ST + (i & 3) * 2
            cc = "0" if first else vr(acc+4*i, 4)
            e(f"v_mfma_f32_16x16x16_bf16 {vr(acc+4*i,4)}, {vr(T,2)}, {vr(bfrag,2)}, {cc}")
    def merge(acc, dst):
        for i in range(8):
            a = acc + 4*i
            e(f"v_add_f32_dpp v{dst+i}, v{a+2}, v{a} row_ror:8 row_mask:0xf bank_mask:0x3")
            e(f"v_add_f32_dpp v{dst+i}, v{a+1}, v{a+3} row_ror:8 row_mask:0xf bank_mask:0xc")

    wait_for(["x", "u0"])
    unit_mma(wqbuf[0], QF+0, OA, True)
    for l in ld_v("0"):
        for x_ in l: e(x_)
        issued.append("v")
    for u in range(1, 4):
        wait_for([f"u{u}"])
        unit_mma(wqbuf[u], QF+4*u, OA, False)
    wait_for(["h"])
    e("s_nop 4")
    half_mma(W9, PP, OA, False)
    e("s_nop 7")
    e("s_nop 1")
    merge(OA, WP)
    e(f"v_and_b32 v{V_T0}, 7, v{V_N}")
    e(f"v_mul_u32_u24 v{V_T0}, {QP_ROW}, v{V_T0}")
    e(f"v_lshrrev_b32 v{V_T1}, 3, v{V_N}")
    e(f"v_lshl_add_u32 v{V_T1}, v{V_G}, 1, v{V_T1}")
    e(f"v_lshl_add_u32 v{V_T0}, v{V_T1}, 5, v{V_T0}")
    e(f"s_and_b32 s{S_T0}, s{S_WAVE}, 1")
    e(f"s_mul_i32 s{S_T0}, s{S_T0}, {8*QP_ROW}")
    e(f"s_lshr_b32 s{S_T1}, s{S_WAVE}, 1")
    e(f"s_lshl_b32 s{S_T1}, s{S_T1}, 8")
    e(f"s_add_u32 s{S_T0}, s{S_T0}, s{S_T1}")
    e(f"v_add_u32 v{V_T0}, s{S_T0}, v{V_T0}")
    e(f"ds_write_b128 v{V_T0}, {vr(WP,4)} offset:{LDS_QP}")
    e(f"ds_write_b128 v{V_T0}, {vr(WP+4,4)} offset:{LDS_QP+16}")
    e(f"v_and_b32 v{V_T1}, 3, v{V_N}")
    e(f"v_mul_u32_u24 v{V_T1}, {QP_ROW}, v{V_T1}")
    e(f"v_bfe_u32 v{V_T2}, v{V_N}, 2, 1")
    e(f"v_lshl_add_u32 v{V_T1}, v{V_T2}, 9, v{V_T1}")
    e(f"v_lshl_add_u32 v{V_T1}, v{V_G}, 5, v{V_T1}")
    e(f"s_lshr_b32 s{S_T0}, s{S_WAVE}, 2")
    e(f"s_mul_i32 s{S_T0}, s{S_T0}, {4*QP_ROW}")
    e(f"v_add_u32 v{V_T1}, s{S_T0}, v{V_T1}")
    e("s_waitcnt lgkmcnt(0)")
    e("s_barrier")
    for j in range(4):
        for ee in range(2):
            for h in range(2):
                e(f"ds_read_b128 {vr(WP+j*16+ee*8+h*4,4)}, v{V_T1} offset:{LDS_QP+ee*8*QP_ROW+j*128+h*16}")
    for i in range(32):
        e(f"v_mov_b32 v{OA+i}, 0")
    e(f"v_mov_b32 v{V_MC}, 0xf149f2ca")
    e(f"v_mov_b32 v{XT}, 0xf149f2ca")
    e(f"v_mov_b32 v{V_L}, 0")
    e(f"v_bfe_u32 v{V_T2}, v{V_N}, 1, 1")
    e(f"v_lshlrev_b32 v{V_T0}, 4, v{V_T2}")
    e(f"v_lshl_add_u32 v{V_T0}, v{V_G}, 2, v{V_T0}")
    e(f"v_mul_u32_u24 v{V_T0}, 1152, v{V_T0}")
    e(f"s_lshl_b32 s{S_T0}, s{S_WAVE}, 7")
    e(f"v_lshl_add_u32 v{V_WOFF}, v{V_T0}, 1, v{V_T7}")
    e(f"v_add_u32 v{V_WOFF}, s{S_T0}, v{V_WOFF}")
    e(f"s_mul_i32 s{S_T0}, s{S_WAVE}, {32*1152}")
    e(f"s_add_u32 s{S_T0}, s{S_T0}, 1024")
    e(f"v_add3_u32 v{V_WOFF2}, v{V_T0}, v{V_T7}, s{S_T0}")
    for j in range(4):
        e(f"s_waitcnt lgkmcnt({12-4*j})")
        for i in range(8):
            e(f"v_add_f32 v{WP+j*16+i}, v{WP+j*16+i}, v{WP+j*16+8+i}")
        for i in range(4):
            e(f"v_cvt_pk_bf16_f32 v{QF+j*4+i}, v{WP+j*16+2*i}, v{WP+j*16+2*i+1}")
    e(f"s_mov_b32 s{S_IT}, 0")
    e(f"s_mov_b32 s{S_OFF}, 0x8000")
    e(f"s_add_u32 s{S_BURST}, s{S_WAVE}, 3")

    def ld_wo(u, buf):
        for t in range(8):
            if t % 4 == 0:
                e(f"s_mov_b32 s{S_T0}, {(u*64+t)*1152}")
            e(f"buffer_load_dwordx4 {vr(buf+4*t,4)}, v{V_WOFF}, s[{S_WO}:{S_WO+3}], s{S_T0} offen offset:{(t%4)*1152}")
    def ld_wo_half():
        for t in range(4):
            e(f"buffer_load_dwordx4 {vr(W9+4*t,4)}, v{V_WOFF2}, s[{S_WO}:{S_WO+3}], 0 offen offset:{t*1152}")

    def tile(last):
        e("s_waitcnt vmcnt(8)")
        for j in range(4):
            for sub in range(2):
                cc = "0" if j == 0 else vr(ST+sub*4, 4)
                e(f"v_mfma_f32_16x16x32_bf16 {vr(ST+sub*4,4)}, {vr(KB+(sub*4+j)*4,4)}, {vr(QF+j*4,4)}, {cc}")
        if not last:
            for l in ld_k(f"s{S_OFF}"):
                for x_ in l: e(x_)
        else:
            ld_wo(3, KB)
        e("s_nop 1")
        S = [ST+i for i in range(8)]
        e(f"v_max3_f32 v{V_T0}, v{S[0]}, v{S[1]}, v{S[2]}")
        e(f"v_max3_f32 v{V_T1}, v{S[3]}, v{S[4]}, v{S[5]}")
        e(f"v_max3_f32 v{V_T2}, v{S[6]}, v{S[7]}, v{XT}")
        e(f"v_max3_f32 v{V_T0}, v{V_T0}, v{V_T1}, v{V_T2}")
        e(f"v_mov_b32 v{V_T1}, v{V_T0}")
        e("s_nop 1")
        e(f"v_permlane32_swap_b32 v{V_T0}, v{V_T1}")
        e(f"v_max_f32 v{V_T0}, v{V_T0}, v{V_T1}")
        e(f"v_mov_b32 v{V_T1}, v{V_T0}")
        e("s_nop 1")
        e(f"v_permlane16_swap_b32 v{V_T0}, v{V_T1}")
        e(f"v_max_f32 v{XT}, v{V_T0}, v{V_T1}")
        e(f"v_mul_f32 v{V_T0}, s{S_C}, v{XT}")
        e(f"v_sub_f32 v{V_AL}, v{V_MC}, v{V_T0}")
        e(f"v_exp_f32 v{V_AL}, v{V_AL}")
        e(f"v_mov_b32 v{V_MC}, v{V_T0}")
        for i in range(8):
            e(f"v_fma_f32 v{S[i]}, v{S[i]}, s{S_C}, -v{V_MC}")
        for i in range(8):
            e(f"v_exp_f32 v{S[i]}, v{S[i]}")
        for i in range(16):
            e(f"v_pk_mul_f32 {vr(OA+2*i,2)}, {vr(OA+2*i,2)}, {vr(V_AL,2)} op_sel_hi:[1,0]")
        e(f"v_mul_f32 v{V_L}, v{V_L}, v{V_AL}")
        for i in range(4):
            e(f"v_cvt_pk_bf16_f32 v{PP+i}, v{S[2*i]}, v{S[2*i+1]}")
        e(f"v_add_f32 v{V_T0}, v{S[0]}, v{S[1]}")
        e(f"v_add_f32 v{V_T1}, v{S[2]}, v{S[3]}")
        e(f"v_add_f32 v{V_T2}, v{S[4]}, v{S[5]}")
        e(f"v_add_f32 v{V_T0}, v{V_T0}, v{V_T1}")
        e(f"v_add_f32 v{V_T1}, v{S[6]}, v{S[7]}")
        e(f"v_add_f32 v{V_T2}, v{V_T2}, v{V_T1}")
        e(f"v_add_f32 v{V_L}, v{V_L}, v{V_T0}")
        e(f"v_add_f32 v{V_L}, v{V_L}, v{V_T2}")
        e("s_waitcnt vmcnt(8)")
        unit_mma(VB, PP, OA, False)
        if not last:
            for l in ld_v(f"s{S_OFF}"):
                for x_ in l: e(x_)

    e.label("L_loop")
    tile(False)
    e(f"s_add_u32 s{S_OFF}, s{S_OFF}, 0x8000")
    e(f"s_cmp_lg_u32 s{S_IT}, s{S_BURST}")
    e("s_cbranch_scc1 L_noburst")
    for u in range(3):
        ld_wo(u, WP + 32*u)
    ld_wo_half()
    e.label("L_noburst")
    e(f"s_add_u32 s{S_IT}, s{S_IT}, 1")
    e(f"s_cmp_lt_u32 s{S_IT}, 15")
    e("s_cbranch_scc1 L_loop")
    tile(True)

    e(f"v_mov_b32 v{V_T1}, v{V_L}")
    e("s_nop 1")
    e(f"v_permlane32_swap_b32 v{V_L}, v{V_T1}")
    e(f"v_add_f32 v{V_L}, v{V_L}, v{V_T1}")
    e(f"v_mov_b32 v{V_T1}, v{V_L}")
    e("s_nop 1")
    e(f"v_permlane16_swap_b32 v{V_L}, v{V_T1}")
    e(f"v_add_f32 v{V_L}, v{V_L}, v{V_T1}")
    e(f"s_lshr_b32 s{S_T0}, s{S_WAVE}, 2")
    e(f"s_lshl_b32 s{S_T0}, s{S_T0}, 7")
    e(f"s_and_b32 s{S_T1}, s{S_WAVE}, 3")
    e(f"s_lshl_b32 s{S_T1}, s{S_T1}, 2")
    e(f"s_add_u32 s{S_T0}, s{S_T0}, s{S_T1}")
    e(f"v_and_b32 v{V_T2}, 7, v{V_N}")
    e(f"v_lshlrev_b32 v{V_T0}, 4, v{V_T2}")
    e(f"v_add_u32 v{V_T0}, s{S_T0}, v{V_T0}")
    e(f"ds_write_b32 v{V_T0}, v{V_MC} offset:{LDS_ML}")
    e(f"ds_write_b32 v{V_T0}, v{V_L} offset:{LDS_ML+256}")
    e(f"v_mul_u32_u24 v{V_T0}, {OP_ROW}, v{V_T2}")
    e(f"v_lshrrev_b32 v{V_T1}, 3, v{V_N}")
    e(f"v_lshl_add_u32 v{V_T1}, v{V_G}, 1, v{V_T1}")
    e(f"v_lshl_add_u32 v{V_T0}, v{V_T1}, 6, v{V_T0}")
    e(f"s_mul_i32 s{S_T0}, s{S_WAVE}, {8*OP_ROW}")
    e(f"v_add_u32 v{V_T0}, s{S_T0}, v{V_T0}")
    for ee in range(2):
        for i in range(8):
            e(f"v_cndmask_b32 v{VB+ee*8+i}, v{OA+4*i+ee}, v{OA+4*i+2+ee}, s[{S_MASK}:{S_MASK+1}]")
    for x_ in range(4):
        e(f"ds_write_b128 v{V_T0}, {vr(VB+4*x_,4)} offset:{LDS_OP+16*x_}")
    e(f"v_lshrrev_b32 v{V_T1}, 5, v0")
    e(f"s_and_b32 s{S_T1}, s{S_WAVE}, 3")
    e(f"s_lshl_b32 s{S_T1}, s{S_T1}, 1")
    e(f"v_add_u32 v{V_T1}, s{S_T1}, v{V_T1}")
    e(f"v_and_b32 v{V_T2}, 31, v0")
    e(f"v_mul_u32_u24 v{V_XOFF}, {OP_ROW}, v{V_T1}")
    e(f"v_lshl_add_u32 v{V_XOFF}, v{V_T2}, 4, v{V_XOFF}")
    e(f"s_lshr_b32 s{S_T0}, s{S_WAVE}, 2")
    e(f"s_mul_i32 s{S_T2}, s{S_T0}, {32*OP_ROW}")
    e(f"v_add_u32 v{V_XOFF}, s{S_T2}, v{V_XOFF}")
    e(f"s_lshl_b32 s{S_T2}, s{S_T0}, 7")
    e(f"v_lshlrev_b32 v{V_XOFF2}, 4, v{V_T1}")
    e(f"v_add_u32 v{V_XOFF2}, s{S_T2}, v{V_XOFF2}")
    e(f"v_and_b32 v{V_T0}, 3, v{V_T1}")
    e(f"s_lshl_b32 s{S_T2}, s{S_T0}, 2")
    e(f"v_add_u32 v{V_T0}, s{S_T2}, v{V_T0}")
    e(f"v_mul_u32_u24 v{V_T0}, {OB_ROW}, v{V_T0}")
    e(f"v_lshrrev_b32 v{V_T1}, 2, v{V_T1}")
    e(f"v_lshl_add_u32 v{V_T0}, v{V_T1}, 8, v{V_T0}")
    e(f"v_lshl_add_u32 v{V_KOFF}, v{V_T2}, 3, v{V_T0}")
    e("s_waitcnt lgkmcnt(0)")
    e("s_barrier")
    MM, LL, OO = QF, QF+4, OA
    e(f"ds_read_b128 {vr(MM,4)}, v{V_XOFF2} offset:{LDS_ML}")
    e(f"ds_read_b128 {vr(LL,4)}, v{V_XOFF2} offset:{LDS_ML+256}")
    for p in range(4):
        e(f"ds_read_b128 {vr(OO+4*p,4)}, v{V_XOFF} offset:{LDS_OP+p*8*OP_ROW}")
    e(f"v_and_b32 v{V_T1}, 7, v{V_N}")
    e(f"v_mul_u32_u24 v{V_T1}, {OB_ROW}, v{V_T1}")
    e(f"v_lshrrev_b32 v{V_T2}, 3, v{V_N}")
    e(f"v_lshlrev_b32 v{V_T2}, 4, v{V_T2}")
    e(f"v_lshl_add_u32 v{V_T2}, v{V_G}, 2, v{V_T2}")
    e(f"v_lshl_add_u32 v{V_VOFF}, v{V_T2}, 2, v{V_T1}")
    e(f"s_lshl_b32 s{S_T2}, s{S_WAVE}, 6")
    e(f"v_lshl_add_u32 v{V_T7}, v{V_T2}, 1, v{V_T1}")
    e(f"v_add_u32 v{V_T7}, s{S_T2}, v{V_T7}")
    e("s_waitcnt lgkmcnt(4)")
    e(f"v_max3_f32 v{V_T0}, v{MM}, v{MM+1}, v{MM+2}")
    e(f"v_max_f32 v{V_T0}, v{V_T0}, v{MM+3}")
    for p in range(4):
        e(f"v_sub_f32 v{MM+p}, v{MM+p}, v{V_T0}")
    for p in range(4):
        e(f"v_exp_f32 v{MM+p}, v{MM+p}")
    e("s_nop 0")
    e(f"v_mul_f32 v{V_T0}, v{MM}, v{LL}")
    for p in range(1, 4):
        e(f"v_fmac_f32 v{V_T0}, v{MM+p}, v{LL+p}")
    e(f"v_rcp_f32 v{V_T0}, v{V_T0}")
    e("s_nop 0")
    for p in range(4):
        e(f"v_mul_f32 v{MM+p}, v{MM+p}, v{V_T0}")
    e("s_waitcnt lgkmcnt(0)")
    for i in range(4):
        e(f"v_mul_f32 v{OO+i}, v{OO+i}, v{MM}")
    for p in range(1, 4):
        for i in range(4):
            e(f"v_fmac_f32 v{OO+i}, v{OO+4*p+i}, v{MM+p}")
    e(f"v_cvt_pk_bf16_f32 v{PP}, v{OO}, v{OO+1}")
    e(f"v_cvt_pk_bf16_f32 v{PP+1}, v{OO+2}, v{OO+3}")
    e(f"ds_write_b64 v{V_KOFF}, {vr(PP,2)} offset:{LDS_OB}")
    e("s_waitcnt lgkmcnt(0)")
    e("s_barrier")
    e(f"ds_read_b64 {vr(PP,2)}, v{V_T7} offset:{LDS_OB}")
    for u in range(4):
        e(f"ds_read_b128 {vr(QF+4*u,4)}, v{V_VOFF} offset:{LDS_OB+u*128}")
    e(f"v_and_b32 v{V_T1}, 7, v{V_N}")
    e(f"v_lshrrev_b32 v{V_T2}, 3, v{V_N}")
    e(f"v_lshl_add_u32 v{V_T2}, v{V_G}, 1, v{V_T2}")
    e(f"v_mul_u32_u24 v{V_XOFF}, {R9_ROW}, v{V_T1}")
    e(f"v_lshl_add_u32 v{V_XOFF}, v{V_T2}, 5, v{V_XOFF}")
    e(f"s_mul_i32 s{S_T0}, s{S_WAVE}, {8*R9_ROW}")
    e(f"v_add_u32 v{V_XOFF}, s{S_T0}, v{V_XOFF}")
    e(f"v_mul_u32_u24 v{V_XOFF2}, 2304, v{V_T1}")
    e(f"v_lshl_add_u32 v{V_XOFF2}, v{V_T2}, 5, v{V_XOFF2}")
    e(f"s_lshl_b32 s{S_T0}, s{S_WAVE}, 8")
    e(f"v_add_u32 v{V_XOFF2}, s{S_T0}, v{V_XOFF2}")
    e(f"s_mul_i32 s{S_T0}, s{S_WAVE}, {R9_ROW}")
    e(f"v_lshlrev_b32 v{V_T1}, 2, v0")
    e(f"v_add_u32 v{V_KOFF}, s{S_T0}, v{V_T1}")
    e(f"s_mul_i32 s{S_T0}, s{S_WAVE}, 2304")
    e(f"s_add_u32 s{S_T0}, s{S_T0}, 2048")
    e(f"v_add_u32 v{V_WOFF}, s{S_T0}, v{V_T1}")
    e("s_waitcnt vmcnt(0) lgkmcnt(4)")
    half_mma(W9, PP, VB, True)
    e("s_waitcnt lgkmcnt(0)")
    unit_mma(WP, QF, OA, True)
    merge(VB, W9)
    e(f"ds_write_b128 v{V_XOFF}, {vr(W9,4)} offset:{LDS_R9}")
    e(f"ds_write_b128 v{V_XOFF}, {vr(W9+4,4)} offset:{LDS_R9+16}")
    unit_mma(WP+32, QF+4, OA, False)
    unit_mma(WP+64, QF+8, OA, False)
    unit_mma(KB, QF+12, OA, False)
    e("s_waitcnt lgkmcnt(0)")
    e("s_barrier")
    for w_ in range(8):
        e(f"ds_read_b32 v{VB+w_}, v{V_KOFF} offset:{LDS_R9+w_*8*R9_ROW}")
    merge(OA, W9+8)
    e(f"buffer_store_dwordx4 {vr(W9+8,4)}, v{V_XOFF2}, s[{S_WS}:{S_WS+3}], 0 offen")
    e(f"buffer_store_dwordx4 {vr(W9+12,4)}, v{V_XOFF2}, s[{S_WS}:{S_WS+3}], 0 offen offset:16")
    e("s_waitcnt lgkmcnt(0)")
    e(f"v_add_f32 v{VB}, v{VB}, v{VB+1}")
    e(f"v_add_f32 v{VB+2}, v{VB+2}, v{VB+3}")
    e(f"v_add_f32 v{VB+4}, v{VB+4}, v{VB+5}")
    e(f"v_add_f32 v{VB+6}, v{VB+6}, v{VB+7}")
    e(f"v_add_f32 v{VB}, v{VB}, v{VB+2}")
    e(f"v_add_f32 v{VB+4}, v{VB+4}, v{VB+6}")
    e(f"v_add_f32 v{VB}, v{VB}, v{VB+4}")
    e(f"buffer_store_dword v{VB}, v{V_WOFF}, s[{S_WS}:{S_WS+3}], 0 offen")
    e.label("L_end")
    e("s_endpgm")

    e.raw(".globl reduce_kernel\n.p2align 8\n.type reduce_kernel,@function\nreduce_kernel:")
    e("s_cmp_ge_u32 s2, 72")
    e("s_cbranch_scc1 L_rend")
    e("s_load_dwordx2 s[4:5], s[0:1], 56")
    e("s_load_dwordx2 s[8:9], s[0:1], 40")
    e("s_lshl_b32 s3, s2, 8")
    e("v_add_u32 v0, s3, v0")
    e("v_lshlrev_b32 v1, 4, v0")
    e("v_lshlrev_b32 v2, 3, v0")
    e(f"s_mov_b32 s6, {16*294912}")
    e("s_mov_b32 s7, 0x00020000")
    e(f"s_mov_b32 s10, {128*1152}")
    e("s_mov_b32 s11, 0x00020000")
    e("s_waitcnt lgkmcnt(0)")
    for h in range(16):
        e(f"s_mov_b32 s12, {h*294912}")
        e(f"buffer_load_dwordx4 {vr(4+4*h,4)}, v1, s[4:7], s12 offen")
    for h in range(1, 16):
        e(f"s_waitcnt vmcnt({15-h})")
        e(f"v_pk_add_f32 v[4:5], v[4:5], {vr(4+4*h,2)}")
        e(f"v_pk_add_f32 v[6:7], v[6:7], {vr(6+4*h,2)}")
    e("v_cvt_pk_bf16_f32 v4, v4, v5")
    e("v_cvt_pk_bf16_f32 v5, v6, v7")
    e("buffer_store_dwordx2 v[4:5], v2, s[8:11], 0 offen")
    e.label("L_rend")
    e("s_endpgm")

    e.raw('.section .rodata,"a"')
    for kn, nv, ns in (("attn_kernel", 256, 64), ("reduce_kernel", 72, 16)):
        e.raw(f""".p2align 6
.amdhsa_kernel {kn}
  .amdhsa_next_free_vgpr {nv}
  .amdhsa_next_free_sgpr {ns}
  .amdhsa_accum_offset {nv}
  .amdhsa_group_segment_fixed_size 0
  .amdhsa_kernarg_size 64
  .amdhsa_user_sgpr_count 2
  .amdhsa_user_sgpr_kernarg_segment_ptr 1
  .amdhsa_system_sgpr_workgroup_id_x 1
.end_amdhsa_kernel""")
    open(name, "w").write(e.text())

if __name__ == "__main__":
    gen("k1.s")
    gen("k1_kfirst.s", order="kfirst")
    gen("k1_klast.s", order="klast")
```

```python
import sys, math

HEADER = """; Kernarg layout for this problem (64 bytes, ptrs only, base s[0:1]):
"""

class E:
    def __init__(self):
        self.l = []
    def __call__(self, s):
        self.l.append("  " + s)
    def label(self, s):
        self.l.append(s + ":")
    def raw(self, s):
        self.l.append(s)
    def text(self):
        return "\n".join(self.l) + "\n"

def vr(a, n=1):
    return f"v{a}" if n == 1 else f"v[{a}:{a+n-1}]"

V_LANE, V_KOFF, V_VOFF, V_WOFF, V_WOFF2, V_XOFF, V_XOFF2, V_T7 = 0, 1, 2, 3, 4, 5, 6, 7
V_MC, V_L, V_AL, V_T0, V_T1, V_T2, V_N, V_G = 8, 9, 10, 11, 12, 13, 14, 15
QF, OA, KB, VB, WP, W9, ST, PP, XT = 16, 32, 64, 96, 128, 224, 240, 248, 252
S_K, S_V, S_WQ, S_X, S_WO, S_WS = 8, 12, 16, 20, 24, 28
S_WAVE, S_HKV, S_BP = 3, 44, 45
S_LO, S_HI, S_C = 46, 47, 48
S_IT, S_OFF, S_T0, S_T1, S_T2, S_T3 = 49, 50, 51, 52, 53, 54
S_BURST = 55
S_MASK = 56

QP_ROW = 256 * 4 + 16
LDS_QP = 0
OP_ROW = 128 * 4 + 16
LDS_OP = 0
LDS_ML = 33792
LDS_OB = LDS_ML + 512
OB_ROW = 512 + 16
LDS_R9 = LDS_OB + 8 * OB_ROW
R9_ROW = 256 + 16
LDS_QP = LDS_R9 + 64 * R9_ROW
LDS_TOTAL = LDS_QP + 16 * QP_ROW

def gen(name, pol="nt", order="mix", stamps=False, nh=2, wpol="", wqpat="cur"):
    e = E()
    nst = [0]
    def stamp():
        if not stamps: return
        i = nst[0]; nst[0] += 1
        e(f"s_memrealtime s[{64+2*i}:{65+2*i}]")
        e("s_waitcnt lgkmcnt(0)")
    e.raw(HEADER.rstrip("\n"))
    e.raw(f"; @launch kernel=attn_kernel grid=(256,1,1) block=(512,1,1) lds={LDS_TOTAL}")
    e.raw(f"; @launch kernel=reduce_kernel grid=(72,1,1) block=(256,1,1) lds=0")
    e.raw('.amdgcn_target "amdgcn-amd-amdhsa--gfx950"')
    e.raw(".text")
    e.raw(".globl attn_kernel\n.p2align 8\n.type attn_kernel,@function\nattn_kernel:")
    e("s_cmp_ge_u32 s2, 256")
    e("s_cbranch_scc1 L_end")
    stamp()
    e("s_load_dwordx8 s[32:39], s[0:1], 0")
    e("s_load_dwordx2 s[40:41], s[0:1], 32")
    e("s_load_dwordx2 s[42:43], s[0:1], 56")
    e("v_lshrrev_b32 v1, 6, v0")
    e("v_and_b32 v0, 63, v0")
    e(f"v_readfirstlane_b32 s{S_WAVE}, v1")
    e(f"v_and_b32 v{V_N}, 15, v0")
    e(f"v_lshrrev_b32 v{V_G}, 4, v0")
    lnh = nh.bit_length() - 1
    e(f"s_and_b32 s{S_T0}, s2, {16//nh - 1 if nh > 1 else 7}")
    e(f"s_lshl_b32 s{S_HKV}, s{S_T0}, {lnh}")
    e(f"s_lshr_b32 s{S_T1}, s2, 3")
    e(f"s_and_b32 s{S_T0}, s{S_T1}, {nh-1}")
    e(f"s_add_u32 s{S_HKV}, s{S_HKV}, s{S_T0}")
    e(f"s_lshr_b32 s{S_BP}, s{S_T1}, {lnh}")
    e(f"s_and_b32 s{S_T0}, s2, 7")
    e(f"s_lshr_b32 s{S_T0}, s{S_T0}, {4-lnh}")
    e(f"s_lshl_b32 s{S_T0}, s{S_T0}, {5-lnh}")
    e(f"s_add_u32 s{S_BP}, s{S_BP}, s{S_T0}")
    e(f"s_mov_b32 s{S_LO}, 0x05040100")
    e(f"s_mov_b32 s{S_HI}, 0x07060302")
    c = math.log2(math.e) / math.sqrt(128.0)
    import struct
    cbits = struct.unpack("<I", struct.pack("<f", c))[0]
    e(f"s_mov_b32 s{S_C}, 0x{cbits:08x}")
    e(f"s_mov_b32 s{S_MASK}, 0xff00ff00")
    e(f"s_mov_b32 s{S_MASK+1}, 0xff00ff00")
    e(f"v_lshrrev_b32 v{V_T0}, 2, v{V_N}")
    e(f"v_lshlrev_b32 v{V_T0}, 11, v{V_T0}")
    e(f"v_and_b32 v{V_T1}, 3, v{V_N}")
    e(f"v_lshlrev_b32 v{V_T1}, 8, v{V_T1}")
    e(f"v_lshlrev_b32 v{V_T2}, 4, v{V_G}")
    e(f"v_add3_u32 v{V_KOFF}, v{V_T0}, v{V_T1}, v{V_T2}")
    e(f"v_lshlrev_b32 v{V_T0}, 11, v{V_G}")
    e(f"v_lshl_add_u32 v{V_VOFF}, v{V_N}, 4, v{V_T0}")
    e(f"v_lshrrev_b32 v{V_T0}, 2, v{V_N}")
    e(f"v_lshlrev_b32 v{V_T0}, 5, v{V_T0}")
    e(f"v_and_b32 v{V_T1}, 1, v{V_N}")
    e(f"v_lshl_add_u32 v{V_T7}, v{V_T1}, 4, v{V_T0}")
    e(f"v_bfe_u32 v{V_T2}, v{V_N}, 1, 1")
    e(f"v_lshlrev_b32 v{V_T0}, 4, v{V_T2}")
    e(f"v_lshl_add_u32 v{V_T0}, v{V_G}, 2, v{V_T0}")
    e(f"v_lshl_add_u32 v{V_WOFF2}, v{V_T0}, 13, v{V_T7}")
    e(f"v_lshl_add_u32 v{V_WOFF}, v{V_T0}, 14, v{V_T7}")
    e(f"v_and_b32 v{V_T1}, 7, v{V_N}")
    e(f"v_mul_u32_u24 v{V_T1}, 1152, v{V_T1}")
    e(f"v_lshrrev_b32 v{V_T2}, 3, v{V_N}")
    e(f"v_lshlrev_b32 v{V_T2}, 4, v{V_T2}")
    e(f"v_lshl_add_u32 v{V_T2}, v{V_G}, 2, v{V_T2}")
    e(f"v_lshl_add_u32 v{V_XOFF2}, v{V_T2}, 1, v{V_T1}")
    e(f"v_lshl_add_u32 v{V_XOFF}, v{V_T2}, 2, v{V_T1}")
    if wqpat == "adj":
        e(f"v_bfe_u32 v{V_T2}, v{V_N}, 1, 1")
        e(f"v_lshl_add_u32 v{V_T0}, v{V_T2}, 2, v{V_G}")
        e(f"v_lshl_add_u32 v{V_WOFF}, v{V_T0}, 13, v{V_T7}")
        e(f"v_mov_b32 v{V_WOFF2}, v{V_WOFF}")
    elif wqpat == "lin":
        e(f"v_lshlrev_b32 v{V_WOFF}, 4, v0")
        e(f"v_mov_b32 v{V_WOFF2}, v{V_WOFF}")
    e(f"s_lshr_b32 s{S_T0}, s{S_WAVE}, 2")
    e(f"s_lshl_b32 s{S_T1}, s{S_BP}, 1")
    e(f"s_add_u32 s{S_T0}, s{S_T0}, s{S_T1}")
    e(f"s_lshl_b32 s{S_T0}, s{S_T0}, 4")
    e(f"s_add_u32 s{S_T0}, s{S_T0}, s{S_HKV}")
    e(f"s_lshl_b32 s{S_T0}, s{S_T0}, 19")
    e(f"s_and_b32 s{S_T1}, s{S_WAVE}, 3")
    e(f"s_lshl_b32 s{S_T1}, s{S_T1}, 13")
    e(f"s_add_u32 s{S_T0}, s{S_T0}, s{S_T1}")
    e(f"s_sub_u32 s{S_K+2}, 0x80000, s{S_T1}")
    e(f"s_mov_b32 s{S_V+2}, s{S_K+2}")
    e(f"s_mov_b32 s{S_K+3}, 0x00020000")
    e(f"s_mov_b32 s{S_V+3}, 0x00020000")
    e(f"s_mov_b32 s{S_WQ+3}, 0x00020000")
    e(f"s_mov_b32 s{S_X+3}, 0x00020000")
    e(f"s_mov_b32 s{S_WO+3}, 0x00020000")
    e(f"s_mov_b32 s{S_WS+3}, 0x00020000")
    e(f"s_and_b32 s{S_T1}, s{S_WAVE}, 1")
    e(f"s_mul_i32 s{S_T2}, s{S_T1}, {288*8192}")
    e(f"s_lshl_b32 s{S_T3}, s{S_HKV}, 9")
    e(f"s_add_u32 s{S_T2}, s{S_T2}, s{S_T3}")
    e(f"s_lshr_b32 s{S_T3}, s{S_WAVE}, 1")
    e(f"s_lshl_b32 s{S_T3}, s{S_T3}, 7")
    e(f"s_add_u32 s{S_T2}, s{S_T2}, s{S_T3}")
    if wqpat == "lin":
        e(f"s_mul_i32 s{S_T2}, s{S_HKV}, {256*1152}")
        e(f"s_mul_i32 s{S_T3}, s{S_WAVE}, {36*1024}")
        e(f"s_add_u32 s{S_T2}, s{S_T2}, s{S_T3}")
    e(f"s_sub_u32 s{S_WQ+2}, {576*8192}, s{S_T2}")
    e(f"s_mul_i32 s{S_T1}, s{S_T1}, 576")
    e(f"s_mul_i32 s{S_T3}, s{S_BP}, {8*1152}")
    e(f"s_add_u32 s{S_T1}, s{S_T1}, s{S_T3}")
    e(f"s_sub_u32 s{S_X+2}, {128*1152}, s{S_T1}")
    e("s_waitcnt lgkmcnt(0)")
    e(f"s_add_u32 s{S_X}, s32, s{S_T1}")
    e(f"s_addc_u32 s{S_X+1}, s33, 0")
    e(f"s_add_u32 s{S_WQ}, s38, s{S_T2}")
    e(f"s_addc_u32 s{S_WQ+1}, s39, 0")
    e(f"s_add_u32 s{S_K}, s34, s{S_T0}")
    e(f"s_addc_u32 s{S_K+1}, s35, 0")
    e(f"s_add_u32 s{S_V}, s36, s{S_T0}")
    e(f"s_addc_u32 s{S_V+1}, s37, 0")

    stamp()
    def ld_x():
        L = []
        for u in range(4):
            L.append([f"buffer_load_dwordx4 {vr(QF+4*u,4)}, v{V_XOFF}, s[{S_X}:{S_X+3}], 0 offen offset:{u*128}"])
        L.append([f"buffer_load_dwordx2 {vr(PP,2)}, v{V_XOFF2}, s[{S_X}:{S_X+3}], 0 offen offset:512"])
        return L
    wqbuf = [VB, WP, WP+32, WP+64]
    def ld_wq(u):
        L = []
        for t in range(8):
            so = {"cur": (u*64+t)*8192, "adj": (u*64+t*8)*8192, "lin": (u*8+t)*1024}[wqpat]
            L.append([f"s_mov_b32 s{S_OFF}, {so}",
                      f"buffer_load_dwordx4 {vr(wqbuf[u]+4*t,4)}, v{V_WOFF}, s[{S_WQ}:{S_WQ+3}], s{S_OFF} offen {wpol}"])
        return L
    def ld_wq_half():
        L = []
        for t in range(4):
            so = {"cur": (256+t)*8192, "adj": (256+t*8)*8192, "lin": (32+t)*1024}[wqpat]
            L.append([f"s_mov_b32 s{S_OFF}, {so}",
                      f"buffer_load_dwordx4 {vr(W9+4*t,4)}, v{V_WOFF2}, s[{S_WQ}:{S_WQ+3}], s{S_OFF} offen {wpol}"])
        return L
    def ld_k(soff):
        return [[f"buffer_load_dwordx4 {vr(KB+(sub*4+j)*4,4)}, v{V_KOFF}, s[{S_K}:{S_K+3}], {soff} offen offset:{sub*1024+j*64} {pol}"]
                for sub in range(2) for j in range(4)]
    def ld_v(soff):
        return [[f"buffer_load_dwordx4 {vr(VB+t*4,4)}, v{V_VOFF}, s[{S_V}:{S_V+3}], {soff} offen offset:{t*256} {pol}"]
                for t in range(8)]

    seq = []
    for l in ld_x(): seq.append(("x", l))
    W = []
    for u in range(4):
        for l in ld_wq(u): W.append((f"u{u}", l))
    for l in ld_wq_half(): W.append(("h", l))
    K = [("k", l) for l in ld_k("0")]
    if order == "mix":
        ki = 0
        for i, w in enumerate(W):
            seq.append(w)
            if (i % 4 == 3 or False) and ki < 8 and i < 32:
                seq.append(K[ki]); ki += 1
        assert ki == 8
    elif order == "kfirst":
        seq += K + W
    elif order == "klast":
        seq += W + K
    elif order == "bar":
        K[0] = ("k", ["s_barrier"] + K[0][1])
        seq += W + K
    issued = []
    for tag, lines in seq:
        for l in lines: e(l)
        issued.append(tag)
    def wait_for(tags):
        last = max(i for i, t in enumerate(issued) if t in tags)
        n = len(issued) - 1 - last
        e(f"s_waitcnt vmcnt({n})")

    stamp()
    e(f"s_mul_i32 s{S_T0}, s{S_HKV}, {256*1152}")
    e(f"s_add_u32 s{S_WO}, s40, s{S_T0}")
    e(f"s_addc_u32 s{S_WO+1}, s41, 0")
    e(f"s_mov_b32 s{S_WO+2}, {256*1152}")
    e(f"s_mul_i32 s{S_T0}, s{S_HKV}, {128*2304}")
    e(f"s_mul_i32 s{S_T1}, s{S_BP}, {8*2304}")
    e(f"s_add_u32 s{S_T0}, s{S_T0}, s{S_T1}")
    e(f"s_add_u32 s{S_WS}, s42, s{S_T0}")
    e(f"s_addc_u32 s{S_WS+1}, s43, 0")
    e(f"s_mov_b32 s{S_WS+2}, {8*2304}")

    def unit_mma(buf, bfrag, acc, first):
        def perms(i):
            w_, h = i >> 1, i & 1
            sel = S_HI if h else S_LO
            T = ST + (i & 1) * 4
            for u_ in range(4):
                e(f"v_perm_b32 v{T+u_}, v{buf+(2*u_+1)*4+w_}, v{buf+(2*u_)*4+w_}, s{sel}")
        perms(0)
        for i in range(8):
            if i + 1 < 8:
                perms(i + 1)
            else:
                e("s_nop 1")
            T = ST + (i & 1) * 4
            cc = "0" if first else vr(acc+4*i, 4)
            e(f"v_mfma_f32_16x16x32_bf16 {vr(acc+4*i,4)}, {vr(T,4)}, {vr(bfrag,4)}, {cc}")
    def half_mma(buf, bfrag, acc, first):
        def perms(i):
            w_, h = i >> 1, i & 1
            sel = S_HI if h else S_LO
            T = ST + (i & 3) * 2
            for u_ in range(2):
                e(f"v_perm_b32 v{T+u_}, v{buf+(2*u_+1)*4+w_}, v{buf+(2*u_)*4+w_}, s{sel}")
        perms(0)
        for i in range(8):
            if i + 1 < 8:
                perms(i + 1)
            else:
                e("s_nop 1")
            T = ST + (i & 3) * 2
            cc = "0" if first else vr(acc+4*i, 4)
            e(f"v_mfma_f32_16x16x16_bf16 {vr(acc+4*i,4)}, {vr(T,2)}, {vr(bfrag,2)}, {cc}")
    def merge(acc, dst):
        for i in range(8):
            a = acc + 4*i
            e(f"v_add_f32_dpp v{dst+i}, v{a+2}, v{a} row_ror:8 row_mask:0xf bank_mask:0x3")
            e(f"v_add_f32_dpp v{dst+i}, v{a+1}, v{a+3} row_ror:8 row_mask:0xf bank_mask:0xc")

    wait_for(["x", "u0"])
    stamp()
    unit_mma(wqbuf[0], QF+0, OA, True)
    for l in ld_v("0"):
        for x_ in l: e(x_)
        issued.append("v")
    for u in range(1, 4):
        wait_for([f"u{u}"])
        unit_mma(wqbuf[u], QF+4*u, OA, False)
    wait_for(["h"])
    stamp()
    e("s_nop 4")
    half_mma(W9, PP, OA, False)
    e("s_nop 7")
    e("s_nop 1")
    merge(OA, WP)
    e(f"v_and_b32 v{V_T0}, 7, v{V_N}")
    e(f"v_mul_u32_u24 v{V_T0}, {QP_ROW}, v{V_T0}")
    e(f"v_lshrrev_b32 v{V_T1}, 3, v{V_N}")
    e(f"v_lshl_add_u32 v{V_T1}, v{V_G}, 1, v{V_T1}")
    e(f"v_lshl_add_u32 v{V_T0}, v{V_T1}, 5, v{V_T0}")
    e(f"s_and_b32 s{S_T0}, s{S_WAVE}, 1")
    e(f"s_mul_i32 s{S_T0}, s{S_T0}, {8*QP_ROW}")
    e(f"s_lshr_b32 s{S_T1}, s{S_WAVE}, 1")
    e(f"s_lshl_b32 s{S_T1}, s{S_T1}, 8")
    e(f"s_add_u32 s{S_T0}, s{S_T0}, s{S_T1}")
    e(f"v_add_u32 v{V_T0}, s{S_T0}, v{V_T0}")
    e(f"ds_write_b128 v{V_T0}, {vr(WP,4)} offset:{LDS_QP}")
    e(f"ds_write_b128 v{V_T0}, {vr(WP+4,4)} offset:{LDS_QP+16}")
    e(f"v_and_b32 v{V_T1}, 3, v{V_N}")
    e(f"v_mul_u32_u24 v{V_T1}, {QP_ROW}, v{V_T1}")
    e(f"v_bfe_u32 v{V_T2}, v{V_N}, 2, 1")
    e(f"v_lshl_add_u32 v{V_T1}, v{V_T2}, 9, v{V_T1}")
    e(f"v_lshl_add_u32 v{V_T1}, v{V_G}, 5, v{V_T1}")
    e(f"s_lshr_b32 s{S_T0}, s{S_WAVE}, 2")
    e(f"s_mul_i32 s{S_T0}, s{S_T0}, {4*QP_ROW}")
    e(f"v_add_u32 v{V_T1}, s{S_T0}, v{V_T1}")
    e("s_waitcnt lgkmcnt(0)")
    e("s_barrier")
    for j in range(4):
        for ee in range(2):
            for h in range(2):
                e(f"ds_read_b128 {vr(WP+j*16+ee*8+h*4,4)}, v{V_T1} offset:{LDS_QP+ee*8*QP_ROW+j*128+h*16}")
    for i in range(32):
        e(f"v_mov_b32 v{OA+i}, 0")
    e(f"v_mov_b32 v{V_MC}, 0xf149f2ca")
    e(f"v_mov_b32 v{XT}, 0xf149f2ca")
    e(f"v_mov_b32 v{V_L}, 0")
    e(f"v_bfe_u32 v{V_T2}, v{V_N}, 1, 1")
    e(f"v_lshlrev_b32 v{V_T0}, 4, v{V_T2}")
    e(f"v_lshl_add_u32 v{V_T0}, v{V_G}, 2, v{V_T0}")
    e(f"v_mul_u32_u24 v{V_T0}, 1152, v{V_T0}")
    e(f"s_lshl_b32 s{S_T0}, s{S_WAVE}, 7")
    e(f"v_lshl_add_u32 v{V_WOFF}, v{V_T0}, 1, v{V_T7}")
    e(f"v_add_u32 v{V_WOFF}, s{S_T0}, v{V_WOFF}")
    e(f"s_mul_i32 s{S_T0}, s{S_WAVE}, {32*1152}")
    e(f"s_add_u32 s{S_T0}, s{S_T0}, 1024")
    e(f"v_add3_u32 v{V_WOFF2}, v{V_T0}, v{V_T7}, s{S_T0}")
    for j in range(4):
        e(f"s_waitcnt lgkmcnt({12-4*j})")
        for i in range(8):
            e(f"v_add_f32 v{WP+j*16+i}, v{WP+j*16+i}, v{WP+j*16+8+i}")
        for i in range(4):
            e(f"v_cvt_pk_bf16_f32 v{QF+j*4+i}, v{WP+j*16+2*i}, v{WP+j*16+2*i+1}")
    e(f"s_mov_b32 s{S_IT}, 0")
    e(f"s_mov_b32 s{S_OFF}, 0x8000")
    e(f"s_add_u32 s{S_BURST}, s{S_WAVE}, 3")

    def ld_wo(u, buf):
        for t in range(8):
            if t % 4 == 0:
                e(f"s_mov_b32 s{S_T0}, {(u*64+t)*1152}")
            e(f"buffer_load_dwordx4 {vr(buf+4*t,4)}, v{V_WOFF}, s[{S_WO}:{S_WO+3}], s{S_T0} offen offset:{(t%4)*1152}")
    def ld_wo_half():
        for t in range(4):
            e(f"buffer_load_dwordx4 {vr(W9+4*t,4)}, v{V_WOFF2}, s[{S_WO}:{S_WO+3}], 0 offen offset:{t*1152}")

    def tile(last):
        e("s_waitcnt vmcnt(8)")
        for j in range(4):
            for sub in range(2):
                cc = "0" if j == 0 else vr(ST+sub*4, 4)
                e(f"v_mfma_f32_16x16x32_bf16 {vr(ST+sub*4,4)}, {vr(KB+(sub*4+j)*4,4)}, {vr(QF+j*4,4)}, {cc}")
        if not last:
            for l in ld_k(f"s{S_OFF}"):
                for x_ in l: e(x_)
        else:
            ld_wo(3, KB)
        e("s_nop 1")
        S = [ST+i for i in range(8)]
        e(f"v_max3_f32 v{V_T0}, v{S[0]}, v{S[1]}, v{S[2]}")
        e(f"v_max3_f32 v{V_T1}, v{S[3]}, v{S[4]}, v{S[5]}")
        e(f"v_max3_f32 v{V_T2}, v{S[6]}, v{S[7]}, v{XT}")
        e(f"v_max3_f32 v{V_T0}, v{V_T0}, v{V_T1}, v{V_T2}")
        e(f"v_mov_b32 v{V_T1}, v{V_T0}")
        e("s_nop 1")
        e(f"v_permlane32_swap_b32 v{V_T0}, v{V_T1}")
        e(f"v_max_f32 v{V_T0}, v{V_T0}, v{V_T1}")
        e(f"v_mov_b32 v{V_T1}, v{V_T0}")
        e("s_nop 1")
        e(f"v_permlane16_swap_b32 v{V_T0}, v{V_T1}")
        e(f"v_max_f32 v{XT}, v{V_T0}, v{V_T1}")
        e(f"v_mul_f32 v{V_T0}, s{S_C}, v{XT}")
        e(f"v_sub_f32 v{V_AL}, v{V_MC}, v{V_T0}")
        e(f"v_exp_f32 v{V_AL}, v{V_AL}")
        e(f"v_mov_b32 v{V_MC}, v{V_T0}")
        for i in range(8):
            e(f"v_fma_f32 v{S[i]}, v{S[i]}, s{S_C}, -v{V_MC}")
        for i in range(8):
            e(f"v_exp_f32 v{S[i]}, v{S[i]}")
        for i in range(16):
            e(f"v_pk_mul_f32 {vr(OA+2*i,2)}, {vr(OA+2*i,2)}, {vr(V_AL,2)} op_sel_hi:[1,0]")
        e(f"v_mul_f32 v{V_L}, v{V_L}, v{V_AL}")
        for i in range(4):
            e(f"v_cvt_pk_bf16_f32 v{PP+i}, v{S[2*i]}, v{S[2*i+1]}")
        e(f"v_add_f32 v{V_T0}, v{S[0]}, v{S[1]}")
        e(f"v_add_f32 v{V_T1}, v{S[2]}, v{S[3]}")
        e(f"v_add_f32 v{V_T2}, v{S[4]}, v{S[5]}")
        e(f"v_add_f32 v{V_T0}, v{V_T0}, v{V_T1}")
        e(f"v_add_f32 v{V_T1}, v{S[6]}, v{S[7]}")
        e(f"v_add_f32 v{V_T2}, v{V_T2}, v{V_T1}")
        e(f"v_add_f32 v{V_L}, v{V_L}, v{V_T0}")
        e(f"v_add_f32 v{V_L}, v{V_L}, v{V_T2}")
        e("s_waitcnt vmcnt(8)")
        unit_mma(VB, PP, OA, False)
        if not last:
            for l in ld_v(f"s{S_OFF}"):
                for x_ in l: e(x_)

    stamp()
    e.label("L_loop")
    tile(False)
    e(f"s_add_u32 s{S_OFF}, s{S_OFF}, 0x8000")
    e(f"s_cmp_lg_u32 s{S_IT}, s{S_BURST}")
    e("s_cbranch_scc1 L_noburst")
    for u in range(3):
        ld_wo(u, WP + 32*u)
    ld_wo_half()
    e.label("L_noburst")
    e(f"s_add_u32 s{S_IT}, s{S_IT}, 1")
    e(f"s_cmp_lt_u32 s{S_IT}, 15")
    e("s_cbranch_scc1 L_loop")
    stamp()
    tile(True)
    stamp()

    e(f"v_mov_b32 v{V_T1}, v{V_L}")
    e("s_nop 1")
    e(f"v_permlane32_swap_b32 v{V_L}, v{V_T1}")
    e(f"v_add_f32 v{V_L}, v{V_L}, v{V_T1}")
    e(f"v_mov_b32 v{V_T1}, v{V_L}")
    e("s_nop 1")
    e(f"v_permlane16_swap_b32 v{V_L}, v{V_T1}")
    e(f"v_add_f32 v{V_L}, v{V_L}, v{V_T1}")
    e(f"s_lshr_b32 s{S_T0}, s{S_WAVE}, 2")
    e(f"s_lshl_b32 s{S_T0}, s{S_T0}, 7")
    e(f"s_and_b32 s{S_T1}, s{S_WAVE}, 3")
    e(f"s_lshl_b32 s{S_T1}, s{S_T1}, 2")
    e(f"s_add_u32 s{S_T0}, s{S_T0}, s{S_T1}")
    e(f"v_and_b32 v{V_T2}, 7, v{V_N}")
    e(f"v_lshlrev_b32 v{V_T0}, 4, v{V_T2}")
    e(f"v_add_u32 v{V_T0}, s{S_T0}, v{V_T0}")
    e(f"ds_write_b32 v{V_T0}, v{V_MC} offset:{LDS_ML}")
    e(f"ds_write_b32 v{V_T0}, v{V_L} offset:{LDS_ML+256}")
    e(f"v_mul_u32_u24 v{V_T0}, {OP_ROW}, v{V_T2}")
    e(f"v_lshrrev_b32 v{V_T1}, 3, v{V_N}")
    e(f"v_lshl_add_u32 v{V_T1}, v{V_G}, 1, v{V_T1}")
    e(f"v_lshl_add_u32 v{V_T0}, v{V_T1}, 6, v{V_T0}")
    e(f"s_mul_i32 s{S_T0}, s{S_WAVE}, {8*OP_ROW}")
    e(f"v_add_u32 v{V_T0}, s{S_T0}, v{V_T0}")
    for ee in range(2):
        for i in range(8):
            e(f"v_cndmask_b32 v{VB+ee*8+i}, v{OA+4*i+ee}, v{OA+4*i+2+ee}, s[{S_MASK}:{S_MASK+1}]")
    for x_ in range(4):
        e(f"ds_write_b128 v{V_T0}, {vr(VB+4*x_,4)} offset:{LDS_OP+16*x_}")
    e(f"v_lshrrev_b32 v{V_T1}, 5, v0")
    e(f"s_and_b32 s{S_T1}, s{S_WAVE}, 3")
    e(f"s_lshl_b32 s{S_T1}, s{S_T1}, 1")
    e(f"v_add_u32 v{V_T1}, s{S_T1}, v{V_T1}")
    e(f"v_and_b32 v{V_T2}, 31, v0")
    e(f"v_mul_u32_u24 v{V_XOFF}, {OP_ROW}, v{V_T1}")
    e(f"v_lshl_add_u32 v{V_XOFF}, v{V_T2}, 4, v{V_XOFF}")
    e(f"s_lshr_b32 s{S_T0}, s{S_WAVE}, 2")
    e(f"s_mul_i32 s{S_T2}, s{S_T0}, {32*OP_ROW}")
    e(f"v_add_u32 v{V_XOFF}, s{S_T2}, v{V_XOFF}")
    e(f"s_lshl_b32 s{S_T2}, s{S_T0}, 7")
    e(f"v_lshlrev_b32 v{V_XOFF2}, 4, v{V_T1}")
    e(f"v_add_u32 v{V_XOFF2}, s{S_T2}, v{V_XOFF2}")
    e(f"v_and_b32 v{V_T0}, 3, v{V_T1}")
    e(f"s_lshl_b32 s{S_T2}, s{S_T0}, 2")
    e(f"v_add_u32 v{V_T0}, s{S_T2}, v{V_T0}")
    e(f"v_mul_u32_u24 v{V_T0}, {OB_ROW}, v{V_T0}")
    e(f"v_lshrrev_b32 v{V_T1}, 2, v{V_T1}")
    e(f"v_lshl_add_u32 v{V_T0}, v{V_T1}, 8, v{V_T0}")
    e(f"v_lshl_add_u32 v{V_KOFF}, v{V_T2}, 3, v{V_T0}")
    e("s_waitcnt lgkmcnt(0)")
    e("s_barrier")
    MM, LL, OO = QF, QF+4, OA
    e(f"ds_read_b128 {vr(MM,4)}, v{V_XOFF2} offset:{LDS_ML}")
    e(f"ds_read_b128 {vr(LL,4)}, v{V_XOFF2} offset:{LDS_ML+256}")
    for p in range(4):
        e(f"ds_read_b128 {vr(OO+4*p,4)}, v{V_XOFF} offset:{LDS_OP+p*8*OP_ROW}")
    e(f"v_and_b32 v{V_T1}, 7, v{V_N}")
    e(f"v_mul_u32_u24 v{V_T1}, {OB_ROW}, v{V_T1}")
    e(f"v_lshrrev_b32 v{V_T2}, 3, v{V_N}")
    e(f"v_lshlrev_b32 v{V_T2}, 4, v{V_T2}")
    e(f"v_lshl_add_u32 v{V_T2}, v{V_G}, 2, v{V_T2}")
    e(f"v_lshl_add_u32 v{V_VOFF}, v{V_T2}, 2, v{V_T1}")
    e(f"s_lshl_b32 s{S_T2}, s{S_WAVE}, 6")
    e(f"v_lshl_add_u32 v{V_T7}, v{V_T2}, 1, v{V_T1}")
    e(f"v_add_u32 v{V_T7}, s{S_T2}, v{V_T7}")
    e("s_waitcnt lgkmcnt(4)")
    e(f"v_max3_f32 v{V_T0}, v{MM}, v{MM+1}, v{MM+2}")
    e(f"v_max_f32 v{V_T0}, v{V_T0}, v{MM+3}")
    for p in range(4):
        e(f"v_sub_f32 v{MM+p}, v{MM+p}, v{V_T0}")
    for p in range(4):
        e(f"v_exp_f32 v{MM+p}, v{MM+p}")
    e("s_nop 0")
    e(f"v_mul_f32 v{V_T0}, v{MM}, v{LL}")
    for p in range(1, 4):
        e(f"v_fmac_f32 v{V_T0}, v{MM+p}, v{LL+p}")
    e(f"v_rcp_f32 v{V_T0}, v{V_T0}")
    e("s_nop 0")
    for p in range(4):
        e(f"v_mul_f32 v{MM+p}, v{MM+p}, v{V_T0}")
    e("s_waitcnt lgkmcnt(0)")
    for i in range(4):
        e(f"v_mul_f32 v{OO+i}, v{OO+i}, v{MM}")
    for p in range(1, 4):
        for i in range(4):
            e(f"v_fmac_f32 v{OO+i}, v{OO+4*p+i}, v{MM+p}")
    e(f"v_cvt_pk_bf16_f32 v{PP}, v{OO}, v{OO+1}")
    e(f"v_cvt_pk_bf16_f32 v{PP+1}, v{OO+2}, v{OO+3}")
    e(f"ds_write_b64 v{V_KOFF}, {vr(PP,2)} offset:{LDS_OB}")
    e("s_waitcnt lgkmcnt(0)")
    e("s_barrier")
    stamp()
    e(f"ds_read_b64 {vr(PP,2)}, v{V_T7} offset:{LDS_OB}")
    for u in range(4):
        e(f"ds_read_b128 {vr(QF+4*u,4)}, v{V_VOFF} offset:{LDS_OB+u*128}")
    e(f"v_and_b32 v{V_T1}, 7, v{V_N}")
    e(f"v_lshrrev_b32 v{V_T2}, 3, v{V_N}")
    e(f"v_lshl_add_u32 v{V_T2}, v{V_G}, 1, v{V_T2}")
    e(f"v_mul_u32_u24 v{V_XOFF}, {R9_ROW}, v{V_T1}")
    e(f"v_lshl_add_u32 v{V_XOFF}, v{V_T2}, 5, v{V_XOFF}")
    e(f"s_mul_i32 s{S_T0}, s{S_WAVE}, {8*R9_ROW}")
    e(f"v_add_u32 v{V_XOFF}, s{S_T0}, v{V_XOFF}")
    e(f"v_mul_u32_u24 v{V_XOFF2}, 2304, v{V_T1}")
    e(f"v_lshl_add_u32 v{V_XOFF2}, v{V_T2}, 5, v{V_XOFF2}")
    e(f"s_lshl_b32 s{S_T0}, s{S_WAVE}, 8")
    e(f"v_add_u32 v{V_XOFF2}, s{S_T0}, v{V_XOFF2}")
    e(f"s_mul_i32 s{S_T0}, s{S_WAVE}, {R9_ROW}")
    e(f"v_lshlrev_b32 v{V_T1}, 2, v0")
    e(f"v_add_u32 v{V_KOFF}, s{S_T0}, v{V_T1}")
    e(f"s_mul_i32 s{S_T0}, s{S_WAVE}, 2304")
    e(f"s_add_u32 s{S_T0}, s{S_T0}, 2048")
    e(f"v_add_u32 v{V_WOFF}, s{S_T0}, v{V_T1}")
    e("s_waitcnt vmcnt(0) lgkmcnt(4)")
    half_mma(W9, PP, VB, True)
    e("s_waitcnt lgkmcnt(0)")
    unit_mma(WP, QF, OA, True)
    merge(VB, W9)
    e(f"ds_write_b128 v{V_XOFF}, {vr(W9,4)} offset:{LDS_R9}")
    e(f"ds_write_b128 v{V_XOFF}, {vr(W9+4,4)} offset:{LDS_R9+16}")
    unit_mma(WP+32, QF+4, OA, False)
    unit_mma(WP+64, QF+8, OA, False)
    unit_mma(KB, QF+12, OA, False)
    e("s_waitcnt lgkmcnt(0)")
    e("s_barrier")
    for w_ in range(8):
        e(f"ds_read_b32 v{VB+w_}, v{V_KOFF} offset:{LDS_R9+w_*8*R9_ROW}")
    merge(OA, W9+8)
    e(f"buffer_store_dwordx4 {vr(W9+8,4)}, v{V_XOFF2}, s[{S_WS}:{S_WS+3}], 0 offen")
    e(f"buffer_store_dwordx4 {vr(W9+12,4)}, v{V_XOFF2}, s[{S_WS}:{S_WS+3}], 0 offen offset:16")
    e("s_waitcnt lgkmcnt(0)")
    e(f"v_add_f32 v{VB}, v{VB}, v{VB+1}")
    e(f"v_add_f32 v{VB+2}, v{VB+2}, v{VB+3}")
    e(f"v_add_f32 v{VB+4}, v{VB+4}, v{VB+5}")
    e(f"v_add_f32 v{VB+6}, v{VB+6}, v{VB+7}")
    e(f"v_add_f32 v{VB}, v{VB}, v{VB+2}")
    e(f"v_add_f32 v{VB+4}, v{VB+4}, v{VB+6}")
    e(f"v_add_f32 v{VB}, v{VB}, v{VB+4}")
    e(f"buffer_store_dword v{VB}, v{V_WOFF}, s[{S_WS}:{S_WS+3}], 0 offen")
    if stamps:
        stamp()
        e("s_waitcnt vmcnt(0)")
        stamp()
        e(f"s_add_u32 s{S_WS}, s42, 0x800000")
        e(f"s_addc_u32 s{S_WS+1}, s43, 0")
        e(f"s_mov_b32 s{S_WS+2}, 0x100000")
        e(f"s_lshl_b32 s{S_T0}, s2, 3")
        e(f"s_add_u32 s{S_T0}, s{S_T0}, s{S_WAVE}")
        e(f"s_lshl_b32 s{S_T0}, s{S_T0}, 6")
        e(f"s_getreg_b32 s{S_T1}, hwreg(HW_REG_XCC_ID)")
        e(f"s_getreg_b32 s{S_T2}, hwreg(HW_REG_HW_ID)")
        e("v_mov_b32 v1, 0")
        for i in range(nst[0]):
            e(f"v_mov_b32 v2, s{64+2*i}")
            e(f"buffer_store_dword v2, v1, s[{S_WS}:{S_WS+3}], s{S_T0} offen offset:{4*i}")
        e(f"v_mov_b32 v2, s{S_T1}")
        e(f"buffer_store_dword v2, v1, s[{S_WS}:{S_WS+3}], s{S_T0} offen offset:56")
        e(f"v_mov_b32 v2, s{S_T2}")
        e(f"buffer_store_dword v2, v1, s[{S_WS}:{S_WS+3}], s{S_T0} offen offset:60")
    e.label("L_end")
    e("s_endpgm")

    e.raw(".globl reduce_kernel\n.p2align 8\n.type reduce_kernel,@function\nreduce_kernel:")
    e("s_cmp_ge_u32 s2, 72")
    e("s_cbranch_scc1 L_rend")
    if stamps:
        e("s_memrealtime s[16:17]")
    e("s_load_dwordx2 s[4:5], s[0:1], 56")
    e("s_load_dwordx2 s[8:9], s[0:1], 40")
    e("s_lshl_b32 s3, s2, 8")
    e("v_add_u32 v0, s3, v0")
    e("v_lshlrev_b32 v1, 4, v0")
    e("v_lshlrev_b32 v2, 3, v0")
    e(f"s_mov_b32 s6, {16*294912}")
    e("s_mov_b32 s7, 0x00020000")
    e(f"s_mov_b32 s10, {128*1152}")
    e("s_mov_b32 s11, 0x00020000")
    e("s_waitcnt lgkmcnt(0)")
    for h in range(16):
        e(f"s_mov_b32 s12, {h*294912}")
        e(f"buffer_load_dwordx4 {vr(4+4*h,4)}, v1, s[4:7], s12 offen")
    for h in range(1, 16):
        e(f"s_waitcnt vmcnt({15-h})")
        e(f"v_pk_add_f32 v[4:5], v[4:5], {vr(4+4*h,2)}")
        e(f"v_pk_add_f32 v[6:7], v[6:7], {vr(6+4*h,2)}")
    e("v_cvt_pk_bf16_f32 v4, v4, v5")
    e("v_cvt_pk_bf16_f32 v5, v6, v7")
    e("buffer_store_dwordx2 v[4:5], v2, s[8:11], 0 offen")
    if stamps:
        e("s_waitcnt vmcnt(0)")
        e("s_memrealtime s[18:19]")
        e("s_waitcnt lgkmcnt(0)")
        e("s_add_u32 s4, s4, 0x900000")
        e("s_addc_u32 s5, s5, 0")
        e("s_lshl_b32 s12, s2, 3")
        e("v_mov_b32 v1, 0")
        e("v_mov_b32 v2, s16")
        e("v_mov_b32 v3, s18")
        e("buffer_store_dwordx2 v[2:3], v1, s[4:7], s12 offen")
    e.label("L_rend")
    e("s_endpgm")

    e.raw('.section .rodata,"a"')
    for kn, nv, ns in (("attn_kernel", 256, 96), ("reduce_kernel", 72, 24)):
        e.raw(f""".p2align 6
.amdhsa_kernel {kn}
  .amdhsa_next_free_vgpr {nv}
  .amdhsa_next_free_sgpr {ns}
  .amdhsa_accum_offset {nv}
  .amdhsa_group_segment_fixed_size 0
  .amdhsa_kernarg_size 64
  .amdhsa_user_sgpr_count 2
  .amdhsa_user_sgpr_kernarg_segment_ptr 1
  .amdhsa_system_sgpr_workgroup_id_x 1
.end_amdhsa_kernel""")
    open(name, "w").write(e.text())

if __name__ == "__main__":
    gen("k1.s")
    gen("k1_kfirst.s", order="kfirst")
    gen("k1_klast.s", order="klast")
    gen("k1_st.s", stamps=True)
    for nh in (2,4,8,16):
        gen(f"k1_st_nh{nh}.s", stamps=True, nh=nh)
    gen(f"k1_st_nh8_nt.s", stamps=True, nh=8, wpol="nt")
    gen(f"k1_st_adj.s", stamps=True, wqpat="adj")
    gen(f"k1_st_lin.s", stamps=True, wqpat="lin")
    gen(f"k1_st_lin_klast.s", stamps=True, wqpat="lin", order="klast")
    gen(f"k1_st_cur_klast.s", stamps=True, order="klast")
    gen(f"k1_st_bar.s", stamps=True, order="bar")
    gen(f"k1_st_bar_nt.s", stamps=True, order="bar", wpol="nt")
    gen(f"k1_st_bar_lin.s", stamps=True, order="bar", wqpat="lin")
```

```python
import sys, math, struct

HEADER = """; Kernarg layout for this problem (64 bytes, ptrs only, base s[0:1]):
"""

class E:
    def __init__(self):
        self.l = []
    def __call__(self, s):
        self.l.append("  " + s)
    def label(self, s):
        self.l.append(s + ":")
    def raw(self, s):
        self.l.append(s)
    def text(self):
        return "\n".join(self.l) + "\n"

def vr(a, n=1):
    return f"v{a}" if n == 1 else f"v[{a}:{a+n-1}]"

V_LANE, V_KOFF, V_VOFF, V_WOFF, V_WOFF2, V_XOFF, V_XOFF2, V_T7 = 0, 1, 2, 3, 4, 5, 6, 7
V_MC, V_L, V_AL, V_T0, V_T1, V_T2, V_N, V_G = 8, 9, 10, 11, 12, 13, 14, 15
QF, OA, KB, VB, WP, W9, ST, PP, XT = 16, 32, 64, 96, 128, 224, 240, 248, 252
V_JUNK = 253
V_PARK = 254
S_K, S_V, S_WQ, S_X, S_WO, S_WS = 8, 12, 16, 20, 24, 28
S_WAVE, S_HKV, S_BP = 3, 44, 45
S_LO, S_HI, S_C = 46, 47, 48
S_IT, S_OFF, S_T0, S_T1, S_T2, S_T3 = 49, 50, 51, 52, 53, 54
S_WR = 55
S_MASK = 56
S_U = 58
S_BIG = 62

QP_ROW = 256 * 4 + 16
OP_ROW = 128 * 4 + 16
LDS_OP = 0
LDS_ML = 33792
LDS_OB = LDS_ML + 512
OB_ROW = 512 + 16
LDS_R9 = LDS_OB + 8 * OB_ROW
R9_ROW = 256 + 16
LDS_QP = LDS_R9 + 64 * R9_ROW
LDS_PARK = LDS_QP + 16 * QP_ROW
LDS_TOTAL = LDS_PARK + 65536

def gen(name, pol="nt", wpol="nt", wopol="nt", stamps=False, nh=2, rot=True, korder="split", prio=None):
    e = E()
    nst = [0]
    def stamp():
        if not stamps: return
        i = nst[0]; nst[0] += 1
        e(f"s_memrealtime s[{64+2*i}:{65+2*i}]")
        e("s_waitcnt lgkmcnt(0)")
    e.raw(HEADER.rstrip("\n"))
    e.raw(f"; @launch kernel=attn_kernel grid=(256,1,1) block=(512,1,1) lds={LDS_TOTAL}")
    e.raw(f"; @launch kernel=reduce_kernel grid=(72,1,1) block=(256,1,1) lds=0")
    e.raw('.amdgcn_target "amdgcn-amd-amdhsa--gfx950"')
    e.raw(".text")
    e.raw(".globl attn_kernel\n.p2align 8\n.type attn_kernel,@function\nattn_kernel:")
    e("s_cmp_ge_u32 s2, 256")
    e("s_cbranch_scc1 L_end")
    stamp()
    e("s_load_dwordx8 s[32:39], s[0:1], 0")
    e("s_load_dwordx2 s[40:41], s[0:1], 32")
    e("s_load_dwordx2 s[42:43], s[0:1], 56")
    e("v_lshrrev_b32 v1, 6, v0")
    e("v_and_b32 v0, 63, v0")
    e(f"v_readfirstlane_b32 s{S_WAVE}, v1")
    e(f"v_and_b32 v{V_N}, 15, v0")
    e(f"v_lshrrev_b32 v{V_G}, 4, v0")
    lnh = nh.bit_length() - 1
    e(f"s_and_b32 s{S_T0}, s2, {16//nh - 1}")
    e(f"s_lshl_b32 s{S_HKV}, s{S_T0}, {lnh}")
    e(f"s_lshr_b32 s{S_T1}, s2, 3")
    e(f"s_and_b32 s{S_T0}, s{S_T1}, {nh-1}")
    e(f"s_add_u32 s{S_HKV}, s{S_HKV}, s{S_T0}")
    e(f"s_lshr_b32 s{S_BP}, s{S_T1}, {lnh}")
    if nh > 2:
        e(f"s_and_b32 s{S_T0}, s2, 7")
        e(f"s_lshr_b32 s{S_T0}, s{S_T0}, {4-lnh}")
        e(f"s_lshl_b32 s{S_T0}, s{S_T0}, {5-lnh}")
        e(f"s_add_u32 s{S_BP}, s{S_BP}, s{S_T0}")
    e(f"v_lshrrev_b32 v{V_T0}, 2, v{V_N}")
    e(f"v_lshlrev_b32 v{V_T0}, 5, v{V_T0}")
    e(f"v_and_b32 v{V_T1}, 1, v{V_N}")
    e(f"v_lshl_add_u32 v{V_T7}, v{V_T1}, 4, v{V_T0}")
    e(f"v_bfe_u32 v{V_T2}, v{V_N}, 1, 1")
    e(f"v_lshlrev_b32 v{V_T0}, 4, v{V_T2}")
    e(f"v_lshl_add_u32 v{V_T0}, v{V_G}, 2, v{V_T0}")
    e(f"v_lshl_add_u32 v{V_WOFF2}, v{V_T0}, 13, v{V_T7}")
    e(f"v_lshl_add_u32 v{V_WOFF}, v{V_T0}, 14, v{V_T7}")
    e(f"v_and_b32 v{V_T1}, 7, v{V_N}")
    e(f"v_mul_u32_u24 v{V_T1}, 1152, v{V_T1}")
    e(f"v_lshrrev_b32 v{V_T2}, 3, v{V_N}")
    e(f"v_lshlrev_b32 v{V_T2}, 4, v{V_T2}")
    e(f"v_lshl_add_u32 v{V_T2}, v{V_G}, 2, v{V_T2}")
    e(f"v_lshl_add_u32 v{V_XOFF2}, v{V_T2}, 1, v{V_T1}")
    e(f"v_lshl_add_u32 v{V_XOFF}, v{V_T2}, 2, v{V_T1}")
    if rot:
        e(f"s_and_b32 s{S_T0}, s{S_BP}, 4")
        e(f"s_xor_b32 s{S_WR}, s{S_WAVE}, s{S_T0}")
        for s_ in range(4):
            e(f"s_add_u32 s{S_T0}, s{S_BP}, {s_}")
            e(f"s_and_b32 s{S_T0}, s{S_T0}, 3")
            e(f"s_lshl_b32 s{S_U+s_}, s{S_T0}, 19")
    else:
        e(f"s_mov_b32 s{S_WR}, s{S_WAVE}")
        for s_ in range(4):
            e(f"s_mov_b32 s{S_U+s_}, {s_<<19}")
    e(f"s_mov_b32 s{S_WQ+3}, 0x00020000")
    e(f"s_mov_b32 s{S_X+3}, 0x00020000")
    e(f"s_and_b32 s{S_T1}, s{S_WR}, 1")
    e(f"s_mul_i32 s{S_T2}, s{S_T1}, {288*8192}")
    e(f"s_lshl_b32 s{S_T3}, s{S_HKV}, 9")
    e(f"s_add_u32 s{S_T2}, s{S_T2}, s{S_T3}")
    e(f"s_lshr_b32 s{S_T3}, s{S_WR}, 1")
    e(f"s_lshl_b32 s{S_T3}, s{S_T3}, 7")
    e(f"s_add_u32 s{S_T2}, s{S_T2}, s{S_T3}")
    e(f"s_sub_u32 s{S_WQ+2}, {576*8192}, s{S_T2}")
    e(f"s_mul_i32 s{S_T1}, s{S_T1}, 576")
    e(f"s_mul_i32 s{S_T3}, s{S_BP}, {8*1152}")
    e(f"s_add_u32 s{S_T1}, s{S_T1}, s{S_T3}")
    e(f"s_sub_u32 s{S_X+2}, {128*1152}, s{S_T1}")
    if prio == "young":
        e(f"s_cmp_lt_u32 s{S_WAVE}, 4")
        e("s_cbranch_scc1 L_prio")
        e("s_setprio 1")
        e.label("L_prio")
    e("s_waitcnt lgkmcnt(0)")
    e(f"s_add_u32 s{S_X}, s32, s{S_T1}")
    e(f"s_addc_u32 s{S_X+1}, s33, 0")
    e(f"s_add_u32 s{S_WQ}, s38, s{S_T2}")
    e(f"s_addc_u32 s{S_WQ+1}, s39, 0")
    stamp()
    issued = []
    wqbuf = [WP, WP+32, WP+64, VB]
    e(f"buffer_load_dwordx2 {vr(PP,2)}, v{V_XOFF2}, s[{S_X}:{S_X+3}], 0 offen offset:512"); issued.append("h")
    for t in range(4):
        e(f"s_mov_b32 s{S_OFF}, {(256+t)*8192}")
        e(f"buffer_load_dwordx4 {vr(W9+4*t,4)}, v{V_WOFF2}, s[{S_WQ}:{S_WQ+3}], s{S_OFF} offen {wpol}"); issued.append("h")
    for s_ in range(4):
        e(f"s_lshr_b32 s{S_OFF}, s{S_U+s_}, 12")
        e(f"buffer_load_dwordx4 {vr(QF+4*s_,4)}, v{V_XOFF}, s[{S_X}:{S_X+3}], s{S_OFF} offen"); issued.append(f"u{s_}")
        for t in range(8):
            e(f"s_add_u32 s{S_OFF}, s{S_U+s_}, {t*8192}")
            e(f"buffer_load_dwordx4 {vr(wqbuf[s_]+4*t,4)}, v{V_WOFF}, s[{S_WQ}:{S_WQ+3}], s{S_OFF} offen {wpol}"); issued.append(f"u{s_}")
    def wait_for(tags):
        last = max(i for i, t in enumerate(issued) if t in tags)
        e(f"s_waitcnt vmcnt({len(issued) - 1 - last})")
    stamp()
    e(f"s_mov_b32 s{S_LO}, 0x05040100")
    e(f"s_mov_b32 s{S_HI}, 0x07060302")
    c = math.log2(math.e) / math.sqrt(128.0)
    cbits = struct.unpack("<I", struct.pack("<f", c))[0]
    e(f"s_mov_b32 s{S_C}, 0x{cbits:08x}")
    e(f"s_mov_b32 s{S_MASK}, 0xff00ff00")
    e(f"s_mov_b32 s{S_MASK+1}, 0xff00ff00")
    e(f"s_mov_b32 s{S_BIG}, 0x7ffffff0")
    e(f"v_lshrrev_b32 v{V_T0}, 2, v{V_N}")
    e(f"v_lshlrev_b32 v{V_T0}, 11, v{V_T0}")
    e(f"v_and_b32 v{V_T1}, 3, v{V_N}")
    e(f"v_lshlrev_b32 v{V_T1}, 8, v{V_T1}")
    e(f"v_lshlrev_b32 v{V_T2}, 4, v{V_G}")
    e(f"v_add3_u32 v{V_KOFF}, v{V_T0}, v{V_T1}, v{V_T2}")
    e(f"v_lshlrev_b32 v{V_T0}, 11, v{V_G}")
    e(f"v_lshl_add_u32 v{V_VOFF}, v{V_N}, 4, v{V_T0}")
    e(f"s_lshr_b32 s{S_T0}, s{S_WAVE}, 2")
    e(f"s_lshl_b32 s{S_T1}, s{S_BP}, 1")
    e(f"s_add_u32 s{S_T0}, s{S_T0}, s{S_T1}")
    e(f"s_lshl_b32 s{S_T0}, s{S_T0}, 4")
    e(f"s_add_u32 s{S_T0}, s{S_T0}, s{S_HKV}")
    e(f"s_lshl_b32 s{S_T0}, s{S_T0}, 19")
    e(f"s_and_b32 s{S_T1}, s{S_WAVE}, 3")
    e(f"s_lshl_b32 s{S_T1}, s{S_T1}, 13")
    e(f"s_add_u32 s{S_T0}, s{S_T0}, s{S_T1}")
    e(f"s_sub_u32 s{S_K+2}, 0x80000, s{S_T1}")
    e(f"s_mov_b32 s{S_V+2}, s{S_K+2}")
    e(f"s_mov_b32 s{S_K+3}, 0x00020000")
    e(f"s_mov_b32 s{S_V+3}, 0x00020000")
    e(f"s_mov_b32 s{S_WO+3}, 0x00020000")
    e(f"s_mov_b32 s{S_WS+3}, 0x00020000")
    e(f"s_add_u32 s{S_K}, s34, s{S_T0}")
    e(f"s_addc_u32 s{S_K+1}, s35, 0")
    e(f"s_add_u32 s{S_V}, s36, s{S_T0}")
    e(f"s_addc_u32 s{S_V+1}, s37, 0")
    e(f"s_mul_i32 s{S_T0}, s{S_HKV}, {256*1152}")
    e(f"s_add_u32 s{S_WO}, s40, s{S_T0}")
    e(f"s_addc_u32 s{S_WO+1}, s41, 0")
    e(f"s_mov_b32 s{S_WO+2}, {256*1152}")
    e(f"s_mul_i32 s{S_T0}, s{S_HKV}, {128*2304}")
    e(f"s_mul_i32 s{S_T1}, s{S_BP}, {8*2304}")
    e(f"s_add_u32 s{S_T0}, s{S_T0}, s{S_T1}")
    e(f"s_add_u32 s{S_WS}, s42, s{S_T0}")
    e(f"s_addc_u32 s{S_WS+1}, s43, 0")
    e(f"s_mov_b32 s{S_WS+2}, {8*2304}")
    e(f"v_bfe_u32 v{V_T2}, v{V_N}, 1, 1")
    e(f"v_lshlrev_b32 v{V_T0}, 4, v{V_T2}")
    e(f"v_lshl_add_u32 v{V_T0}, v{V_G}, 2, v{V_T0}")
    e(f"v_mul_u32_u24 v{V_T0}, 1152, v{V_T0}")
    e(f"s_lshl_b32 s{S_T0}, s{S_WAVE}, 7")
    e(f"v_lshl_add_u32 v{V_WOFF}, v{V_T0}, 1, v{V_T7}")
    e(f"v_add_u32 v{V_WOFF}, s{S_T0}, v{V_WOFF}")
    e(f"s_mul_i32 s{S_T0}, s{S_WAVE}, {32*1152}")
    e(f"s_add_u32 s{S_T0}, s{S_T0}, 1024")
    e(f"v_add3_u32 v{V_WOFF2}, v{V_T0}, v{V_T7}, s{S_T0}")
    e(f"s_lshl_b32 s{S_T0}, s{S_WAVE}, 13")
    e(f"s_add_u32 s{S_T0}, s{S_T0}, {LDS_PARK}")
    e(f"v_lshlrev_b32 v{V_PARK}, 4, v0")
    e(f"v_add_u32 v{V_PARK}, s{S_T0}, v{V_PARK}")
    e(f"v_and_b32 v{V_T0}, 7, v{V_N}")
    e(f"v_mul_u32_u24 v{V_T0}, {QP_ROW}, v{V_T0}")
    e(f"v_lshrrev_b32 v{V_T1}, 3, v{V_N}")
    e(f"v_lshl_add_u32 v{V_T1}, v{V_G}, 1, v{V_T1}")
    e(f"v_lshl_add_u32 v{V_T0}, v{V_T1}, 5, v{V_T0}")
    e(f"s_and_b32 s{S_T0}, s{S_WR}, 1")
    e(f"s_mul_i32 s{S_T0}, s{S_T0}, {8*QP_ROW}")
    e(f"s_lshr_b32 s{S_T1}, s{S_WR}, 1")
    e(f"s_lshl_b32 s{S_T1}, s{S_T1}, 8")
    e(f"s_add_u32 s{S_T0}, s{S_T0}, s{S_T1}")
    e(f"v_add_u32 v{V_XOFF}, s{S_T0}, v{V_T0}")
    e(f"v_and_b32 v{V_T1}, 3, v{V_N}")
    e(f"v_mul_u32_u24 v{V_T1}, {QP_ROW}, v{V_T1}")
    e(f"v_bfe_u32 v{V_T2}, v{V_N}, 2, 1")
    e(f"v_lshl_add_u32 v{V_T1}, v{V_T2}, 9, v{V_T1}")
    e(f"v_lshl_add_u32 v{V_T1}, v{V_G}, 5, v{V_T1}")
    e(f"s_lshr_b32 s{S_T0}, s{S_WAVE}, 2")
    e(f"s_mul_i32 s{S_T0}, s{S_T0}, {4*QP_ROW}")
    e(f"v_add_u32 v{V_XOFF2}, s{S_T0}, v{V_T1}")

    def ld_k(soff):
        for sub in range(2):
            for j in range(4):
                e(f"buffer_load_dwordx4 {vr(KB+(sub*4+j)*4,4)}, v{V_KOFF}, s[{S_K}:{S_K+3}], {soff} offen offset:{sub*1024+j*64} {pol}")
    def ld_v(soff):
        for t in range(8):
            e(f"buffer_load_dwordx4 {vr(VB+t*4,4)}, v{V_VOFF}, s[{S_V}:{S_V+3}], {soff} offen offset:{t*256} {pol}")

    def unit_mma(buf, bfrag, acc, first):
        def perms(i):
            w_, h = i >> 1, i & 1
            sel = S_HI if h else S_LO
            T = ST + (i & 1) * 4
            for u_ in range(4):
                e(f"v_perm_b32 v{T+u_}, v{buf+(2*u_+1)*4+w_}, v{buf+(2*u_)*4+w_}, s{sel}")
        perms(0)
        for i in range(8):
            if i + 1 < 8: perms(i + 1)
            else: e("s_nop 1")
            T = ST + (i & 1) * 4
            cc = "0" if first else vr(acc+4*i, 4)
            e(f"v_mfma_f32_16x16x32_bf16 {vr(acc+4*i,4)}, {vr(T,4)}, {vr(bfrag,4)}, {cc}")
    def half_mma(buf, bfrag, acc, first):
        def perms(i):
            w_, h = i >> 1, i & 1
            sel = S_HI if h else S_LO
            T = ST + (i & 3) * 2
            for u_ in range(2):
                e(f"v_perm_b32 v{T+u_}, v{buf+(2*u_+1)*4+w_}, v{buf+(2*u_)*4+w_}, s{sel}")
        perms(0)
        for i in range(8):
            if i + 1 < 8: perms(i + 1)
            else: e("s_nop 1")
            T = ST + (i & 3) * 2
            cc = "0" if first else vr(acc+4*i, 4)
            e(f"v_mfma_f32_16x16x16_bf16 {vr(acc+4*i,4)}, {vr(T,2)}, {vr(bfrag,2)}, {cc}")
    def merge(acc, dst):
        for i in range(8):
            a = acc + 4*i
            e(f"v_add_f32_dpp v{dst+i}, v{a+2}, v{a} row_ror:8 row_mask:0xf bank_mask:0x3")
            e(f"v_add_f32_dpp v{dst+i}, v{a+1}, v{a+3} row_ror:8 row_mask:0xf bank_mask:0xc")

    WL = []
    def wl_unit(u, buf):
        for t in range(8):
            WL.append([f"s_mov_b32 s{S_T0}, {(u*64+(t//4)*4)*1152}",
                       f"buffer_load_dwordx4 {vr(buf+4*t,4)}, v{V_WOFF}, s[{S_WO}:{S_WO+3}], s{S_T0} offen offset:{(t%4)*1152} {wopol}"])
    wl_unit(3, WP+64)
    for t in range(4):
        WL.append([f"buffer_load_dwordx4 {vr(W9+4*t,4)}, v{V_WOFF2}, s[{S_WO}:{S_WO+3}], 0 offen offset:{t*1152} {wopol}"])
    wl_unit(0, WP); wl_unit(1, WP+32); wl_unit(2, WP+64)
    while len(WL) < 45:
        WL.append([f"buffer_load_dword v{V_JUNK}, v{V_WOFF}, s[{S_WO}:{S_WO+3}], s{S_BIG} offen"])
    def perm_inplace(buf):
        for a in range(4):
            r0, r1 = buf+8*a+a, buf+8*a+4+a
            e(f"v_perm_b32 v{ST}, v{r1}, v{r0}, s{S_LO}")
            e(f"v_perm_b32 v{r1}, v{r1}, v{r0}, s{S_HI}")
            e(f"v_mov_b32 v{r0}, v{ST}")
        for a in range(4):
            for b in range(a+1, 4):
                p0, p1 = buf+8*a+b, buf+8*a+4+b
                q0, q1 = buf+8*b+a, buf+8*b+4+a
                e(f"v_perm_b32 v{ST}, v{p1}, v{p0}, s{S_LO}")
                e(f"v_perm_b32 v{ST+1}, v{p1}, v{p0}, s{S_HI}")
                e(f"v_perm_b32 v{p0}, v{q1}, v{q0}, s{S_LO}")
                e(f"v_perm_b32 v{p1}, v{q1}, v{q0}, s{S_HI}")
                e(f"v_mov_b32 v{q0}, v{ST}")
                e(f"v_mov_b32 v{q1}, v{ST+1}")
    def perm_half_inplace(buf):
        for half in range(2):
            pass
        T = [ST+i for i in range(8)] + [PP+i for i in range(4)]
        for w_ in range(3):
            for h in range(2):
                for u_ in range(2):
                    sel = S_HI if h else S_LO
                    e(f"v_perm_b32 v{T[w_*4+2*h+u_]}, v{buf+(2*u_+1)*4+w_}, v{buf+(2*u_)*4+w_}, s{sel}")
        e(f"v_perm_b32 v{buf+12}, v{buf+7}, v{buf+3}, s{S_LO}")
        e(f"v_perm_b32 v{buf+13}, v{buf+15}, v{buf+11}, s{S_LO}")
        e(f"v_perm_b32 v{buf+14}, v{buf+7}, v{buf+3}, s{S_HI}")
        e(f"v_perm_b32 v{buf+15}, v{buf+15}, v{buf+11}, s{S_HI}")
        for i in range(12):
            e(f"v_mov_b32 v{buf+i}, v{T[i]}")
    def park(buf):
        for i in range(8):
            w_, h = i >> 1, i & 1
            sel = S_HI if h else S_LO
            T = ST + (i & 1) * 4
            for u_ in range(4):
                e(f"v_perm_b32 v{T+u_}, v{buf+(2*u_+1)*4+w_}, v{buf+(2*u_)*4+w_}, s{sel}")
            e(f"ds_write_b128 v{V_PARK}, {vr(T,4)} offset:{i*1024}")
            if i & 1:
                e("s_waitcnt lgkmcnt(0)")
    def snippet(s_):
        for l in WL[3*s_:3*s_+3]:
            for x_ in l: e(x_)
        if s_ in (4, 5, 8, 11, 13):
            e("s_nop 3")
        if s_ == 4: park(WP+64)
        if s_ == 5: perm_half_inplace(W9)
        if s_ == 8: perm_inplace(WP)
        if s_ == 11: perm_inplace(WP+32)
        if s_ == 13: perm_inplace(WP+64)

    wait_for(["h"])
    stamp()
    half_mma(W9, PP, OA, True)
    e("s_nop 4")
    for s_ in range(4):
        wait_for([f"u{s_}"])
        unit_mma(wqbuf[s_], QF+4*s_, OA, False)
    e("s_nop 7")
    e("s_nop 1")
    merge(OA, WP)
    e(f"ds_write_b128 v{V_XOFF}, {vr(WP,4)} offset:{LDS_QP}")
    e(f"ds_write_b128 v{V_XOFF}, {vr(WP+4,4)} offset:{LDS_QP+16}")
    stamp()
    def first_loads():
        ld_k("0"); ld_v("0"); snippet(0)
    if korder == "split":
        e(f"s_cmp_ge_u32 s{S_WAVE}, 4")
        e("s_cbranch_scc1 L_skip_a")
        first_loads()
        e.label("L_skip_a")
    elif korder == "before":
        first_loads()
    e("s_waitcnt lgkmcnt(0)")
    e("s_barrier")
    for j in range(4):
        for ee in range(2):
            for h in range(2):
                e(f"ds_read_b128 {vr(WP+j*16+ee*8+h*4,4)}, v{V_XOFF2} offset:{LDS_QP+ee*8*QP_ROW+j*128+h*16}")
    for i in range(32):
        e(f"v_mov_b32 v{OA+i}, 0")
    e(f"v_mov_b32 v{V_MC}, 0xf149f2ca")
    e(f"v_mov_b32 v{XT}, 0xf149f2ca")
    e(f"v_mov_b32 v{V_L}, 0")
    for j in range(4):
        e(f"s_waitcnt lgkmcnt({12-4*j})")
        for i in range(8):
            e(f"v_add_f32 v{WP+j*16+i}, v{WP+j*16+i}, v{WP+j*16+8+i}")
        for i in range(4):
            e(f"v_cvt_pk_bf16_f32 v{QF+j*4+i}, v{WP+j*16+2*i}, v{WP+j*16+2*i+1}")
    if prio == "young":
        e("s_setprio 0")
    if korder == "split":
        e(f"s_cmp_lt_u32 s{S_WAVE}, 4")
        e("s_cbranch_scc1 L_skip_b")
        first_loads()
        e.label("L_skip_b")
    elif korder == "after":
        first_loads()
    e(f"s_mov_b32 s{S_IT}, 0")
    e(f"s_mov_b32 s{S_OFF}, 0x8000")

    def tile(last):
        e(f"s_waitcnt vmcnt({8 if last else 11})")
        for j in range(4):
            for sub in range(2):
                cc = "0" if j == 0 else vr(ST+sub*4, 4)
                e(f"v_mfma_f32_16x16x32_bf16 {vr(ST+sub*4,4)}, {vr(KB+(sub*4+j)*4,4)}, {vr(QF+j*4,4)}, {cc}")
        if not last:
            ld_k(f"s{S_OFF}")
        else:
            e("s_nop 7")
            for i in range(8):
                e(f"ds_read_b128 {vr(KB+4*i,4)}, v{V_PARK} offset:{i*1024}")
        e("s_nop 1")
        S = [ST+i for i in range(8)]
        e(f"v_max3_f32 v{V_T0}, v{S[0]}, v{S[1]}, v{S[2]}")
        e(f"v_max3_f32 v{V_T1}, v{S[3]}, v{S[4]}, v{S[5]}")
        e(f"v_max3_f32 v{V_T2}, v{S[6]}, v{S[7]}, v{XT}")
        e(f"v_max3_f32 v{V_T0}, v{V_T0}, v{V_T1}, v{V_T2}")
        e(f"v_mov_b32 v{V_T1}, v{V_T0}")
        e("s_nop 1")
        e(f"v_permlane32_swap_b32 v{V_T0}, v{V_T1}")
        e(f"v_max_f32 v{V_T0}, v{V_T0}, v{V_T1}")
        e(f"v_mov_b32 v{V_T1}, v{V_T0}")
        e("s_nop 1")
        e(f"v_permlane16_swap_b32 v{V_T0}, v{V_T1}")
        e(f"v_max_f32 v{XT}, v{V_T0}, v{V_T1}")
        e(f"v_mul_f32 v{V_T0}, s{S_C}, v{XT}")
        e(f"v_sub_f32 v{V_AL}, v{V_MC}, v{V_T0}")
        e(f"v_exp_f32 v{V_AL}, v{V_AL}")
        e(f"v_mov_b32 v{V_MC}, v{V_T0}")
        for i in range(8):
            e(f"v_fma_f32 v{S[i]}, v{S[i]}, s{S_C}, -v{V_MC}")
        for i in range(8):
            e(f"v_exp_f32 v{S[i]}, v{S[i]}")
        for i in range(16):
            e(f"v_pk_mul_f32 {vr(OA+2*i,2)}, {vr(OA+2*i,2)}, {vr(V_AL,2)} op_sel_hi:[1,0]")
        e(f"v_mul_f32 v{V_L}, v{V_L}, v{V_AL}")
        for i in range(4):
            e(f"v_cvt_pk_bf16_f32 v{PP+i}, v{S[2*i]}, v{S[2*i+1]}")
        e(f"v_add_f32 v{V_T0}, v{S[0]}, v{S[1]}")
        e(f"v_add_f32 v{V_T1}, v{S[2]}, v{S[3]}")
        e(f"v_add_f32 v{V_T2}, v{S[4]}, v{S[5]}")
        e(f"v_add_f32 v{V_T0}, v{V_T0}, v{V_T1}")
        e(f"v_add_f32 v{V_T1}, v{S[6]}, v{S[7]}")
        e(f"v_add_f32 v{V_T2}, v{V_T2}, v{V_T1}")
        e(f"v_add_f32 v{V_L}, v{V_L}, v{V_T0}")
        e(f"v_add_f32 v{V_L}, v{V_L}, v{V_T2}")
        if last:
            pre_combine()
        e(f"s_waitcnt vmcnt({0 if last else 11})")
        if last: stamp()
        unit_mma(VB, PP, OA, False)
        if not last:
            ld_v(f"s{S_OFF}")

    def pre_combine():
        e(f"v_mov_b32 v{V_T1}, v{V_L}")
        e("s_nop 1")
        e(f"v_permlane32_swap_b32 v{V_L}, v{V_T1}")
        e(f"v_add_f32 v{V_L}, v{V_L}, v{V_T1}")
        e(f"v_mov_b32 v{V_T1}, v{V_L}")
        e("s_nop 1")
        e(f"v_permlane16_swap_b32 v{V_L}, v{V_T1}")
        e(f"v_add_f32 v{V_L}, v{V_L}, v{V_T1}")
        e(f"s_lshr_b32 s{S_T0}, s{S_WAVE}, 2")
        e(f"s_lshl_b32 s{S_T0}, s{S_T0}, 7")
        e(f"s_and_b32 s{S_T1}, s{S_WAVE}, 3")
        e(f"s_lshl_b32 s{S_T1}, s{S_T1}, 2")
        e(f"s_add_u32 s{S_T0}, s{S_T0}, s{S_T1}")
        e(f"v_and_b32 v{V_T2}, 7, v{V_N}")
        e(f"v_lshlrev_b32 v{V_T0}, 4, v{V_T2}")
        e(f"v_add_u32 v{V_T0}, s{S_T0}, v{V_T0}")
        e(f"ds_write_b32 v{V_T0}, v{V_MC} offset:{LDS_ML}")
        e(f"ds_write_b32 v{V_T0}, v{V_L} offset:{LDS_ML+256}")
        e(f"v_mul_u32_u24 v{V_T0}, {OP_ROW}, v{V_T2}")
        e(f"v_lshrrev_b32 v{V_T1}, 3, v{V_N}")
        e(f"v_lshl_add_u32 v{V_T1}, v{V_G}, 1, v{V_T1}")
        e(f"v_lshl_add_u32 v{V_T0}, v{V_T1}, 6, v{V_T0}")
        e(f"s_mul_i32 s{S_T0}, s{S_WAVE}, {8*OP_ROW}")
        e(f"v_add_u32 v{V_WOFF}, s{S_T0}, v{V_T0}")
        e(f"v_mul_u32_u24 v{V_WOFF2}, {R9_ROW}, v{V_T2}")
        e(f"v_lshl_add_u32 v{V_WOFF2}, v{V_T1}, 5, v{V_WOFF2}")
        e(f"s_mul_i32 s{S_T0}, s{S_WAVE}, {8*R9_ROW}")
        e(f"v_add_u32 v{V_WOFF2}, s{S_T0}, v{V_WOFF2}")
        e(f"v_mul_u32_u24 v{V_PARK}, 2304, v{V_T2}")
        e(f"v_lshl_add_u32 v{V_PARK}, v{V_T1}, 5, v{V_PARK}")
        e(f"s_lshl_b32 s{S_T0}, s{S_WAVE}, 8")
        e(f"v_add_u32 v{V_PARK}, s{S_T0}, v{V_PARK}")
        e(f"v_mul_u32_u24 v{V_T1}, {OB_ROW}, v{V_T2}")
        e(f"v_lshrrev_b32 v{V_T2}, 3, v{V_N}")
        e(f"v_lshlrev_b32 v{V_T2}, 4, v{V_T2}")
        e(f"v_lshl_add_u32 v{V_T2}, v{V_G}, 2, v{V_T2}")
        e(f"v_lshl_add_u32 v{V_VOFF}, v{V_T2}, 2, v{V_T1}")
        e(f"s_lshl_b32 s{S_T2}, s{S_WAVE}, 6")
        e(f"v_lshl_add_u32 v{V_T7}, v{V_T2}, 1, v{V_T1}")
        e(f"v_add_u32 v{V_T7}, s{S_T2}, v{V_T7}")
        e(f"v_lshrrev_b32 v{V_T1}, 5, v0")
        e(f"s_and_b32 s{S_T1}, s{S_WAVE}, 3")
        e(f"s_lshl_b32 s{S_T1}, s{S_T1}, 1")
        e(f"v_add_u32 v{V_T1}, s{S_T1}, v{V_T1}")
        e(f"v_and_b32 v{V_T2}, 31, v0")
        e(f"v_mul_u32_u24 v{V_XOFF}, {OP_ROW}, v{V_T1}")
        e(f"v_lshl_add_u32 v{V_XOFF}, v{V_T2}, 4, v{V_XOFF}")
        e(f"s_lshr_b32 s{S_T0}, s{S_WAVE}, 2")
        e(f"s_mul_i32 s{S_T2}, s{S_T0}, {32*OP_ROW}")
        e(f"v_add_u32 v{V_XOFF}, s{S_T2}, v{V_XOFF}")
        e(f"s_lshl_b32 s{S_T2}, s{S_T0}, 7")
        e(f"v_lshlrev_b32 v{V_XOFF2}, 4, v{V_T1}")
        e(f"v_add_u32 v{V_XOFF2}, s{S_T2}, v{V_XOFF2}")
        e(f"v_and_b32 v{V_T0}, 3, v{V_T1}")
        e(f"s_lshl_b32 s{S_T2}, s{S_T0}, 2")
        e(f"v_add_u32 v{V_T0}, s{S_T2}, v{V_T0}")
        e(f"v_mul_u32_u24 v{V_T0}, {OB_ROW}, v{V_T0}")
        e(f"v_lshrrev_b32 v{V_T1}, 2, v{V_T1}")
        e(f"v_lshl_add_u32 v{V_T0}, v{V_T1}, 8, v{V_T0}")
        e(f"v_lshl_add_u32 v{V_KOFF}, v{V_T2}, 3, v{V_T0}")
        e("s_waitcnt lgkmcnt(0)")
        e(f"s_mul_i32 s{S_T0}, s{S_WAVE}, {R9_ROW}")
        e(f"v_lshlrev_b32 v{V_T1}, 2, v0")
        e(f"v_add_u32 v{V_MC}, s{S_T0}, v{V_T1}")
        e(f"s_mul_i32 s{S_T0}, s{S_WAVE}, 2304")
        e(f"s_add_u32 s{S_T0}, s{S_T0}, 2048")
        e(f"v_add_u32 v{V_L}, s{S_T0}, v{V_T1}")

    stamp()
    e.label("L_loop")
    tile(False)
    e(f"s_add_u32 s{S_OFF}, s{S_OFF}, 0x8000")
    e(f"s_add_u32 s{S_IT}, s{S_IT}, 1")
    for s_ in range(1, 15):
        e(f"s_cmp_eq_u32 s{S_IT}, {s_}")
        e(f"s_cbranch_scc1 L_snip{s_}")
    stamp()
    tile(True)

    e("s_nop 7")
    for ee in range(2):
        for i in range(8):
            e(f"v_cndmask_b32 v{VB+ee*8+i}, v{OA+4*i+ee}, v{OA+4*i+2+ee}, s[{S_MASK}:{S_MASK+1}]")
    for x_ in range(4):
        e(f"ds_write_b128 v{V_WOFF}, {vr(VB+4*x_,4)} offset:{LDS_OP+16*x_}")
    e("s_waitcnt lgkmcnt(0)")
    stamp()
    e("s_barrier")
    MM, LL, OO = QF, QF+4, OA
    e(f"ds_read_b128 {vr(MM,4)}, v{V_XOFF2} offset:{LDS_ML}")
    e(f"ds_read_b128 {vr(LL,4)}, v{V_XOFF2} offset:{LDS_ML+256}")
    for p in range(4):
        e(f"ds_read_b128 {vr(OO+4*p,4)}, v{V_XOFF} offset:{LDS_OP+p*8*OP_ROW}")
    e("s_waitcnt lgkmcnt(4)")
    e(f"v_max3_f32 v{V_T0}, v{MM}, v{MM+1}, v{MM+2}")
    e(f"v_max_f32 v{V_T0}, v{V_T0}, v{MM+3}")
    for p in range(4):
        e(f"v_sub_f32 v{MM+p}, v{MM+p}, v{V_T0}")
    for p in range(4):
        e(f"v_exp_f32 v{MM+p}, v{MM+p}")
    e("s_nop 0")
    e(f"v_mul_f32 v{V_T0}, v{MM}, v{LL}")
    for p in range(1, 4):
        e(f"v_fmac_f32 v{V_T0}, v{MM+p}, v{LL+p}")
    e(f"v_rcp_f32 v{V_T0}, v{V_T0}")
    e("s_nop 0")
    for p in range(4):
        e(f"v_mul_f32 v{MM+p}, v{MM+p}, v{V_T0}")
    e("s_waitcnt lgkmcnt(0)")
    for i in range(4):
        e(f"v_mul_f32 v{OO+i}, v{OO+i}, v{MM}")
    for p in range(1, 4):
        for i in range(4):
            e(f"v_fmac_f32 v{OO+i}, v{OO+4*p+i}, v{MM+p}")
    e(f"v_cvt_pk_bf16_f32 v{PP}, v{OO}, v{OO+1}")
    e(f"v_cvt_pk_bf16_f32 v{PP+1}, v{OO+2}, v{OO+3}")
    e(f"ds_write_b64 v{V_KOFF}, {vr(PP,2)} offset:{LDS_OB}")
    e("s_waitcnt lgkmcnt(0)")
    e("s_barrier")
    stamp()
    e(f"ds_read_b64 {vr(PP,2)}, v{V_T7} offset:{LDS_OB}")
    for u in range(4):
        e(f"ds_read_b128 {vr(QF+4*u,4)}, v{V_VOFF} offset:{LDS_OB+u*128}")
    e("s_waitcnt lgkmcnt(4)")
    for i in range(8):
        e(f"v_mfma_f32_16x16x16_bf16 {vr(VB+4*i,4)}, {vr(W9+2*i,2)}, {vr(PP,2)}, 0")
    ubuf = [WP, WP+32, WP+64, KB]
    for u in range(4):
        e(f"s_waitcnt lgkmcnt({3-u})" if u < 2 else "s_waitcnt lgkmcnt(2)")
        for i in range(8):
            cc = "0" if u == 0 else vr(OA+4*i, 4)
            e(f"v_mfma_f32_16x16x32_bf16 {vr(OA+4*i,4)}, {vr(ubuf[u]+4*i,4)}, {vr(QF+4*u,4)}, {cc}")
        if u == 1:
            e("s_waitcnt lgkmcnt(0)")
            merge(VB, ST)
            e(f"ds_write_b128 v{V_WOFF2}, {vr(ST,4)} offset:{LDS_R9}")
            e(f"ds_write_b128 v{V_WOFF2}, {vr(ST+4,4)} offset:{LDS_R9+16}")
    e("s_waitcnt lgkmcnt(0)")
    e("s_barrier")
    for w_ in range(8):
        e(f"ds_read_b32 v{VB+w_}, v{V_MC} offset:{LDS_R9+w_*8*R9_ROW}")
    merge(OA, W9+8)
    e(f"buffer_store_dwordx4 {vr(W9+8,4)}, v{V_PARK}, s[{S_WS}:{S_WS+3}], 0 offen")
    e(f"buffer_store_dwordx4 {vr(W9+12,4)}, v{V_PARK}, s[{S_WS}:{S_WS+3}], 0 offen offset:16")
    e("s_waitcnt lgkmcnt(0)")
    e(f"v_add_f32 v{VB}, v{VB}, v{VB+1}")
    e(f"v_add_f32 v{VB+2}, v{VB+2}, v{VB+3}")
    e(f"v_add_f32 v{VB+4}, v{VB+4}, v{VB+5}")
    e(f"v_add_f32 v{VB+6}, v{VB+6}, v{VB+7}")
    e(f"v_add_f32 v{VB}, v{VB}, v{VB+2}")
    e(f"v_add_f32 v{VB+4}, v{VB+4}, v{VB+6}")
    e(f"v_add_f32 v{VB}, v{VB}, v{VB+4}")
    e(f"buffer_store_dword v{VB}, v{V_L}, s[{S_WS}:{S_WS+3}], 0 offen")
    if stamps:
        stamp()
        e("s_waitcnt vmcnt(0)")
        stamp()
        e(f"s_add_u32 s{S_WS}, s42, 0x800000")
        e(f"s_addc_u32 s{S_WS+1}, s43, 0")
        e(f"s_mov_b32 s{S_WS+2}, 0x100000")
        e(f"s_lshl_b32 s{S_T0}, s2, 3")
        e(f"s_add_u32 s{S_T0}, s{S_T0}, s{S_WAVE}")
        e(f"s_lshl_b32 s{S_T0}, s{S_T0}, 6")
        e(f"s_getreg_b32 s{S_T1}, hwreg(HW_REG_XCC_ID)")
        e(f"s_getreg_b32 s{S_T2}, hwreg(HW_REG_HW_ID)")
        e("v_mov_b32 v1, 0")
        for i in range(nst[0]):
            e(f"v_mov_b32 v2, s{64+2*i}")
            e(f"buffer_store_dword v2, v1, s[{S_WS}:{S_WS+3}], s{S_T0} offen offset:{4*i}")
        e(f"v_mov_b32 v2, s{S_T1}")
        e(f"buffer_store_dword v2, v1, s[{S_WS}:{S_WS+3}], s{S_T0} offen offset:56")
        e(f"v_mov_b32 v2, s{S_T2}")
        e(f"buffer_store_dword v2, v1, s[{S_WS}:{S_WS+3}], s{S_T0} offen offset:60")
    e.label("L_end")
    e("s_endpgm")
    for s_ in range(1, 15):
        e.label(f"L_snip{s_}")
        snippet(s_)
        e("s_branch L_loop")

    e.raw(".globl reduce_kernel\n.p2align 8\n.type reduce_kernel,@function\nreduce_kernel:")
    e("s_cmp_ge_u32 s2, 72")
    e("s_cbranch_scc1 L_rend")
    if stamps:
        e("s_memrealtime s[16:17]")
    e("s_load_dwordx2 s[4:5], s[0:1], 56")
    e("s_load_dwordx2 s[8:9], s[0:1], 40")
    e("s_lshl_b32 s3, s2, 8")
    e("v_add_u32 v0, s3, v0")
    e("v_lshlrev_b32 v1, 4, v0")
    e("v_lshlrev_b32 v2, 3, v0")
    e(f"s_mov_b32 s6, {16*294912}")
    e("s_mov_b32 s7, 0x00020000")
    e(f"s_mov_b32 s10, {128*1152}")
    e("s_mov_b32 s11, 0x00020000")
    e("s_waitcnt lgkmcnt(0)")
    for h in range(16):
        e(f"s_mov_b32 s12, {h*294912}")
        e(f"buffer_load_dwordx4 {vr(4+4*h,4)}, v1, s[4:7], s12 offen")
    for h in range(1, 16):
        e(f"s_waitcnt vmcnt({15-h})")
        e(f"v_pk_add_f32 v[4:5], v[4:5], {vr(4+4*h,2)}")
        e(f"v_pk_add_f32 v[6:7], v[6:7], {vr(6+4*h,2)}")
    e("v_cvt_pk_bf16_f32 v4, v4, v5")
    e("v_cvt_pk_bf16_f32 v5, v6, v7")
    e("buffer_store_dwordx2 v[4:5], v2, s[8:11], 0 offen")
    if stamps:
        e("s_waitcnt vmcnt(0)")
        e("s_memrealtime s[18:19]")
        e("s_waitcnt lgkmcnt(0)")
        e("s_add_u32 s4, s4, 0x900000")
        e("s_addc_u32 s5, s5, 0")
        e("s_lshl_b32 s12, s2, 3")
        e("v_mov_b32 v1, 0")
        e("v_mov_b32 v2, s16")
        e("v_mov_b32 v3, s18")
        e("buffer_store_dwordx2 v[2:3], v1, s[4:7], s12 offen")
    e.label("L_rend")
    e("s_endpgm")

    e.raw('.section .rodata,"a"')
    for kn, nv, ns in (("attn_kernel", 256, 96), ("reduce_kernel", 72, 24)):
        e.raw(f""".p2align 6
.amdhsa_kernel {kn}
  .amdhsa_next_free_vgpr {nv}
  .amdhsa_next_free_sgpr {ns}
  .amdhsa_accum_offset {nv}
  .amdhsa_group_segment_fixed_size 0
  .amdhsa_kernarg_size 64
  .amdhsa_user_sgpr_count 2
  .amdhsa_user_sgpr_kernarg_segment_ptr 1
  .amdhsa_system_sgpr_workgroup_id_x 1
.end_amdhsa_kernel""")
    open(name, "w").write(e.text())

if __name__ == "__main__":
    gen("k2.s")
    gen("k2_st.s", stamps=True)
    gen("k2_st_before.s", stamps=True, korder="before")
    gen("k2_st_after.s", stamps=True, korder="after")
    gen("k2_st_norot.s", stamps=True, rot=False)
    gen("k2_st_wodef.s", stamps=True, wopol="")
```

```python
from gen2 import gen
gen("k2n_a.s", korder="after", wpol="nt", wopol="")
gen("k2n_b.s", korder="after", wpol="", wopol="nt")
gen("k2n_c.s", korder="after", wpol="", wopol="")
gen("k2n_d.s", korder="after", wpol="", wopol="", pol="")
gen("k2n_e.s", korder="after", wpol="sc1", wopol="sc1")
gen("k2n_f.s", korder="after", pol="sc1 nt")
```

```python
def dbgdump(e, n, S_WAVE, S_T0):
    e(f"s_and_b32 s{S_T0}, s{S_WAVE}, 3")
    e(f"s_cmp_lg_u32 s{S_T0}, 0")
    e("s_cbranch_scc1 L_end")
    e("s_load_dwordx2 s[28:29], s[0:1], 48")
    e("s_mov_b32 s30, 256")
    e("s_mov_b32 s31, 0x00020000")
    e("s_mov_b64 exec, 1")
    e("v_mov_b32 v1, 0")
    e("s_waitcnt lgkmcnt(0)")
    e(f"s_not_b32 s{S_T0}, s64")
    e(f"v_mov_b32 v2, s{S_T0}")
    e("buffer_atomic_umax v2, v1, s[28:31], 0 offen offset:0 sc1")
    e("v_mov_b32 v3, s64")
    e("buffer_atomic_umax v3, v1, s[28:31], 0 offen offset:4 sc1")
    e(f"v_mov_b32 v4, s{64+2*(n-1)}")
    e("buffer_atomic_umax v4, v1, s[28:31], 0 offen offset:8 sc1")
    e(f"v_mov_b32 v5, s{64+2*7}")
    e("buffer_atomic_umax v5, v1, s[28:31], 0 offen offset:60 sc1")
    e(f"s_mul_i32 s{S_T0}, s{S_WAVE}, 6")
    e(f"v_mov_b32 v1, s{S_T0}")
    for j, i in enumerate([2, 4, 5, 7, n-3, n-1]):
        e(f"s_sub_u32 s{S_T0}, s{64+2*i}, s64")
        e(f"v_mov_b32 v{6+j}, s{S_T0}")
        e(f"buffer_atomic_add v{6+j}, v1, s[28:31], 0 offen offset:{12+4*j} sc1")
```

```python
import sys, math

HEADER = """; Kernarg layout for this problem (64 bytes, ptrs only, base s[0:1]):
"""

class E:
    def __init__(self):
        self.l = []
    def __call__(self, s):
        self.l.append("  " + s)
    def label(self, s):
        self.l.append(s + ":")
    def raw(self, s):
        self.l.append(s)
    def text(self):
        return "\n".join(self.l) + "\n"

def vr(a, n=1):
    return f"v{a}" if n == 1 else f"v[{a}:{a+n-1}]"

V_LANE, V_KOFF, V_VOFF, V_WOFF, V_WOFF2, V_XOFF, V_XOFF2, V_T7 = 0, 1, 2, 3, 4, 5, 6, 7
V_MC, V_L, V_AL, V_T0, V_T1, V_T2, V_N, V_G = 8, 9, 10, 11, 12, 13, 14, 15
QF, OA, KB, VB, WP, W9, ST, PP, XT = 16, 32, 64, 96, 128, 224, 240, 248, 252
S_K, S_V, S_WQ, S_X, S_WO, S_WS = 8, 12, 16, 20, 24, 28
S_WAVE, S_HKV, S_BP = 3, 44, 45
S_LO, S_HI, S_C = 46, 47, 48
S_IT, S_OFF, S_T0, S_T1, S_T2, S_T3 = 49, 50, 51, 52, 53, 54
S_BURST = 55
S_MASK = 56

QP_ROW = 256 * 4 + 16
LDS_QP = 0
OP_ROW = 128 * 4 + 16
LDS_OP = 0
LDS_ML = 33792
LDS_OB = LDS_ML + 512
OB_ROW = 512 + 16
LDS_R9 = LDS_OB + 8 * OB_ROW
R9_ROW = 256 + 16
LDS_QP = LDS_R9 + 64 * R9_ROW
LDS_TOTAL = LDS_QP + 16 * QP_ROW

def gen(name, pol="nt", order="mix", stamps=False, nh=2, wpol="", wqpat="cur"):
    e = E()
    nst = [0]
    def stamp():
        if not stamps: return
        i = nst[0]; nst[0] += 1
        e(f"s_memrealtime s[{64+2*i}:{65+2*i}]")
        e("s_waitcnt lgkmcnt(0)")
    e.raw(HEADER.rstrip("\n"))
    e.raw(f"; @launch kernel=attn_kernel grid=(256,1,1) block=(512,1,1) lds={LDS_TOTAL}")
    e.raw(f"; @launch kernel=reduce_kernel grid=(72,1,1) block=(256,1,1) lds=0")
    e.raw('.amdgcn_target "amdgcn-amd-amdhsa--gfx950"')
    e.raw(".text")
    e.raw(".globl attn_kernel\n.p2align 8\n.type attn_kernel,@function\nattn_kernel:")
    e("s_cmp_ge_u32 s2, 256")
    e("s_cbranch_scc1 L_end")
    stamp()
    e("s_load_dwordx8 s[32:39], s[0:1], 0")
    e("s_load_dwordx2 s[40:41], s[0:1], 32")
    e("s_load_dwordx2 s[42:43], s[0:1], 56")
    e("v_lshrrev_b32 v1, 6, v0")
    e("v_and_b32 v0, 63, v0")
    e(f"v_readfirstlane_b32 s{S_WAVE}, v1")
    e(f"v_and_b32 v{V_N}, 15, v0")
    e(f"v_lshrrev_b32 v{V_G}, 4, v0")
    lnh = nh.bit_length() - 1
    e(f"s_and_b32 s{S_T0}, s2, {16//nh - 1 if nh > 1 else 7}")
    e(f"s_lshl_b32 s{S_HKV}, s{S_T0}, {lnh}")
    e(f"s_lshr_b32 s{S_T1}, s2, 3")
    e(f"s_and_b32 s{S_T0}, s{S_T1}, {nh-1}")
    e(f"s_add_u32 s{S_HKV}, s{S_HKV}, s{S_T0}")
    e(f"s_lshr_b32 s{S_BP}, s{S_T1}, {lnh}")
    e(f"s_and_b32 s{S_T0}, s2, 7")
    e(f"s_lshr_b32 s{S_T0}, s{S_T0}, {4-lnh}")
    e(f"s_lshl_b32 s{S_T0}, s{S_T0}, {5-lnh}")
    e(f"s_add_u32 s{S_BP}, s{S_BP}, s{S_T0}")
    e(f"s_mov_b32 s{S_LO}, 0x05040100")
    e(f"s_mov_b32 s{S_HI}, 0x07060302")
    c = math.log2(math.e) / math.sqrt(128.0)
    import struct
    cbits = struct.unpack("<I", struct.pack("<f", c))[0]
    e(f"s_mov_b32 s{S_C}, 0x{cbits:08x}")
    e(f"s_mov_b32 s{S_MASK}, 0xff00ff00")
    e(f"s_mov_b32 s{S_MASK+1}, 0xff00ff00")
    e(f"v_lshrrev_b32 v{V_T0}, 2, v{V_N}")
    e(f"v_lshlrev_b32 v{V_T0}, 11, v{V_T0}")
    e(f"v_and_b32 v{V_T1}, 3, v{V_N}")
    e(f"v_lshlrev_b32 v{V_T1}, 8, v{V_T1}")
    e(f"v_lshlrev_b32 v{V_T2}, 4, v{V_G}")
    e(f"v_add3_u32 v{V_KOFF}, v{V_T0}, v{V_T1}, v{V_T2}")
    e(f"v_lshlrev_b32 v{V_T0}, 11, v{V_G}")
    e(f"v_lshl_add_u32 v{V_VOFF}, v{V_N}, 4, v{V_T0}")
    e(f"v_lshrrev_b32 v{V_T0}, 2, v{V_N}")
    e(f"v_lshlrev_b32 v{V_T0}, 5, v{V_T0}")
    e(f"v_and_b32 v{V_T1}, 1, v{V_N}")
    e(f"v_lshl_add_u32 v{V_T7}, v{V_T1}, 4, v{V_T0}")
    e(f"v_bfe_u32 v{V_T2}, v{V_N}, 1, 1")
    e(f"v_lshlrev_b32 v{V_T0}, 4, v{V_T2}")
    e(f"v_lshl_add_u32 v{V_T0}, v{V_G}, 2, v{V_T0}")
    e(f"v_lshl_add_u32 v{V_WOFF2}, v{V_T0}, 13, v{V_T7}")
    e(f"v_lshl_add_u32 v{V_WOFF}, v{V_T0}, 14, v{V_T7}")
    e(f"v_and_b32 v{V_T1}, 7, v{V_N}")
    e(f"v_mul_u32_u24 v{V_T1}, 1152, v{V_T1}")
    e(f"v_lshrrev_b32 v{V_T2}, 3, v{V_N}")
    e(f"v_lshlrev_b32 v{V_T2}, 4, v{V_T2}")
    e(f"v_lshl_add_u32 v{V_T2}, v{V_G}, 2, v{V_T2}")
    e(f"v_lshl_add_u32 v{V_XOFF2}, v{V_T2}, 1, v{V_T1}")
    e(f"v_lshl_add_u32 v{V_XOFF}, v{V_T2}, 2, v{V_T1}")
    if wqpat == "adj":
        e(f"v_bfe_u32 v{V_T2}, v{V_N}, 1, 1")
        e(f"v_lshl_add_u32 v{V_T0}, v{V_T2}, 2, v{V_G}")
        e(f"v_lshl_add_u32 v{V_WOFF}, v{V_T0}, 13, v{V_T7}")
        e(f"v_mov_b32 v{V_WOFF2}, v{V_WOFF}")
    elif wqpat == "lin":
        e(f"v_lshlrev_b32 v{V_WOFF}, 4, v0")
        e(f"v_mov_b32 v{V_WOFF2}, v{V_WOFF}")
    e(f"s_lshr_b32 s{S_T0}, s{S_WAVE}, 2")
    e(f"s_lshl_b32 s{S_T1}, s{S_BP}, 1")
    e(f"s_add_u32 s{S_T0}, s{S_T0}, s{S_T1}")
    e(f"s_lshl_b32 s{S_T0}, s{S_T0}, 4")
    e(f"s_add_u32 s{S_T0}, s{S_T0}, s{S_HKV}")
    e(f"s_lshl_b32 s{S_T0}, s{S_T0}, 19")
    e(f"s_and_b32 s{S_T1}, s{S_WAVE}, 3")
    e(f"s_lshl_b32 s{S_T1}, s{S_T1}, 13")
    e(f"s_add_u32 s{S_T0}, s{S_T0}, s{S_T1}")
    e(f"s_sub_u32 s{S_K+2}, 0x80000, s{S_T1}")
    e(f"s_mov_b32 s{S_V+2}, s{S_K+2}")
    e(f"s_mov_b32 s{S_K+3}, 0x00020000")
    e(f"s_mov_b32 s{S_V+3}, 0x00020000")
    e(f"s_mov_b32 s{S_WQ+3}, 0x00020000")
    e(f"s_mov_b32 s{S_X+3}, 0x00020000")
    e(f"s_mov_b32 s{S_WO+3}, 0x00020000")
    e(f"s_mov_b32 s{S_WS+3}, 0x00020000")
    e(f"s_and_b32 s{S_T1}, s{S_WAVE}, 1")
    e(f"s_mul_i32 s{S_T2}, s{S_T1}, {288*8192}")
    e(f"s_lshl_b32 s{S_T3}, s{S_HKV}, 9")
    e(f"s_add_u32 s{S_T2}, s{S_T2}, s{S_T3}")
    e(f"s_lshr_b32 s{S_T3}, s{S_WAVE}, 1")
    e(f"s_lshl_b32 s{S_T3}, s{S_T3}, 7")
    e(f"s_add_u32 s{S_T2}, s{S_T2}, s{S_T3}")
    if wqpat == "lin":
        e(f"s_mul_i32 s{S_T2}, s{S_HKV}, {256*1152}")
        e(f"s_mul_i32 s{S_T3}, s{S_WAVE}, {36*1024}")
        e(f"s_add_u32 s{S_T2}, s{S_T2}, s{S_T3}")
    e(f"s_sub_u32 s{S_WQ+2}, {576*8192}, s{S_T2}")
    e(f"s_mul_i32 s{S_T1}, s{S_T1}, 576")
    e(f"s_mul_i32 s{S_T3}, s{S_BP}, {8*1152}")
    e(f"s_add_u32 s{S_T1}, s{S_T1}, s{S_T3}")
    e(f"s_sub_u32 s{S_X+2}, {128*1152}, s{S_T1}")
    e("s_waitcnt lgkmcnt(0)")
    e(f"s_add_u32 s{S_X}, s32, s{S_T1}")
    e(f"s_addc_u32 s{S_X+1}, s33, 0")
    e(f"s_add_u32 s{S_WQ}, s38, s{S_T2}")
    e(f"s_addc_u32 s{S_WQ+1}, s39, 0")
    e(f"s_add_u32 s{S_K}, s34, s{S_T0}")
    e(f"s_addc_u32 s{S_K+1}, s35, 0")
    e(f"s_add_u32 s{S_V}, s36, s{S_T0}")
    e(f"s_addc_u32 s{S_V+1}, s37, 0")

    stamp()
    def ld_x():
        L = []
        for u in range(4):
            L.append([f"buffer_load_dwordx4 {vr(QF+4*u,4)}, v{V_XOFF}, s[{S_X}:{S_X+3}], 0 offen offset:{u*128}"])
        L.append([f"buffer_load_dwordx2 {vr(PP,2)}, v{V_XOFF2}, s[{S_X}:{S_X+3}], 0 offen offset:512"])
        return L
    wqbuf = [VB, WP, WP+32, WP+64]
    def ld_wq(u):
        L = []
        for t in range(8):
            so = {"cur": (u*64+t)*8192, "adj": (u*64+t*8)*8192, "lin": (u*8+t)*1024}[wqpat]
            L.append([f"s_mov_b32 s{S_OFF}, {so}",
                      f"buffer_load_dwordx4 {vr(wqbuf[u]+4*t,4)}, v{V_WOFF}, s[{S_WQ}:{S_WQ+3}], s{S_OFF} offen {wpol}"])
        return L
    def ld_wq_half():
        L = []
        for t in range(4):
            so = {"cur": (256+t)*8192, "adj": (256+t*8)*8192, "lin": (32+t)*1024}[wqpat]
            L.append([f"s_mov_b32 s{S_OFF}, {so}",
                      f"buffer_load_dwordx4 {vr(W9+4*t,4)}, v{V_WOFF2}, s[{S_WQ}:{S_WQ+3}], s{S_OFF} offen {wpol}"])
        return L
    def ld_k(soff):
        return [[f"buffer_load_dwordx4 {vr(KB+(sub*4+j)*4,4)}, v{V_KOFF}, s[{S_K}:{S_K+3}], {soff} offen offset:{sub*1024+j*64} {pol}"]
                for sub in range(2) for j in range(4)]
    def ld_v(soff):
        return [[f"buffer_load_dwordx4 {vr(VB+t*4,4)}, v{V_VOFF}, s[{S_V}:{S_V+3}], {soff} offen offset:{t*256} {pol}"]
                for t in range(8)]

    seq = []
    for l in ld_x(): seq.append(("x", l))
    W = []
    for u in range(4):
        for l in ld_wq(u): W.append((f"u{u}", l))
    for l in ld_wq_half(): W.append(("h", l))
    K = [("k", l) for l in ld_k("0")]
    if order == "mix":
        ki = 0
        for i, w in enumerate(W):
            seq.append(w)
            if (i % 4 == 3 or False) and ki < 8 and i < 32:
                seq.append(K[ki]); ki += 1
        assert ki == 8
    elif order == "kfirst":
        seq += K + W
    elif order == "klast":
        seq += W + K
    elif order == "bar":
        K[0] = ("k", ["s_barrier"] + K[0][1])
        seq += W + K
    issued = []
    for tag, lines in seq:
        for l in lines: e(l)
        issued.append(tag)
    def wait_for(tags):
        last = max(i for i, t in enumerate(issued) if t in tags)
        n = len(issued) - 1 - last
        e(f"s_waitcnt vmcnt({n})")

    stamp()
    e(f"s_mul_i32 s{S_T0}, s{S_HKV}, {256*1152}")
    e(f"s_add_u32 s{S_WO}, s40, s{S_T0}")
    e(f"s_addc_u32 s{S_WO+1}, s41, 0")
    e(f"s_mov_b32 s{S_WO+2}, {256*1152}")
    e(f"s_mul_i32 s{S_T0}, s{S_HKV}, {128*2304}")
    e(f"s_mul_i32 s{S_T1}, s{S_BP}, {8*2304}")
    e(f"s_add_u32 s{S_T0}, s{S_T0}, s{S_T1}")
    e(f"s_add_u32 s{S_WS}, s42, s{S_T0}")
    e(f"s_addc_u32 s{S_WS+1}, s43, 0")
    e(f"s_mov_b32 s{S_WS+2}, {8*2304}")

    def unit_mma(buf, bfrag, acc, first):
        def perms(i):
            w_, h = i >> 1, i & 1
            sel = S_HI if h else S_LO
            T = ST + (i & 1) * 4
            for u_ in range(4):
                e(f"v_perm_b32 v{T+u_}, v{buf+(2*u_+1)*4+w_}, v{buf+(2*u_)*4+w_}, s{sel}")
        perms(0)
        for i in range(8):
            if i + 1 < 8:
                perms(i + 1)
            else:
                e("s_nop 1")
            T = ST + (i & 1) * 4
            cc = "0" if first else vr(acc+4*i, 4)
            e(f"v_mfma_f32_16x16x32_bf16 {vr(acc+4*i,4)}, {vr(T,4)}, {vr(bfrag,4)}, {cc}")
    def half_mma(buf, bfrag, acc, first):
        def perms(i):
            w_, h = i >> 1, i & 1
            sel = S_HI if h else S_LO
            T = ST + (i & 3) * 2
            for u_ in range(2):
                e(f"v_perm_b32 v{T+u_}, v{buf+(2*u_+1)*4+w_}, v{buf+(2*u_)*4+w_}, s{sel}")
        perms(0)
        for i in range(8):
            if i + 1 < 8:
                perms(i + 1)
            else:
                e("s_nop 1")
            T = ST + (i & 3) * 2
            cc = "0" if first else vr(acc+4*i, 4)
            e(f"v_mfma_f32_16x16x16_bf16 {vr(acc+4*i,4)}, {vr(T,2)}, {vr(bfrag,2)}, {cc}")
    def merge(acc, dst):
        for i in range(8):
            a = acc + 4*i
            e(f"v_add_f32_dpp v{dst+i}, v{a+2}, v{a} row_ror:8 row_mask:0xf bank_mask:0x3")
            e(f"v_add_f32_dpp v{dst+i}, v{a+1}, v{a+3} row_ror:8 row_mask:0xf bank_mask:0xc")

    wait_for(["x", "u0"])
    stamp()
    unit_mma(wqbuf[0], QF+0, OA, True)
    for l in ld_v("0"):
        for x_ in l: e(x_)
        issued.append("v")
    for u in range(1, 4):
        wait_for([f"u{u}"])
        unit_mma(wqbuf[u], QF+4*u, OA, False)
    wait_for(["h"])
    stamp()
    e("s_nop 4")
    half_mma(W9, PP, OA, False)
    e("s_nop 7")
    e("s_nop 1")
    merge(OA, WP)
    e(f"v_and_b32 v{V_T0}, 7, v{V_N}")
    e(f"v_mul_u32_u24 v{V_T0}, {QP_ROW}, v{V_T0}")
    e(f"v_lshrrev_b32 v{V_T1}, 3, v{V_N}")
    e(f"v_lshl_add_u32 v{V_T1}, v{V_G}, 1, v{V_T1}")
    e(f"v_lshl_add_u32 v{V_T0}, v{V_T1}, 5, v{V_T0}")
    e(f"s_and_b32 s{S_T0}, s{S_WAVE}, 1")
    e(f"s_mul_i32 s{S_T0}, s{S_T0}, {8*QP_ROW}")
    e(f"s_lshr_b32 s{S_T1}, s{S_WAVE}, 1")
    e(f"s_lshl_b32 s{S_T1}, s{S_T1}, 8")
    e(f"s_add_u32 s{S_T0}, s{S_T0}, s{S_T1}")
    e(f"v_add_u32 v{V_T0}, s{S_T0}, v{V_T0}")
    e(f"ds_write_b128 v{V_T0}, {vr(WP,4)} offset:{LDS_QP}")
    e(f"ds_write_b128 v{V_T0}, {vr(WP+4,4)} offset:{LDS_QP+16}")
    e(f"v_and_b32 v{V_T1}, 3, v{V_N}")
    e(f"v_mul_u32_u24 v{V_T1}, {QP_ROW}, v{V_T1}")
    e(f"v_bfe_u32 v{V_T2}, v{V_N}, 2, 1")
    e(f"v_lshl_add_u32 v{V_T1}, v{V_T2}, 9, v{V_T1}")
    e(f"v_lshl_add_u32 v{V_T1}, v{V_G}, 5, v{V_T1}")
    e(f"s_lshr_b32 s{S_T0}, s{S_WAVE}, 2")
    e(f"s_mul_i32 s{S_T0}, s{S_T0}, {4*QP_ROW}")
    e(f"v_add_u32 v{V_T1}, s{S_T0}, v{V_T1}")
    e("s_waitcnt lgkmcnt(0)")
    e("s_barrier")
    for j in range(4):
        for ee in range(2):
            for h in range(2):
                e(f"ds_read_b128 {vr(WP+j*16+ee*8+h*4,4)}, v{V_T1} offset:{LDS_QP+ee*8*QP_ROW+j*128+h*16}")
    for i in range(32):
        e(f"v_mov_b32 v{OA+i}, 0")
    e(f"v_mov_b32 v{V_MC}, 0xf149f2ca")
    e(f"v_mov_b32 v{XT}, 0xf149f2ca")
    e(f"v_mov_b32 v{V_L}, 0")
    e(f"v_bfe_u32 v{V_T2}, v{V_N}, 1, 1")
    e(f"v_lshlrev_b32 v{V_T0}, 4, v{V_T2}")
    e(f"v_lshl_add_u32 v{V_T0}, v{V_G}, 2, v{V_T0}")
    e(f"v_mul_u32_u24 v{V_T0}, 1152, v{V_T0}")
    e(f"s_lshl_b32 s{S_T0}, s{S_WAVE}, 7")
    e(f"v_lshl_add_u32 v{V_WOFF}, v{V_T0}, 1, v{V_T7}")
    e(f"v_add_u32 v{V_WOFF}, s{S_T0}, v{V_WOFF}")
    e(f"s_mul_i32 s{S_T0}, s{S_WAVE}, {32*1152}")
    e(f"s_add_u32 s{S_T0}, s{S_T0}, 1024")
    e(f"v_add3_u32 v{V_WOFF2}, v{V_T0}, v{V_T7}, s{S_T0}")
    for j in range(4):
        e(f"s_waitcnt lgkmcnt({12-4*j})")
        for i in range(8):
            e(f"v_add_f32 v{WP+j*16+i}, v{WP+j*16+i}, v{WP+j*16+8+i}")
        for i in range(4):
            e(f"v_cvt_pk_bf16_f32 v{QF+j*4+i}, v{WP+j*16+2*i}, v{WP+j*16+2*i+1}")
    e(f"s_mov_b32 s{S_IT}, 0")
    e(f"s_mov_b32 s{S_OFF}, 0x8000")
    e(f"s_add_u32 s{S_BURST}, s{S_WAVE}, 3")

    def ld_wo(u, buf):
        for t in range(8):
            if t % 4 == 0:
                e(f"s_mov_b32 s{S_T0}, {(u*64+t)*1152}")
            e(f"buffer_load_dwordx4 {vr(buf+4*t,4)}, v{V_WOFF}, s[{S_WO}:{S_WO+3}], s{S_T0} offen offset:{(t%4)*1152}")
    def ld_wo_half():
        for t in range(4):
            e(f"buffer_load_dwordx4 {vr(W9+4*t,4)}, v{V_WOFF2}, s[{S_WO}:{S_WO+3}], 0 offen offset:{t*1152}")

    def tile(last):
        e("s_waitcnt vmcnt(8)")
        for j in range(4):
            for sub in range(2):
                cc = "0" if j == 0 else vr(ST+sub*4, 4)
                e(f"v_mfma_f32_16x16x32_bf16 {vr(ST+sub*4,4)}, {vr(KB+(sub*4+j)*4,4)}, {vr(QF+j*4,4)}, {cc}")
        if not last:
            for l in ld_k(f"s{S_OFF}"):
                for x_ in l: e(x_)
        else:
            ld_wo(3, KB)
        e("s_nop 1")
        S = [ST+i for i in range(8)]
        e(f"v_max3_f32 v{V_T0}, v{S[0]}, v{S[1]}, v{S[2]}")
        e(f"v_max3_f32 v{V_T1}, v{S[3]}, v{S[4]}, v{S[5]}")
        e(f"v_max3_f32 v{V_T2}, v{S[6]}, v{S[7]}, v{XT}")
        e(f"v_max3_f32 v{V_T0}, v{V_T0}, v{V_T1}, v{V_T2}")
        e(f"v_mov_b32 v{V_T1}, v{V_T0}")
        e("s_nop 1")
        e(f"v_permlane32_swap_b32 v{V_T0}, v{V_T1}")
        e(f"v_max_f32 v{V_T0}, v{V_T0}, v{V_T1}")
        e(f"v_mov_b32 v{V_T1}, v{V_T0}")
        e("s_nop 1")
        e(f"v_permlane16_swap_b32 v{V_T0}, v{V_T1}")
        e(f"v_max_f32 v{XT}, v{V_T0}, v{V_T1}")
        e(f"v_mul_f32 v{V_T0}, s{S_C}, v{XT}")
        e(f"v_sub_f32 v{V_AL}, v{V_MC}, v{V_T0}")
        e(f"v_exp_f32 v{V_AL}, v{V_AL}")
        e(f"v_mov_b32 v{V_MC}, v{V_T0}")
        for i in range(8):
            e(f"v_fma_f32 v{S[i]}, v{S[i]}, s{S_C}, -v{V_MC}")
        for i in range(8):
            e(f"v_exp_f32 v{S[i]}, v{S[i]}")
        for i in range(16):
            e(f"v_pk_mul_f32 {vr(OA+2*i,2)}, {vr(OA+2*i,2)}, {vr(V_AL,2)} op_sel_hi:[1,0]")
        e(f"v_mul_f32 v{V_L}, v{V_L}, v{V_AL}")
        for i in range(4):
            e(f"v_cvt_pk_bf16_f32 v{PP+i}, v{S[2*i]}, v{S[2*i+1]}")
        e(f"v_add_f32 v{V_T0}, v{S[0]}, v{S[1]}")
        e(f"v_add_f32 v{V_T1}, v{S[2]}, v{S[3]}")
        e(f"v_add_f32 v{V_T2}, v{S[4]}, v{S[5]}")
        e(f"v_add_f32 v{V_T0}, v{V_T0}, v{V_T1}")
        e(f"v_add_f32 v{V_T1}, v{S[6]}, v{S[7]}")
        e(f"v_add_f32 v{V_T2}, v{V_T2}, v{V_T1}")
        e(f"v_add_f32 v{V_L}, v{V_L}, v{V_T0}")
        e(f"v_add_f32 v{V_L}, v{V_L}, v{V_T2}")
        e("s_waitcnt vmcnt(8)")
        unit_mma(VB, PP, OA, False)
        if not last:
            for l in ld_v(f"s{S_OFF}"):
                for x_ in l: e(x_)

    stamp()
    e.label("L_loop")
    tile(False)
    e(f"s_add_u32 s{S_OFF}, s{S_OFF}, 0x8000")
    e(f"s_cmp_lg_u32 s{S_IT}, s{S_BURST}")
    e("s_cbranch_scc1 L_noburst")
    for u in range(3):
        ld_wo(u, WP + 32*u)
    ld_wo_half()
    e.label("L_noburst")
    e(f"s_add_u32 s{S_IT}, s{S_IT}, 1")
    e(f"s_cmp_lt_u32 s{S_IT}, 15")
    e("s_cbranch_scc1 L_loop")
    stamp()
    tile(True)
    stamp()

    e(f"v_mov_b32 v{V_T1}, v{V_L}")
    e("s_nop 1")
    e(f"v_permlane32_swap_b32 v{V_L}, v{V_T1}")
    e(f"v_add_f32 v{V_L}, v{V_L}, v{V_T1}")
    e(f"v_mov_b32 v{V_T1}, v{V_L}")
    e("s_nop 1")
    e(f"v_permlane16_swap_b32 v{V_L}, v{V_T1}")
    e(f"v_add_f32 v{V_L}, v{V_L}, v{V_T1}")
    e(f"s_lshr_b32 s{S_T0}, s{S_WAVE}, 2")
    e(f"s_lshl_b32 s{S_T0}, s{S_T0}, 7")
    e(f"s_and_b32 s{S_T1}, s{S_WAVE}, 3")
    e(f"s_lshl_b32 s{S_T1}, s{S_T1}, 2")
    e(f"s_add_u32 s{S_T0}, s{S_T0}, s{S_T1}")
    e(f"v_and_b32 v{V_T2}, 7, v{V_N}")
    e(f"v_lshlrev_b32 v{V_T0}, 4, v{V_T2}")
    e(f"v_add_u32 v{V_T0}, s{S_T0}, v{V_T0}")
    e(f"ds_write_b32 v{V_T0}, v{V_MC} offset:{LDS_ML}")
    e(f"ds_write_b32 v{V_T0}, v{V_L} offset:{LDS_ML+256}")
    e(f"v_mul_u32_u24 v{V_T0}, {OP_ROW}, v{V_T2}")
    e(f"v_lshrrev_b32 v{V_T1}, 3, v{V_N}")
    e(f"v_lshl_add_u32 v{V_T1}, v{V_G}, 1, v{V_T1}")
    e(f"v_lshl_add_u32 v{V_T0}, v{V_T1}, 6, v{V_T0}")
    e(f"s_mul_i32 s{S_T0}, s{S_WAVE}, {8*OP_ROW}")
    e(f"v_add_u32 v{V_T0}, s{S_T0}, v{V_T0}")
    for ee in range(2):
        for i in range(8):
            e(f"v_cndmask_b32 v{VB+ee*8+i}, v{OA+4*i+ee}, v{OA+4*i+2+ee}, s[{S_MASK}:{S_MASK+1}]")
    for x_ in range(4):
        e(f"ds_write_b128 v{V_T0}, {vr(VB+4*x_,4)} offset:{LDS_OP+16*x_}")
    e(f"v_lshrrev_b32 v{V_T1}, 5, v0")
    e(f"s_and_b32 s{S_T1}, s{S_WAVE}, 3")
    e(f"s_lshl_b32 s{S_T1}, s{S_T1}, 1")
    e(f"v_add_u32 v{V_T1}, s{S_T1}, v{V_T1}")
    e(f"v_and_b32 v{V_T2}, 31, v0")
    e(f"v_mul_u32_u24 v{V_XOFF}, {OP_ROW}, v{V_T1}")
    e(f"v_lshl_add_u32 v{V_XOFF}, v{V_T2}, 4, v{V_XOFF}")
    e(f"s_lshr_b32 s{S_T0}, s{S_WAVE}, 2")
    e(f"s_mul_i32 s{S_T2}, s{S_T0}, {32*OP_ROW}")
    e(f"v_add_u32 v{V_XOFF}, s{S_T2}, v{V_XOFF}")
    e(f"s_lshl_b32 s{S_T2}, s{S_T0}, 7")
    e(f"v_lshlrev_b32 v{V_XOFF2}, 4, v{V_T1}")
    e(f"v_add_u32 v{V_XOFF2}, s{S_T2}, v{V_XOFF2}")
    e(f"v_and_b32 v{V_T0}, 3, v{V_T1}")
    e(f"s_lshl_b32 s{S_T2}, s{S_T0}, 2")
    e(f"v_add_u32 v{V_T0}, s{S_T2}, v{V_T0}")
    e(f"v_mul_u32_u24 v{V_T0}, {OB_ROW}, v{V_T0}")
    e(f"v_lshrrev_b32 v{V_T1}, 2, v{V_T1}")
    e(f"v_lshl_add_u32 v{V_T0}, v{V_T1}, 8, v{V_T0}")
    e(f"v_lshl_add_u32 v{V_KOFF}, v{V_T2}, 3, v{V_T0}")
    e("s_waitcnt lgkmcnt(0)")
    e("s_barrier")
    MM, LL, OO = QF, QF+4, OA
    e(f"ds_read_b128 {vr(MM,4)}, v{V_XOFF2} offset:{LDS_ML}")
    e(f"ds_read_b128 {vr(LL,4)}, v{V_XOFF2} offset:{LDS_ML+256}")
    for p in range(4):
        e(f"ds_read_b128 {vr(OO+4*p,4)}, v{V_XOFF} offset:{LDS_OP+p*8*OP_ROW}")
    e(f"v_and_b32 v{V_T1}, 7, v{V_N}")
    e(f"v_mul_u32_u24 v{V_T1}, {OB_ROW}, v{V_T1}")
    e(f"v_lshrrev_b32 v{V_T2}, 3, v{V_N}")
    e(f"v_lshlrev_b32 v{V_T2}, 4, v{V_T2}")
    e(f"v_lshl_add_u32 v{V_T2}, v{V_G}, 2, v{V_T2}")
    e(f"v_lshl_add_u32 v{V_VOFF}, v{V_T2}, 2, v{V_T1}")
    e(f"s_lshl_b32 s{S_T2}, s{S_WAVE}, 6")
    e(f"v_lshl_add_u32 v{V_T7}, v{V_T2}, 1, v{V_T1}")
    e(f"v_add_u32 v{V_T7}, s{S_T2}, v{V_T7}")
    e("s_waitcnt lgkmcnt(4)")
    e(f"v_max3_f32 v{V_T0}, v{MM}, v{MM+1}, v{MM+2}")
    e(f"v_max_f32 v{V_T0}, v{V_T0}, v{MM+3}")
    for p in range(4):
        e(f"v_sub_f32 v{MM+p}, v{MM+p}, v{V_T0}")
    for p in range(4):
        e(f"v_exp_f32 v{MM+p}, v{MM+p}")
    e("s_nop 0")
    e(f"v_mul_f32 v{V_T0}, v{MM}, v{LL}")
    for p in range(1, 4):
        e(f"v_fmac_f32 v{V_T0}, v{MM+p}, v{LL+p}")
    e(f"v_rcp_f32 v{V_T0}, v{V_T0}")
    e("s_nop 0")
    for p in range(4):
        e(f"v_mul_f32 v{MM+p}, v{MM+p}, v{V_T0}")
    e("s_waitcnt lgkmcnt(0)")
    for i in range(4):
        e(f"v_mul_f32 v{OO+i}, v{OO+i}, v{MM}")
    for p in range(1, 4):
        for i in range(4):
            e(f"v_fmac_f32 v{OO+i}, v{OO+4*p+i}, v{MM+p}")
    e(f"v_cvt_pk_bf16_f32 v{PP}, v{OO}, v{OO+1}")
    e(f"v_cvt_pk_bf16_f32 v{PP+1}, v{OO+2}, v{OO+3}")
    e(f"ds_write_b64 v{V_KOFF}, {vr(PP,2)} offset:{LDS_OB}")
    e("s_waitcnt lgkmcnt(0)")
    e("s_barrier")
    stamp()
    e(f"ds_read_b64 {vr(PP,2)}, v{V_T7} offset:{LDS_OB}")
    for u in range(4):
        e(f"ds_read_b128 {vr(QF+4*u,4)}, v{V_VOFF} offset:{LDS_OB+u*128}")
    e(f"v_and_b32 v{V_T1}, 7, v{V_N}")
    e(f"v_lshrrev_b32 v{V_T2}, 3, v{V_N}")
    e(f"v_lshl_add_u32 v{V_T2}, v{V_G}, 1, v{V_T2}")
    e(f"v_mul_u32_u24 v{V_XOFF}, {R9_ROW}, v{V_T1}")
    e(f"v_lshl_add_u32 v{V_XOFF}, v{V_T2}, 5, v{V_XOFF}")
    e(f"s_mul_i32 s{S_T0}, s{S_WAVE}, {8*R9_ROW}")
    e(f"v_add_u32 v{V_XOFF}, s{S_T0}, v{V_XOFF}")
    e(f"v_mul_u32_u24 v{V_XOFF2}, 2304, v{V_T1}")
    e(f"v_lshl_add_u32 v{V_XOFF2}, v{V_T2}, 5, v{V_XOFF2}")
    e(f"s_lshl_b32 s{S_T0}, s{S_WAVE}, 8")
    e(f"v_add_u32 v{V_XOFF2}, s{S_T0}, v{V_XOFF2}")
    e(f"s_mul_i32 s{S_T0}, s{S_WAVE}, {R9_ROW}")
    e(f"v_lshlrev_b32 v{V_T1}, 2, v0")
    e(f"v_add_u32 v{V_KOFF}, s{S_T0}, v{V_T1}")
    e(f"s_mul_i32 s{S_T0}, s{S_WAVE}, 2304")
    e(f"s_add_u32 s{S_T0}, s{S_T0}, 2048")
    e(f"v_add_u32 v{V_WOFF}, s{S_T0}, v{V_T1}")
    e("s_waitcnt vmcnt(0) lgkmcnt(4)")
    half_mma(W9, PP, VB, True)
    e("s_waitcnt lgkmcnt(0)")
    unit_mma(WP, QF, OA, True)
    merge(VB, W9)
    e(f"ds_write_b128 v{V_XOFF}, {vr(W9,4)} offset:{LDS_R9}")
    e(f"ds_write_b128 v{V_XOFF}, {vr(W9+4,4)} offset:{LDS_R9+16}")
    unit_mma(WP+32, QF+4, OA, False)
    unit_mma(WP+64, QF+8, OA, False)
    unit_mma(KB, QF+12, OA, False)
    e("s_waitcnt lgkmcnt(0)")
    e("s_barrier")
    for w_ in range(8):
        e(f"ds_read_b32 v{VB+w_}, v{V_KOFF} offset:{LDS_R9+w_*8*R9_ROW}")
    merge(OA, W9+8)
    e(f"buffer_store_dwordx4 {vr(W9+8,4)}, v{V_XOFF2}, s[{S_WS}:{S_WS+3}], 0 offen")
    e(f"buffer_store_dwordx4 {vr(W9+12,4)}, v{V_XOFF2}, s[{S_WS}:{S_WS+3}], 0 offen offset:16")
    e("s_waitcnt lgkmcnt(0)")
    e(f"v_add_f32 v{VB}, v{VB}, v{VB+1}")
    e(f"v_add_f32 v{VB+2}, v{VB+2}, v{VB+3}")
    e(f"v_add_f32 v{VB+4}, v{VB+4}, v{VB+5}")
    e(f"v_add_f32 v{VB+6}, v{VB+6}, v{VB+7}")
    e(f"v_add_f32 v{VB}, v{VB}, v{VB+2}")
    e(f"v_add_f32 v{VB+4}, v{VB+4}, v{VB+6}")
    e(f"v_add_f32 v{VB}, v{VB}, v{VB+4}")
    e(f"buffer_store_dword v{VB}, v{V_WOFF}, s[{S_WS}:{S_WS+3}], 0 offen")
    if stamps:
        stamp()
        e("s_waitcnt vmcnt(0)")
        stamp()
        if stamps == 'dbg':
            from dbgdump import dbgdump
            dbgdump(e, nst[0], S_WAVE, S_T0)
        else:
            e(f"s_add_u32 s{S_WS}, s42, 0x800000")
            e(f"s_addc_u32 s{S_WS+1}, s43, 0")
            e(f"s_mov_b32 s{S_WS+2}, 0x100000")
            e(f"s_lshl_b32 s{S_T0}, s2, 3")
            e(f"s_add_u32 s{S_T0}, s{S_T0}, s{S_WAVE}")
            e(f"s_lshl_b32 s{S_T0}, s{S_T0}, 6")
            e(f"s_getreg_b32 s{S_T1}, hwreg(HW_REG_XCC_ID)")
            e(f"s_getreg_b32 s{S_T2}, hwreg(HW_REG_HW_ID)")
            e("v_mov_b32 v1, 0")
            for i in range(nst[0]):
                e(f"v_mov_b32 v2, s{64+2*i}")
                e(f"buffer_store_dword v2, v1, s[{S_WS}:{S_WS+3}], s{S_T0} offen offset:{4*i}")
            e(f"v_mov_b32 v2, s{S_T1}")
            e(f"buffer_store_dword v2, v1, s[{S_WS}:{S_WS+3}], s{S_T0} offen offset:56")
            e(f"v_mov_b32 v2, s{S_T2}")
            e(f"buffer_store_dword v2, v1, s[{S_WS}:{S_WS+3}], s{S_T0} offen offset:60")
    e.label("L_end")
    e("s_endpgm")

    e.raw(".globl reduce_kernel\n.p2align 8\n.type reduce_kernel,@function\nreduce_kernel:")
    e("s_cmp_ge_u32 s2, 72")
    e("s_cbranch_scc1 L_rend")
    if stamps:
        e("s_memrealtime s[16:17]")
    e("s_load_dwordx2 s[4:5], s[0:1], 56")
    e("s_load_dwordx2 s[8:9], s[0:1], 40")
    e("s_lshl_b32 s3, s2, 8")
    e("v_add_u32 v0, s3, v0")
    e("v_lshlrev_b32 v1, 4, v0")
    e("v_lshlrev_b32 v2, 3, v0")
    e(f"s_mov_b32 s6, {16*294912}")
    e("s_mov_b32 s7, 0x00020000")
    e(f"s_mov_b32 s10, {128*1152}")
    e("s_mov_b32 s11, 0x00020000")
    e("s_waitcnt lgkmcnt(0)")
    for h in range(16):
        e(f"s_mov_b32 s12, {h*294912}")
        e(f"buffer_load_dwordx4 {vr(4+4*h,4)}, v1, s[4:7], s12 offen")
    for h in range(1, 16):
        e(f"s_waitcnt vmcnt({15-h})")
        e(f"v_pk_add_f32 v[4:5], v[4:5], {vr(4+4*h,2)}")
        e(f"v_pk_add_f32 v[6:7], v[6:7], {vr(6+4*h,2)}")
    e("v_cvt_pk_bf16_f32 v4, v4, v5")
    e("v_cvt_pk_bf16_f32 v5, v6, v7")
    e("buffer_store_dwordx2 v[4:5], v2, s[8:11], 0 offen")
    if stamps:
        e("s_waitcnt vmcnt(0)")
        e("s_memrealtime s[18:19]")
        e("s_waitcnt lgkmcnt(0)")
        e("s_add_u32 s4, s4, 0x900000")
        e("s_addc_u32 s5, s5, 0")
        e("s_lshl_b32 s12, s2, 3")
        e("v_mov_b32 v1, 0")
        e("v_mov_b32 v2, s16")
        e("v_mov_b32 v3, s18")
        e("buffer_store_dwordx2 v[2:3], v1, s[4:7], s12 offen")
    e.label("L_rend")
    e("s_endpgm")

    e.raw('.section .rodata,"a"')
    for kn, nv, ns in (("attn_kernel", 256, 96), ("reduce_kernel", 72, 24)):
        e.raw(f""".p2align 6
.amdhsa_kernel {kn}
  .amdhsa_next_free_vgpr {nv}
  .amdhsa_next_free_sgpr {ns}
  .amdhsa_accum_offset {nv}
  .amdhsa_group_segment_fixed_size 0
  .amdhsa_kernarg_size 64
  .amdhsa_user_sgpr_count 2
  .amdhsa_user_sgpr_kernarg_segment_ptr 1
  .amdhsa_system_sgpr_workgroup_id_x 1
.end_amdhsa_kernel""")
    open(name, "w").write(e.text())

if __name__ == "__main__":
    gen("k1.s")
    gen("k1_kfirst.s", order="kfirst")
    gen("k1_klast.s", order="klast")
    gen("k1_st.s", stamps=True)
    for nh in (2,4,8,16):
        gen(f"k1_st_nh{nh}.s", stamps=True, nh=nh)
    gen(f"k1_st_nh8_nt.s", stamps=True, nh=8, wpol="nt")
    gen(f"k1_st_adj.s", stamps=True, wqpat="adj")
    gen(f"k1_st_lin.s", stamps=True, wqpat="lin")
    gen(f"k1_st_lin_klast.s", stamps=True, wqpat="lin", order="klast")
    gen(f"k1_st_cur_klast.s", stamps=True, order="klast")
    gen(f"k1_st_bar.s", stamps=True, order="bar")
    gen(f"k1_st_bar_nt.s", stamps=True, order="bar", wpol="nt")
    gen(f"k1_st_bar_lin.s", stamps=True, order="bar", wqpat="lin")
```

```python
import sys, math, struct

HEADER = """; Kernarg layout for this problem (64 bytes, ptrs only, base s[0:1]):
"""

class E:
    def __init__(self):
        self.l = []
    def __call__(self, s):
        self.l.append("  " + s)
    def label(self, s):
        self.l.append(s + ":")
    def raw(self, s):
        self.l.append(s)
    def text(self):
        return "\n".join(self.l) + "\n"

def vr(a, n=1):
    return f"v{a}" if n == 1 else f"v[{a}:{a+n-1}]"

V_LANE, V_KOFF, V_VOFF, V_WOFF, V_WOFF2, V_XOFF, V_XOFF2, V_T7 = 0, 1, 2, 3, 4, 5, 6, 7
V_MC, V_L, V_AL, V_T0, V_T1, V_T2, V_N, V_G = 8, 9, 10, 11, 12, 13, 14, 15
QF, OA, KB, VB, WP, W9, ST, PP, XT = 16, 32, 64, 96, 128, 224, 240, 248, 252
V_JUNK = 253
V_PARK = 254
S_K, S_V, S_WQ, S_X, S_WO, S_WS = 8, 12, 16, 20, 24, 28
S_WAVE, S_HKV, S_BP = 3, 44, 45
S_LO, S_HI, S_C = 46, 47, 48
S_IT, S_OFF, S_T0, S_T1, S_T2, S_T3 = 49, 50, 51, 52, 53, 54
S_WR = 55
S_MASK = 56
S_U = 58
S_BIG = 62

QP_ROW = 256 * 4 + 16
OP_ROW = 128 * 4 + 16
LDS_OP = 0
LDS_ML = 33792
LDS_OB = LDS_ML + 512
OB_ROW = 512 + 16
LDS_R9 = LDS_OB + 8 * OB_ROW
R9_ROW = 256 + 16
LDS_QP = LDS_R9 + 64 * R9_ROW
LDS_PARK = LDS_QP + 16 * QP_ROW
LDS_TOTAL = LDS_PARK + 65536

def gen(name, pol="nt", wpol="nt", wopol="nt", stamps=False, nh=2, rot=True, korder="split", prio=None):
    e = E()
    nst = [0]
    def stamp():
        if not stamps: return
        i = nst[0]; nst[0] += 1
        e(f"s_memrealtime s[{64+2*i}:{65+2*i}]")
        e("s_waitcnt lgkmcnt(0)")
    e.raw(HEADER.rstrip("\n"))
    e.raw(f"; @launch kernel=attn_kernel grid=(256,1,1) block=(512,1,1) lds={LDS_TOTAL}")
    e.raw(f"; @launch kernel=reduce_kernel grid=(72,1,1) block=(256,1,1) lds=0")
    e.raw('.amdgcn_target "amdgcn-amd-amdhsa--gfx950"')
    e.raw(".text")
    e.raw(".globl attn_kernel\n.p2align 8\n.type attn_kernel,@function\nattn_kernel:")
    e("s_cmp_ge_u32 s2, 256")
    e("s_cbranch_scc1 L_end")
    stamp()
    e("s_load_dwordx8 s[32:39], s[0:1], 0")
    e("s_load_dwordx2 s[40:41], s[0:1], 32")
    e("s_load_dwordx2 s[42:43], s[0:1], 56")
    e("v_lshrrev_b32 v1, 6, v0")
    e("v_and_b32 v0, 63, v0")
    e(f"v_readfirstlane_b32 s{S_WAVE}, v1")
    e(f"v_and_b32 v{V_N}, 15, v0")
    e(f"v_lshrrev_b32 v{V_G}, 4, v0")
    lnh = nh.bit_length() - 1
    e(f"s_and_b32 s{S_T0}, s2, {16//nh - 1}")
    e(f"s_lshl_b32 s{S_HKV}, s{S_T0}, {lnh}")
    e(f"s_lshr_b32 s{S_T1}, s2, 3")
    e(f"s_and_b32 s{S_T0}, s{S_T1}, {nh-1}")
    e(f"s_add_u32 s{S_HKV}, s{S_HKV}, s{S_T0}")
    e(f"s_lshr_b32 s{S_BP}, s{S_T1}, {lnh}")
    if nh > 2:
        e(f"s_and_b32 s{S_T0}, s2, 7")
        e(f"s_lshr_b32 s{S_T0}, s{S_T0}, {4-lnh}")
        e(f"s_lshl_b32 s{S_T0}, s{S_T0}, {5-lnh}")
        e(f"s_add_u32 s{S_BP}, s{S_BP}, s{S_T0}")
    e(f"v_lshrrev_b32 v{V_T0}, 2, v{V_N}")
    e(f"v_lshlrev_b32 v{V_T0}, 5, v{V_T0}")
    e(f"v_and_b32 v{V_T1}, 1, v{V_N}")
    e(f"v_lshl_add_u32 v{V_T7}, v{V_T1}, 4, v{V_T0}")
    e(f"v_bfe_u32 v{V_T2}, v{V_N}, 1, 1")
    e(f"v_lshlrev_b32 v{V_T0}, 4, v{V_T2}")
    e(f"v_lshl_add_u32 v{V_T0}, v{V_G}, 2, v{V_T0}")
    e(f"v_lshl_add_u32 v{V_WOFF2}, v{V_T0}, 13, v{V_T7}")
    e(f"v_lshl_add_u32 v{V_WOFF}, v{V_T0}, 14, v{V_T7}")
    e(f"v_and_b32 v{V_T1}, 7, v{V_N}")
    e(f"v_mul_u32_u24 v{V_T1}, 1152, v{V_T1}")
    e(f"v_lshrrev_b32 v{V_T2}, 3, v{V_N}")
    e(f"v_lshlrev_b32 v{V_T2}, 4, v{V_T2}")
    e(f"v_lshl_add_u32 v{V_T2}, v{V_G}, 2, v{V_T2}")
    e(f"v_lshl_add_u32 v{V_XOFF2}, v{V_T2}, 1, v{V_T1}")
    e(f"v_lshl_add_u32 v{V_XOFF}, v{V_T2}, 2, v{V_T1}")
    if rot:
        e(f"s_and_b32 s{S_T0}, s{S_BP}, 4")
        e(f"s_xor_b32 s{S_WR}, s{S_WAVE}, s{S_T0}")
        for s_ in range(4):
            e(f"s_add_u32 s{S_T0}, s{S_BP}, {s_}")
            e(f"s_and_b32 s{S_T0}, s{S_T0}, 3")
            e(f"s_lshl_b32 s{S_U+s_}, s{S_T0}, 19")
    else:
        e(f"s_mov_b32 s{S_WR}, s{S_WAVE}")
        for s_ in range(4):
            e(f"s_mov_b32 s{S_U+s_}, {s_<<19}")
    e(f"s_mov_b32 s{S_WQ+3}, 0x00020000")
    e(f"s_mov_b32 s{S_X+3}, 0x00020000")
    e(f"s_and_b32 s{S_T1}, s{S_WR}, 1")
    e(f"s_mul_i32 s{S_T2}, s{S_T1}, {288*8192}")
    e(f"s_lshl_b32 s{S_T3}, s{S_HKV}, 9")
    e(f"s_add_u32 s{S_T2}, s{S_T2}, s{S_T3}")
    e(f"s_lshr_b32 s{S_T3}, s{S_WR}, 1")
    e(f"s_lshl_b32 s{S_T3}, s{S_T3}, 7")
    e(f"s_add_u32 s{S_T2}, s{S_T2}, s{S_T3}")
    e(f"s_sub_u32 s{S_WQ+2}, {576*8192}, s{S_T2}")
    e(f"s_mul_i32 s{S_T1}, s{S_T1}, 576")
    e(f"s_mul_i32 s{S_T3}, s{S_BP}, {8*1152}")
    e(f"s_add_u32 s{S_T1}, s{S_T1}, s{S_T3}")
    e(f"s_sub_u32 s{S_X+2}, {128*1152}, s{S_T1}")
    if prio == "young":
        e(f"s_cmp_lt_u32 s{S_WAVE}, 4")
        e("s_cbranch_scc1 L_prio")
        e("s_setprio 1")
        e.label("L_prio")
    e("s_waitcnt lgkmcnt(0)")
    e(f"s_add_u32 s{S_X}, s32, s{S_T1}")
    e(f"s_addc_u32 s{S_X+1}, s33, 0")
    e(f"s_add_u32 s{S_WQ}, s38, s{S_T2}")
    e(f"s_addc_u32 s{S_WQ+1}, s39, 0")
    stamp()
    issued = []
    wqbuf = [WP, WP+32, WP+64, VB]
    e(f"buffer_load_dwordx2 {vr(PP,2)}, v{V_XOFF2}, s[{S_X}:{S_X+3}], 0 offen offset:512"); issued.append("h")
    for t in range(4):
        e(f"s_mov_b32 s{S_OFF}, {(256+t)*8192}")
        e(f"buffer_load_dwordx4 {vr(W9+4*t,4)}, v{V_WOFF2}, s[{S_WQ}:{S_WQ+3}], s{S_OFF} offen {wpol}"); issued.append("h")
    for s_ in range(4):
        e(f"s_lshr_b32 s{S_OFF}, s{S_U+s_}, 12")
        e(f"buffer_load_dwordx4 {vr(QF+4*s_,4)}, v{V_XOFF}, s[{S_X}:{S_X+3}], s{S_OFF} offen"); issued.append(f"u{s_}")
        for t in range(8):
            e(f"s_add_u32 s{S_OFF}, s{S_U+s_}, {t*8192}")
            e(f"buffer_load_dwordx4 {vr(wqbuf[s_]+4*t,4)}, v{V_WOFF}, s[{S_WQ}:{S_WQ+3}], s{S_OFF} offen {wpol}"); issued.append(f"u{s_}")
    def wait_for(tags):
        last = max(i for i, t in enumerate(issued) if t in tags)
        e(f"s_waitcnt vmcnt({len(issued) - 1 - last})")
    stamp()
    e(f"s_mov_b32 s{S_LO}, 0x05040100")
    e(f"s_mov_b32 s{S_HI}, 0x07060302")
    c = math.log2(math.e) / math.sqrt(128.0)
    cbits = struct.unpack("<I", struct.pack("<f", c))[0]
    e(f"s_mov_b32 s{S_C}, 0x{cbits:08x}")
    e(f"s_mov_b32 s{S_MASK}, 0xff00ff00")
    e(f"s_mov_b32 s{S_MASK+1}, 0xff00ff00")
    e(f"s_mov_b32 s{S_BIG}, 0x7ffffff0")
    e(f"v_lshrrev_b32 v{V_T0}, 2, v{V_N}")
    e(f"v_lshlrev_b32 v{V_T0}, 11, v{V_T0}")
    e(f"v_and_b32 v{V_T1}, 3, v{V_N}")
    e(f"v_lshlrev_b32 v{V_T1}, 8, v{V_T1}")
    e(f"v_lshlrev_b32 v{V_T2}, 4, v{V_G}")
    e(f"v_add3_u32 v{V_KOFF}, v{V_T0}, v{V_T1}, v{V_T2}")
    e(f"v_lshlrev_b32 v{V_T0}, 11, v{V_G}")
    e(f"v_lshl_add_u32 v{V_VOFF}, v{V_N}, 4, v{V_T0}")
    e(f"s_lshr_b32 s{S_T0}, s{S_WAVE}, 2")
    e(f"s_lshl_b32 s{S_T1}, s{S_BP}, 1")
    e(f"s_add_u32 s{S_T0}, s{S_T0}, s{S_T1}")
    e(f"s_lshl_b32 s{S_T0}, s{S_T0}, 4")
    e(f"s_add_u32 s{S_T0}, s{S_T0}, s{S_HKV}")
    e(f"s_lshl_b32 s{S_T0}, s{S_T0}, 19")
    e(f"s_and_b32 s{S_T1}, s{S_WAVE}, 3")
    e(f"s_lshl_b32 s{S_T1}, s{S_T1}, 13")
    e(f"s_add_u32 s{S_T0}, s{S_T0}, s{S_T1}")
    e(f"s_sub_u32 s{S_K+2}, 0x80000, s{S_T1}")
    e(f"s_mov_b32 s{S_V+2}, s{S_K+2}")
    e(f"s_mov_b32 s{S_K+3}, 0x00020000")
    e(f"s_mov_b32 s{S_V+3}, 0x00020000")
    e(f"s_mov_b32 s{S_WO+3}, 0x00020000")
    e(f"s_mov_b32 s{S_WS+3}, 0x00020000")
    e(f"s_add_u32 s{S_K}, s34, s{S_T0}")
    e(f"s_addc_u32 s{S_K+1}, s35, 0")
    e(f"s_add_u32 s{S_V}, s36, s{S_T0}")
    e(f"s_addc_u32 s{S_V+1}, s37, 0")
    e(f"s_mul_i32 s{S_T0}, s{S_HKV}, {256*1152}")
    e(f"s_add_u32 s{S_WO}, s40, s{S_T0}")
    e(f"s_addc_u32 s{S_WO+1}, s41, 0")
    e(f"s_mov_b32 s{S_WO+2}, {256*1152}")
    e(f"s_mul_i32 s{S_T0}, s{S_HKV}, {128*2304}")
    e(f"s_mul_i32 s{S_T1}, s{S_BP}, {8*2304}")
    e(f"s_add_u32 s{S_T0}, s{S_T0}, s{S_T1}")
    e(f"s_add_u32 s{S_WS}, s42, s{S_T0}")
    e(f"s_addc_u32 s{S_WS+1}, s43, 0")
    e(f"s_mov_b32 s{S_WS+2}, {8*2304}")
    e(f"v_bfe_u32 v{V_T2}, v{V_N}, 1, 1")
    e(f"v_lshlrev_b32 v{V_T0}, 4, v{V_T2}")
    e(f"v_lshl_add_u32 v{V_T0}, v{V_G}, 2, v{V_T0}")
    e(f"v_mul_u32_u24 v{V_T0}, 1152, v{V_T0}")
    e(f"s_lshl_b32 s{S_T0}, s{S_WAVE}, 7")
    e(f"v_lshl_add_u32 v{V_WOFF}, v{V_T0}, 1, v{V_T7}")
    e(f"v_add_u32 v{V_WOFF}, s{S_T0}, v{V_WOFF}")
    e(f"s_mul_i32 s{S_T0}, s{S_WAVE}, {32*1152}")
    e(f"s_add_u32 s{S_T0}, s{S_T0}, 1024")
    e(f"v_add3_u32 v{V_WOFF2}, v{V_T0}, v{V_T7}, s{S_T0}")
    e(f"s_lshl_b32 s{S_T0}, s{S_WAVE}, 13")
    e(f"s_add_u32 s{S_T0}, s{S_T0}, {LDS_PARK}")
    e(f"v_lshlrev_b32 v{V_PARK}, 4, v0")
    e(f"v_add_u32 v{V_PARK}, s{S_T0}, v{V_PARK}")
    e(f"v_and_b32 v{V_T0}, 7, v{V_N}")
    e(f"v_mul_u32_u24 v{V_T0}, {QP_ROW}, v{V_T0}")
    e(f"v_lshrrev_b32 v{V_T1}, 3, v{V_N}")
    e(f"v_lshl_add_u32 v{V_T1}, v{V_G}, 1, v{V_T1}")
    e(f"v_lshl_add_u32 v{V_T0}, v{V_T1}, 5, v{V_T0}")
    e(f"s_and_b32 s{S_T0}, s{S_WR}, 1")
    e(f"s_mul_i32 s{S_T0}, s{S_T0}, {8*QP_ROW}")
    e(f"s_lshr_b32 s{S_T1}, s{S_WR}, 1")
    e(f"s_lshl_b32 s{S_T1}, s{S_T1}, 8")
    e(f"s_add_u32 s{S_T0}, s{S_T0}, s{S_T1}")
    e(f"v_add_u32 v{V_XOFF}, s{S_T0}, v{V_T0}")
    e(f"v_and_b32 v{V_T1}, 3, v{V_N}")
    e(f"v_mul_u32_u24 v{V_T1}, {QP_ROW}, v{V_T1}")
    e(f"v_bfe_u32 v{V_T2}, v{V_N}, 2, 1")
    e(f"v_lshl_add_u32 v{V_T1}, v{V_T2}, 9, v{V_T1}")
    e(f"v_lshl_add_u32 v{V_T1}, v{V_G}, 5, v{V_T1}")
    e(f"s_lshr_b32 s{S_T0}, s{S_WAVE}, 2")
    e(f"s_mul_i32 s{S_T0}, s{S_T0}, {4*QP_ROW}")
    e(f"v_add_u32 v{V_XOFF2}, s{S_T0}, v{V_T1}")

    def ld_k(soff):
        for sub in range(2):
            for j in range(4):
                e(f"buffer_load_dwordx4 {vr(KB+(sub*4+j)*4,4)}, v{V_KOFF}, s[{S_K}:{S_K+3}], {soff} offen offset:{sub*1024+j*64} {pol}")
    def ld_v(soff):
        for t in range(8):
            e(f"buffer_load_dwordx4 {vr(VB+t*4,4)}, v{V_VOFF}, s[{S_V}:{S_V+3}], {soff} offen offset:{t*256} {pol}")

    def unit_mma(buf, bfrag, acc, first):
        def perms(i):
            w_, h = i >> 1, i & 1
            sel = S_HI if h else S_LO
            T = ST + (i & 1) * 4
            for u_ in range(4):
                e(f"v_perm_b32 v{T+u_}, v{buf+(2*u_+1)*4+w_}, v{buf+(2*u_)*4+w_}, s{sel}")
        perms(0)
        for i in range(8):
            if i + 1 < 8: perms(i + 1)
            else: e("s_nop 1")
            T = ST + (i & 1) * 4
            cc = "0" if first else vr(acc+4*i, 4)
            e(f"v_mfma_f32_16x16x32_bf16 {vr(acc+4*i,4)}, {vr(T,4)}, {vr(bfrag,4)}, {cc}")
    def half_mma(buf, bfrag, acc, first):
        def perms(i):
            w_, h = i >> 1, i & 1
            sel = S_HI if h else S_LO
            T = ST + (i & 3) * 2
            for u_ in range(2):
                e(f"v_perm_b32 v{T+u_}, v{buf+(2*u_+1)*4+w_}, v{buf+(2*u_)*4+w_}, s{sel}")
        perms(0)
        for i in range(8):
            if i + 1 < 8: perms(i + 1)
            else: e("s_nop 1")
            T = ST + (i & 3) * 2
            cc = "0" if first else vr(acc+4*i, 4)
            e(f"v_mfma_f32_16x16x16_bf16 {vr(acc+4*i,4)}, {vr(T,2)}, {vr(bfrag,2)}, {cc}")
    def merge(acc, dst):
        for i in range(8):
            a = acc + 4*i
            e(f"v_add_f32_dpp v{dst+i}, v{a+2}, v{a} row_ror:8 row_mask:0xf bank_mask:0x3")
            e(f"v_add_f32_dpp v{dst+i}, v{a+1}, v{a+3} row_ror:8 row_mask:0xf bank_mask:0xc")

    WL = []
    def wl_unit(u, buf):
        for t in range(8):
            WL.append([f"s_mov_b32 s{S_T0}, {(u*64+(t//4)*4)*1152}",
                       f"buffer_load_dwordx4 {vr(buf+4*t,4)}, v{V_WOFF}, s[{S_WO}:{S_WO+3}], s{S_T0} offen offset:{(t%4)*1152} {wopol}"])
    wl_unit(3, WP+64)
    for t in range(4):
        WL.append([f"buffer_load_dwordx4 {vr(W9+4*t,4)}, v{V_WOFF2}, s[{S_WO}:{S_WO+3}], 0 offen offset:{t*1152} {wopol}"])
    wl_unit(0, WP); wl_unit(1, WP+32); wl_unit(2, WP+64)
    while len(WL) < 45:
        WL.append([f"buffer_load_dword v{V_JUNK}, v{V_WOFF}, s[{S_WO}:{S_WO+3}], s{S_BIG} offen"])
    def perm_inplace(buf):
        for a in range(4):
            r0, r1 = buf+8*a+a, buf+8*a+4+a
            e(f"v_perm_b32 v{ST}, v{r1}, v{r0}, s{S_LO}")
            e(f"v_perm_b32 v{r1}, v{r1}, v{r0}, s{S_HI}")
            e(f"v_mov_b32 v{r0}, v{ST}")
        for a in range(4):
            for b in range(a+1, 4):
                p0, p1 = buf+8*a+b, buf+8*a+4+b
                q0, q1 = buf+8*b+a, buf+8*b+4+a
                e(f"v_perm_b32 v{ST}, v{p1}, v{p0}, s{S_LO}")
                e(f"v_perm_b32 v{ST+1}, v{p1}, v{p0}, s{S_HI}")
                e(f"v_perm_b32 v{p0}, v{q1}, v{q0}, s{S_LO}")
                e(f"v_perm_b32 v{p1}, v{q1}, v{q0}, s{S_HI}")
                e(f"v_mov_b32 v{q0}, v{ST}")
                e(f"v_mov_b32 v{q1}, v{ST+1}")
    def perm_half_inplace(buf):
        for half in range(2):
            pass
        T = [ST+i for i in range(8)] + [PP+i for i in range(4)]
        for w_ in range(3):
            for h in range(2):
                for u_ in range(2):
                    sel = S_HI if h else S_LO
                    e(f"v_perm_b32 v{T[w_*4+2*h+u_]}, v{buf+(2*u_+1)*4+w_}, v{buf+(2*u_)*4+w_}, s{sel}")
        e(f"v_perm_b32 v{buf+12}, v{buf+7}, v{buf+3}, s{S_LO}")
        e(f"v_perm_b32 v{buf+13}, v{buf+15}, v{buf+11}, s{S_LO}")
        e(f"v_perm_b32 v{buf+14}, v{buf+7}, v{buf+3}, s{S_HI}")
        e(f"v_perm_b32 v{buf+15}, v{buf+15}, v{buf+11}, s{S_HI}")
        for i in range(12):
            e(f"v_mov_b32 v{buf+i}, v{T[i]}")
    def park(buf):
        for i in range(8):
            w_, h = i >> 1, i & 1
            sel = S_HI if h else S_LO
            T = ST + (i & 1) * 4
            for u_ in range(4):
                e(f"v_perm_b32 v{T+u_}, v{buf+(2*u_+1)*4+w_}, v{buf+(2*u_)*4+w_}, s{sel}")
            e(f"ds_write_b128 v{V_PARK}, {vr(T,4)} offset:{i*1024}")
            if i & 1:
                e("s_waitcnt lgkmcnt(0)")
    def snippet(s_):
        for l in WL[3*s_:3*s_+3]:
            for x_ in l: e(x_)
        if s_ in (4, 5, 8, 11, 13):
            e("s_nop 3")
        if s_ == 4: park(WP+64)
        if s_ == 5: perm_half_inplace(W9)
        if s_ == 8: perm_inplace(WP)
        if s_ == 11: perm_inplace(WP+32)
        if s_ == 13: perm_inplace(WP+64)

    wait_for(["h"])
    stamp()
    half_mma(W9, PP, OA, True)
    e("s_nop 4")
    for s_ in range(4):
        wait_for([f"u{s_}"])
        unit_mma(wqbuf[s_], QF+4*s_, OA, False)
    e("s_nop 7")
    e("s_nop 1")
    merge(OA, WP)
    e(f"ds_write_b128 v{V_XOFF}, {vr(WP,4)} offset:{LDS_QP}")
    e(f"ds_write_b128 v{V_XOFF}, {vr(WP+4,4)} offset:{LDS_QP+16}")
    stamp()
    def first_loads():
        ld_k("0"); ld_v("0"); snippet(0)
    if korder == "split":
        e(f"s_cmp_ge_u32 s{S_WAVE}, 4")
        e("s_cbranch_scc1 L_skip_a")
        first_loads()
        e.label("L_skip_a")
    elif korder == "before":
        first_loads()
    e("s_waitcnt lgkmcnt(0)")
    e("s_barrier")
    for j in range(4):
        for ee in range(2):
            for h in range(2):
                e(f"ds_read_b128 {vr(WP+j*16+ee*8+h*4,4)}, v{V_XOFF2} offset:{LDS_QP+ee*8*QP_ROW+j*128+h*16}")
    for i in range(32):
        e(f"v_mov_b32 v{OA+i}, 0")
    e(f"v_mov_b32 v{V_MC}, 0xf149f2ca")
    e(f"v_mov_b32 v{XT}, 0xf149f2ca")
    e(f"v_mov_b32 v{V_L}, 0")
    for j in range(4):
        e(f"s_waitcnt lgkmcnt({12-4*j})")
        for i in range(8):
            e(f"v_add_f32 v{WP+j*16+i}, v{WP+j*16+i}, v{WP+j*16+8+i}")
        for i in range(4):
            e(f"v_cvt_pk_bf16_f32 v{QF+j*4+i}, v{WP+j*16+2*i}, v{WP+j*16+2*i+1}")
    if prio == "young":
        e("s_setprio 0")
    if korder == "split":
        e(f"s_cmp_lt_u32 s{S_WAVE}, 4")
        e("s_cbranch_scc1 L_skip_b")
        first_loads()
        e.label("L_skip_b")
    elif korder == "after":
        first_loads()
    e(f"s_mov_b32 s{S_IT}, 0")
    e(f"s_mov_b32 s{S_OFF}, 0x8000")

    def tile(last):
        e(f"s_waitcnt vmcnt({8 if last else 11})")
        for j in range(4):
            for sub in range(2):
                cc = "0" if j == 0 else vr(ST+sub*4, 4)
                e(f"v_mfma_f32_16x16x32_bf16 {vr(ST+sub*4,4)}, {vr(KB+(sub*4+j)*4,4)}, {vr(QF+j*4,4)}, {cc}")
        if not last:
            ld_k(f"s{S_OFF}")
        else:
            e("s_nop 7")
            for i in range(8):
                e(f"ds_read_b128 {vr(KB+4*i,4)}, v{V_PARK} offset:{i*1024}")
        e("s_nop 1")
        S = [ST+i for i in range(8)]
        e(f"v_max3_f32 v{V_T0}, v{S[0]}, v{S[1]}, v{S[2]}")
        e(f"v_max3_f32 v{V_T1}, v{S[3]}, v{S[4]}, v{S[5]}")
        e(f"v_max3_f32 v{V_T2}, v{S[6]}, v{S[7]}, v{XT}")
        e(f"v_max3_f32 v{V_T0}, v{V_T0}, v{V_T1}, v{V_T2}")
        e(f"v_mov_b32 v{V_T1}, v{V_T0}")
        e("s_nop 1")
        e(f"v_permlane32_swap_b32 v{V_T0}, v{V_T1}")
        e(f"v_max_f32 v{V_T0}, v{V_T0}, v{V_T1}")
        e(f"v_mov_b32 v{V_T1}, v{V_T0}")
        e("s_nop 1")
        e(f"v_permlane16_swap_b32 v{V_T0}, v{V_T1}")
        e(f"v_max_f32 v{XT}, v{V_T0}, v{V_T1}")
        e(f"v_mul_f32 v{V_T0}, s{S_C}, v{XT}")
        e(f"v_sub_f32 v{V_AL}, v{V_MC}, v{V_T0}")
        e(f"v_exp_f32 v{V_AL}, v{V_AL}")
        e(f"v_mov_b32 v{V_MC}, v{V_T0}")
        for i in range(8):
            e(f"v_fma_f32 v{S[i]}, v{S[i]}, s{S_C}, -v{V_MC}")
        for i in range(8):
            e(f"v_exp_f32 v{S[i]}, v{S[i]}")
        for i in range(16):
            e(f"v_pk_mul_f32 {vr(OA+2*i,2)}, {vr(OA+2*i,2)}, {vr(V_AL,2)} op_sel_hi:[1,0]")
        e(f"v_mul_f32 v{V_L}, v{V_L}, v{V_AL}")
        for i in range(4):
            e(f"v_cvt_pk_bf16_f32 v{PP+i}, v{S[2*i]}, v{S[2*i+1]}")
        e(f"v_add_f32 v{V_T0}, v{S[0]}, v{S[1]}")
        e(f"v_add_f32 v{V_T1}, v{S[2]}, v{S[3]}")
        e(f"v_add_f32 v{V_T2}, v{S[4]}, v{S[5]}")
        e(f"v_add_f32 v{V_T0}, v{V_T0}, v{V_T1}")
        e(f"v_add_f32 v{V_T1}, v{S[6]}, v{S[7]}")
        e(f"v_add_f32 v{V_T2}, v{V_T2}, v{V_T1}")
        e(f"v_add_f32 v{V_L}, v{V_L}, v{V_T0}")
        e(f"v_add_f32 v{V_L}, v{V_L}, v{V_T2}")
        if last:
            pre_combine()
        e(f"s_waitcnt vmcnt({0 if last else 11})")
        if last: stamp()
        unit_mma(VB, PP, OA, False)
        if not last:
            ld_v(f"s{S_OFF}")

    def pre_combine():
        e(f"v_mov_b32 v{V_T1}, v{V_L}")
        e("s_nop 1")
        e(f"v_permlane32_swap_b32 v{V_L}, v{V_T1}")
        e(f"v_add_f32 v{V_L}, v{V_L}, v{V_T1}")
        e(f"v_mov_b32 v{V_T1}, v{V_L}")
        e("s_nop 1")
        e(f"v_permlane16_swap_b32 v{V_L}, v{V_T1}")
        e(f"v_add_f32 v{V_L}, v{V_L}, v{V_T1}")
        e(f"s_lshr_b32 s{S_T0}, s{S_WAVE}, 2")
        e(f"s_lshl_b32 s{S_T0}, s{S_T0}, 7")
        e(f"s_and_b32 s{S_T1}, s{S_WAVE}, 3")
        e(f"s_lshl_b32 s{S_T1}, s{S_T1}, 2")
        e(f"s_add_u32 s{S_T0}, s{S_T0}, s{S_T1}")
        e(f"v_and_b32 v{V_T2}, 7, v{V_N}")
        e(f"v_lshlrev_b32 v{V_T0}, 4, v{V_T2}")
        e(f"v_add_u32 v{V_T0}, s{S_T0}, v{V_T0}")
        e(f"ds_write_b32 v{V_T0}, v{V_MC} offset:{LDS_ML}")
        e(f"ds_write_b32 v{V_T0}, v{V_L} offset:{LDS_ML+256}")
        e(f"v_mul_u32_u24 v{V_T0}, {OP_ROW}, v{V_T2}")
        e(f"v_lshrrev_b32 v{V_T1}, 3, v{V_N}")
        e(f"v_lshl_add_u32 v{V_T1}, v{V_G}, 1, v{V_T1}")
        e(f"v_lshl_add_u32 v{V_T0}, v{V_T1}, 6, v{V_T0}")
        e(f"s_mul_i32 s{S_T0}, s{S_WAVE}, {8*OP_ROW}")
        e(f"v_add_u32 v{V_WOFF}, s{S_T0}, v{V_T0}")
        e(f"v_mul_u32_u24 v{V_WOFF2}, {R9_ROW}, v{V_T2}")
        e(f"v_lshl_add_u32 v{V_WOFF2}, v{V_T1}, 5, v{V_WOFF2}")
        e(f"s_mul_i32 s{S_T0}, s{S_WAVE}, {8*R9_ROW}")
        e(f"v_add_u32 v{V_WOFF2}, s{S_T0}, v{V_WOFF2}")
        e(f"v_mul_u32_u24 v{V_PARK}, 2304, v{V_T2}")
        e(f"v_lshl_add_u32 v{V_PARK}, v{V_T1}, 5, v{V_PARK}")
        e(f"s_lshl_b32 s{S_T0}, s{S_WAVE}, 8")
        e(f"v_add_u32 v{V_PARK}, s{S_T0}, v{V_PARK}")
        e(f"v_mul_u32_u24 v{V_T1}, {OB_ROW}, v{V_T2}")
        e(f"v_lshrrev_b32 v{V_T2}, 3, v{V_N}")
        e(f"v_lshlrev_b32 v{V_T2}, 4, v{V_T2}")
        e(f"v_lshl_add_u32 v{V_T2}, v{V_G}, 2, v{V_T2}")
        e(f"v_lshl_add_u32 v{V_VOFF}, v{V_T2}, 2, v{V_T1}")
        e(f"s_lshl_b32 s{S_T2}, s{S_WAVE}, 6")
        e(f"v_lshl_add_u32 v{V_T7}, v{V_T2}, 1, v{V_T1}")
        e(f"v_add_u32 v{V_T7}, s{S_T2}, v{V_T7}")
        e(f"v_lshrrev_b32 v{V_T1}, 5, v0")
        e(f"s_and_b32 s{S_T1}, s{S_WAVE}, 3")
        e(f"s_lshl_b32 s{S_T1}, s{S_T1}, 1")
        e(f"v_add_u32 v{V_T1}, s{S_T1}, v{V_T1}")
        e(f"v_and_b32 v{V_T2}, 31, v0")
        e(f"v_mul_u32_u24 v{V_XOFF}, {OP_ROW}, v{V_T1}")
        e(f"v_lshl_add_u32 v{V_XOFF}, v{V_T2}, 4, v{V_XOFF}")
        e(f"s_lshr_b32 s{S_T0}, s{S_WAVE}, 2")
        e(f"s_mul_i32 s{S_T2}, s{S_T0}, {32*OP_ROW}")
        e(f"v_add_u32 v{V_XOFF}, s{S_T2}, v{V_XOFF}")
        e(f"s_lshl_b32 s{S_T2}, s{S_T0}, 7")
        e(f"v_lshlrev_b32 v{V_XOFF2}, 4, v{V_T1}")
        e(f"v_add_u32 v{V_XOFF2}, s{S_T2}, v{V_XOFF2}")
        e(f"v_and_b32 v{V_T0}, 3, v{V_T1}")
        e(f"s_lshl_b32 s{S_T2}, s{S_T0}, 2")
        e(f"v_add_u32 v{V_T0}, s{S_T2}, v{V_T0}")
        e(f"v_mul_u32_u24 v{V_T0}, {OB_ROW}, v{V_T0}")
        e(f"v_lshrrev_b32 v{V_T1}, 2, v{V_T1}")
        e(f"v_lshl_add_u32 v{V_T0}, v{V_T1}, 8, v{V_T0}")
        e(f"v_lshl_add_u32 v{V_KOFF}, v{V_T2}, 3, v{V_T0}")
        e("s_waitcnt lgkmcnt(0)")
        e(f"s_mul_i32 s{S_T0}, s{S_WAVE}, {R9_ROW}")
        e(f"v_lshlrev_b32 v{V_T1}, 2, v0")
        e(f"v_add_u32 v{V_MC}, s{S_T0}, v{V_T1}")
        e(f"s_mul_i32 s{S_T0}, s{S_WAVE}, 2304")
        e(f"s_add_u32 s{S_T0}, s{S_T0}, 2048")
        e(f"v_add_u32 v{V_L}, s{S_T0}, v{V_T1}")

    stamp()
    e.label("L_loop")
    tile(False)
    e(f"s_add_u32 s{S_OFF}, s{S_OFF}, 0x8000")
    e(f"s_add_u32 s{S_IT}, s{S_IT}, 1")
    for s_ in range(1, 15):
        e(f"s_cmp_eq_u32 s{S_IT}, {s_}")
        e(f"s_cbranch_scc1 L_snip{s_}")
    stamp()
    tile(True)

    e("s_nop 7")
    for ee in range(2):
        for i in range(8):
            e(f"v_cndmask_b32 v{VB+ee*8+i}, v{OA+4*i+ee}, v{OA+4*i+2+ee}, s[{S_MASK}:{S_MASK+1}]")
    for x_ in range(4):
        e(f"ds_write_b128 v{V_WOFF}, {vr(VB+4*x_,4)} offset:{LDS_OP+16*x_}")
    e("s_waitcnt lgkmcnt(0)")
    stamp()
    e("s_barrier")
    MM, LL, OO = QF, QF+4, OA
    e(f"ds_read_b128 {vr(MM,4)}, v{V_XOFF2} offset:{LDS_ML}")
    e(f"ds_read_b128 {vr(LL,4)}, v{V_XOFF2} offset:{LDS_ML+256}")
    for p in range(4):
        e(f"ds_read_b128 {vr(OO+4*p,4)}, v{V_XOFF} offset:{LDS_OP+p*8*OP_ROW}")
    e("s_waitcnt lgkmcnt(4)")
    e(f"v_max3_f32 v{V_T0}, v{MM}, v{MM+1}, v{MM+2}")
    e(f"v_max_f32 v{V_T0}, v{V_T0}, v{MM+3}")
    for p in range(4):
        e(f"v_sub_f32 v{MM+p}, v{MM+p}, v{V_T0}")
    for p in range(4):
        e(f"v_exp_f32 v{MM+p}, v{MM+p}")
    e("s_nop 0")
    e(f"v_mul_f32 v{V_T0}, v{MM}, v{LL}")
    for p in range(1, 4):
        e(f"v_fmac_f32 v{V_T0}, v{MM+p}, v{LL+p}")
    e(f"v_rcp_f32 v{V_T0}, v{V_T0}")
    e("s_nop 0")
    for p in range(4):
        e(f"v_mul_f32 v{MM+p}, v{MM+p}, v{V_T0}")
    e("s_waitcnt lgkmcnt(0)")
    for i in range(4):
        e(f"v_mul_f32 v{OO+i}, v{OO+i}, v{MM}")
    for p in range(1, 4):
        for i in range(4):
            e(f"v_fmac_f32 v{OO+i}, v{OO+4*p+i}, v{MM+p}")
    e(f"v_cvt_pk_bf16_f32 v{PP}, v{OO}, v{OO+1}")
    e(f"v_cvt_pk_bf16_f32 v{PP+1}, v{OO+2}, v{OO+3}")
    e(f"ds_write_b64 v{V_KOFF}, {vr(PP,2)} offset:{LDS_OB}")
    e("s_waitcnt lgkmcnt(0)")
    e("s_barrier")
    stamp()
    e(f"ds_read_b64 {vr(PP,2)}, v{V_T7} offset:{LDS_OB}")
    for u in range(4):
        e(f"ds_read_b128 {vr(QF+4*u,4)}, v{V_VOFF} offset:{LDS_OB+u*128}")
    e("s_waitcnt lgkmcnt(4)")
    for i in range(8):
        e(f"v_mfma_f32_16x16x16_bf16 {vr(VB+4*i,4)}, {vr(W9+2*i,2)}, {vr(PP,2)}, 0")
    ubuf = [WP, WP+32, WP+64, KB]
    for u in range(4):
        e(f"s_waitcnt lgkmcnt({3-u})" if u < 2 else "s_waitcnt lgkmcnt(2)")
        for i in range(8):
            cc = "0" if u == 0 else vr(OA+4*i, 4)
            e(f"v_mfma_f32_16x16x32_bf16 {vr(OA+4*i,4)}, {vr(ubuf[u]+4*i,4)}, {vr(QF+4*u,4)}, {cc}")
        if u == 1:
            e("s_waitcnt lgkmcnt(0)")
            merge(VB, ST)
            e(f"ds_write_b128 v{V_WOFF2}, {vr(ST,4)} offset:{LDS_R9}")
            e(f"ds_write_b128 v{V_WOFF2}, {vr(ST+4,4)} offset:{LDS_R9+16}")
    e("s_waitcnt lgkmcnt(0)")
    e("s_barrier")
    for w_ in range(8):
        e(f"ds_read_b32 v{VB+w_}, v{V_MC} offset:{LDS_R9+w_*8*R9_ROW}")
    merge(OA, W9+8)
    e(f"buffer_store_dwordx4 {vr(W9+8,4)}, v{V_PARK}, s[{S_WS}:{S_WS+3}], 0 offen")
    e(f"buffer_store_dwordx4 {vr(W9+12,4)}, v{V_PARK}, s[{S_WS}:{S_WS+3}], 0 offen offset:16")
    e("s_waitcnt lgkmcnt(0)")
    e(f"v_add_f32 v{VB}, v{VB}, v{VB+1}")
    e(f"v_add_f32 v{VB+2}, v{VB+2}, v{VB+3}")
    e(f"v_add_f32 v{VB+4}, v{VB+4}, v{VB+5}")
    e(f"v_add_f32 v{VB+6}, v{VB+6}, v{VB+7}")
    e(f"v_add_f32 v{VB}, v{VB}, v{VB+2}")
    e(f"v_add_f32 v{VB+4}, v{VB+4}, v{VB+6}")
    e(f"v_add_f32 v{VB}, v{VB}, v{VB+4}")
    e(f"buffer_store_dword v{VB}, v{V_L}, s[{S_WS}:{S_WS+3}], 0 offen")
    if stamps:
        stamp()
        e("s_waitcnt vmcnt(0)")
        stamp()
        if stamps == 'dbg':
            from dbgdump import dbgdump
            dbgdump(e, nst[0], S_WAVE, S_T0)
        else:
            e(f"s_add_u32 s{S_WS}, s42, 0x800000")
            e(f"s_addc_u32 s{S_WS+1}, s43, 0")
            e(f"s_mov_b32 s{S_WS+2}, 0x100000")
            e(f"s_lshl_b32 s{S_T0}, s2, 3")
            e(f"s_add_u32 s{S_T0}, s{S_T0}, s{S_WAVE}")
            e(f"s_lshl_b32 s{S_T0}, s{S_T0}, 6")
            e(f"s_getreg_b32 s{S_T1}, hwreg(HW_REG_XCC_ID)")
            e(f"s_getreg_b32 s{S_T2}, hwreg(HW_REG_HW_ID)")
            e("v_mov_b32 v1, 0")
            for i in range(nst[0]):
                e(f"v_mov_b32 v2, s{64+2*i}")
                e(f"buffer_store_dword v2, v1, s[{S_WS}:{S_WS+3}], s{S_T0} offen offset:{4*i}")
            e(f"v_mov_b32 v2, s{S_T1}")
            e(f"buffer_store_dword v2, v1, s[{S_WS}:{S_WS+3}], s{S_T0} offen offset:56")
            e(f"v_mov_b32 v2, s{S_T2}")
            e(f"buffer_store_dword v2, v1, s[{S_WS}:{S_WS+3}], s{S_T0} offen offset:60")
    e.label("L_end")
    e("s_endpgm")
    for s_ in range(1, 15):
        e.label(f"L_snip{s_}")
        snippet(s_)
        e("s_branch L_loop")

    e.raw(".globl reduce_kernel\n.p2align 8\n.type reduce_kernel,@function\nreduce_kernel:")
    e("s_cmp_ge_u32 s2, 72")
    e("s_cbranch_scc1 L_rend")
    if stamps:
        e("s_memrealtime s[16:17]")
    e("s_load_dwordx2 s[4:5], s[0:1], 56")
    e("s_load_dwordx2 s[8:9], s[0:1], 40")
    e("s_lshl_b32 s3, s2, 8")
    e("v_add_u32 v0, s3, v0")
    e("v_lshlrev_b32 v1, 4, v0")
    e("v_lshlrev_b32 v2, 3, v0")
    e(f"s_mov_b32 s6, {16*294912}")
    e("s_mov_b32 s7, 0x00020000")
    e(f"s_mov_b32 s10, {128*1152}")
    e("s_mov_b32 s11, 0x00020000")
    e("s_waitcnt lgkmcnt(0)")
    for h in range(16):
        e(f"s_mov_b32 s12, {h*294912}")
        e(f"buffer_load_dwordx4 {vr(4+4*h,4)}, v1, s[4:7], s12 offen")
    for h in range(1, 16):
        e(f"s_waitcnt vmcnt({15-h})")
        e(f"v_pk_add_f32 v[4:5], v[4:5], {vr(4+4*h,2)}")
        e(f"v_pk_add_f32 v[6:7], v[6:7], {vr(6+4*h,2)}")
    e("v_cvt_pk_bf16_f32 v4, v4, v5")
    e("v_cvt_pk_bf16_f32 v5, v6, v7")
    e("buffer_store_dwordx2 v[4:5], v2, s[8:11], 0 offen")
    if stamps:
        e("s_waitcnt vmcnt(0)")
        e("s_memrealtime s[18:19]")
        e("s_waitcnt lgkmcnt(0)")
        e("s_add_u32 s4, s4, 0x900000")
        e("s_addc_u32 s5, s5, 0")
        e("s_lshl_b32 s12, s2, 3")
        e("v_mov_b32 v1, 0")
        e("v_mov_b32 v2, s16")
        e("v_mov_b32 v3, s18")
        e("buffer_store_dwordx2 v[2:3], v1, s[4:7], s12 offen")
    e.label("L_rend")
    e("s_endpgm")

    e.raw('.section .rodata,"a"')
    for kn, nv, ns in (("attn_kernel", 256, 96), ("reduce_kernel", 72, 24)):
        e.raw(f""".p2align 6
.amdhsa_kernel {kn}
  .amdhsa_next_free_vgpr {nv}
  .amdhsa_next_free_sgpr {ns}
  .amdhsa_accum_offset {nv}
  .amdhsa_group_segment_fixed_size 0
  .amdhsa_kernarg_size 64
  .amdhsa_user_sgpr_count 2
  .amdhsa_user_sgpr_kernarg_segment_ptr 1
  .amdhsa_system_sgpr_workgroup_id_x 1
.end_amdhsa_kernel""")
    open(name, "w").write(e.text())

if __name__ == "__main__":
    gen("k2.s")
    gen("k2_st.s", stamps=True)
    gen("k2_st_before.s", stamps=True, korder="before")
    gen("k2_st_after.s", stamps=True, korder="after")
    gen("k2_st_norot.s", stamps=True, rot=False)
    gen("k2_st_wodef.s", stamps=True, wopol="")
```

```python
import sys, math, struct
from gen2 import HEADER, E, vr

V_KOFF, V_VOFF, V_QRD, V_OPW, V_MLW, V_OBW, V_T7 = 1, 2, 3, 4, 5, 6, 7
V_MC, V_L, V_AL, V_T0, V_T1, V_T2, V_N, V_G = 8, 9, 10, 11, 12, 13, 14, 15
QF, OA = 16, 32
KB, VB = [64, 128], [96, 160]
TMP, ST, PP, XT = 192, 240, 248, 252
XF, QA, WB, QT, QC = 16, 52, 84, 212, 220
NWB = 4
WF, BF, PA = 8, 200, 232
S_K, S_V, S_WQ, S_X, S_WO, S_WS = 8, 12, 16, 20, 24, 28
S_WAVE, S_HKV, S_BP = 3, 44, 45
S_LO, S_HI, S_C = 46, 47, 48
S_IT, S_OFF, S_T0, S_T1, S_T2, S_T3 = 49, 50, 51, 52, 53, 54
S_TYPE = 55
S_MASK = 56
S_U = 58
OP_ROW = 528; OB_ROW = 528; QP_ROW = 1040
LDS_OP = 0
LDS_ML = 32 * OP_ROW
LDS_OB = LDS_ML + 512
LDS_QP = LDS_OB + 16 * OB_ROW
LDS_TOTAL = LDS_QP + 16 * QP_ROW
NST = 12

def gen(name, pol="nt", wpol="", wopol="", stamps=False, types="ab", kearly=True, vearly=True,
        wog=2, wosleep=0, prio=3, qdepth=3, stpol=""):
    e = E()
    def stamp(i):
        if not stamps: return
        e(f"s_memrealtime s[{64+2*i}:{65+2*i}]")
        e("s_waitcnt lgkmcnt(0)")
    e.raw(HEADER.rstrip("\n"))
    e.raw(f"; @launch kernel=attn_kernel grid=(256,1,1) block=(512,1,1) lds={LDS_TOTAL}")
    e.raw(f"; @launch kernel=reduce_kernel grid=(72,1,1) block=(256,1,1) lds=0")
    if stamps: e.raw(f"; NSTAMPS={NST}")
    e.raw('.amdgcn_target "amdgcn-amd-amdhsa--gfx950"')
    e.raw(".text")
    e.raw(".globl attn_kernel\n.p2align 8\n.type attn_kernel,@function\nattn_kernel:")
    e("s_cmp_ge_u32 s2, 256")
    e("s_cbranch_scc1 L_end")
    stamp(0)
    e("s_load_dwordx8 s[32:39], s[0:1], 0")
    e("s_load_dwordx2 s[40:41], s[0:1], 32")
    e("s_load_dwordx2 s[42:43], s[0:1], 56")
    e("v_lshrrev_b32 v1, 6, v0")
    e("v_and_b32 v0, 63, v0")
    e(f"v_readfirstlane_b32 s{S_WAVE}, v1")
    e(f"v_and_b32 v{V_N}, 15, v0")
    e(f"v_lshrrev_b32 v{V_G}, 4, v0")
    e(f"s_and_b32 s{S_T0}, s2, 7")
    e(f"s_lshl_b32 s{S_HKV}, s{S_T0}, 1")
    e(f"s_bfe_u32 s{S_T0}, s2, 0x10003")
    e(f"s_add_u32 s{S_HKV}, s{S_HKV}, s{S_T0}")
    e(f"s_lshr_b32 s{S_BP}, s2, 4")
    e(f"s_mov_b32 s{S_LO}, 0x05040100")
    e(f"s_mov_b32 s{S_HI}, 0x07060302")
    e(f"s_mov_b32 s{S_MASK}, 0xff00ff00")
    e(f"s_mov_b32 s{S_MASK+1}, 0xff00ff00")
    if stamps:
        for i in range(1, NST): e(f"s_mov_b32 s{64+2*i}, s64")
    e(f"s_cmp_ge_u32 s{S_WAVE}, 4")
    e("s_cbranch_scc1 L_qproj")

    if prio: e(f"s_setprio {prio}")
    e(f"v_lshrrev_b32 v{V_T0}, 2, v{V_N}")
    e(f"v_lshlrev_b32 v{V_T0}, 11, v{V_T0}")
    e(f"v_and_b32 v{V_T1}, 3, v{V_N}")
    e(f"v_lshlrev_b32 v{V_T1}, 8, v{V_T1}")
    e(f"v_lshlrev_b32 v{V_T2}, 4, v{V_G}")
    e(f"v_add3_u32 v{V_KOFF}, v{V_T0}, v{V_T1}, v{V_T2}")
    e(f"v_lshlrev_b32 v{V_T0}, 11, v{V_G}")
    e(f"v_lshl_add_u32 v{V_VOFF}, v{V_N}, 4, v{V_T0}")
    e(f"s_lshl_b32 s{S_T0}, s{S_BP}, 5")
    e(f"s_add_u32 s{S_T0}, s{S_T0}, s{S_HKV}")
    e(f"s_lshl_b32 s{S_T0}, s{S_T0}, 19")
    e(f"s_mov_b32 s{S_K+2}, 0x880000")
    e(f"s_mov_b32 s{S_V+2}, 0x880000")
    e(f"s_mov_b32 s{S_K+3}, 0x00020000")
    e(f"s_mov_b32 s{S_V+3}, 0x00020000")
    e(f"s_lshl_b32 s{S_T1}, s{S_WAVE}, 13")
    e(f"s_add_u32 s{S_T2}, s{S_T1}, 0x8000")
    e(f"s_add_u32 s{S_OFF}, s{S_T1}, 0x10000")
    if types == "ab": e(f"s_and_b32 s{S_TYPE}, s{S_BP}, 1")
    else: e(f"s_mov_b32 s{S_TYPE}, {1 if types == 'b' else 0}")
    e("s_waitcnt lgkmcnt(0)")
    e(f"s_add_u32 s{S_K}, s34, s{S_T0}")
    e(f"s_addc_u32 s{S_K+1}, s35, 0")
    e(f"s_add_u32 s{S_V}, s36, s{S_T0}")
    e(f"s_addc_u32 s{S_V+1}, s37, 0")
    stamp(1)
    def ld_k(buf, soff):
        for sub in range(2):
            for j in range(4):
                e(f"buffer_load_dwordx4 {vr(buf+(sub*4+j)*4,4)}, v{V_KOFF}, s[{S_K}:{S_K+3}], {soff} offen offset:{sub*1024+j*64} {pol}")
    def ld_v(buf, soff):
        for t in range(8):
            e(f"buffer_load_dwordx4 {vr(buf+t*4,4)}, v{V_VOFF}, s[{S_V}:{S_V+3}], {soff} offen offset:{t*256} {pol}")
    e(f"s_cmp_lg_u32 s{S_TYPE}, 0")
    e("s_cbranch_scc1 L_first")
    e("s_barrier")
    e.label("L_first")
    ld_k(KB[0], f"s{S_T1}"); ld_v(VB[0], f"s{S_T1}"); ld_k(KB[1], f"s{S_T2}"); ld_v(VB[1], f"s{S_T2}")
    stamp(2)
    c = math.log2(math.e) / math.sqrt(128.0)
    cbits = struct.unpack("<I", struct.pack("<f", c))[0]
    e(f"s_mov_b32 s{S_C}, 0x{cbits:08x}")
    e(f"v_and_b32 v{V_T1}, 3, v{V_N}")
    e(f"v_mul_u32_u24 v{V_T0}, {QP_ROW}, v{V_T1}")
    e(f"v_bfe_u32 v{V_T2}, v{V_N}, 2, 1")
    e(f"v_lshl_add_u32 v{V_T0}, v{V_T2}, 9, v{V_T0}")
    e(f"v_lshl_add_u32 v{V_QRD}, v{V_G}, 5, v{V_T0}")
    e(f"v_lshrrev_b32 v{V_T7}, 3, v{V_N}")
    e(f"v_lshl_add_u32 v{V_T7}, v{V_G}, 1, v{V_T7}")
    e(f"v_mul_u32_u24 v{V_T0}, {OB_ROW}, v{V_T1}")
    e(f"v_lshl_add_u32 v{V_T0}, v{V_T2}, 8, v{V_T0}")
    e(f"v_lshl_add_u32 v{V_T0}, v{V_T7}, 5, v{V_T0}")
    e(f"s_mul_i32 s{S_T0}, s{S_WAVE}, {8*OB_ROW}")
    e(f"s_add_u32 s{S_T3}, s{S_T0}, {LDS_OB + 4*OB_ROW}")
    e(f"v_add_u32 v{V_OBW}, s{S_T3}, v{V_T0}")
    e(f"v_and_b32 v{V_T2}, 7, v{V_N}")
    e(f"v_mul_u32_u24 v{V_T0}, {OP_ROW}, v{V_T2}")
    e(f"v_lshl_add_u32 v{V_T0}, v{V_T7}, 6, v{V_T0}")
    e(f"v_add_u32 v{V_OPW}, s{S_T0}, v{V_T0}")
    e(f"v_lshlrev_b32 v{V_T7}, 4, v{V_T2}")
    e(f"s_lshl_b32 s{S_T0}, s{S_WAVE}, 2")
    e(f"v_add_u32 v{V_MLW}, s{S_T0}, v{V_T7}")
    e(f"s_mov_b32 s{S_IT}, 0")
    e(f"s_cmp_eq_u32 s{S_TYPE}, 0")
    e("s_cbranch_scc1 L_bar2")
    e("s_barrier")
    e.label("L_bar2")
    e("s_barrier")
    stamp(3)
    e.label("L_qload")
    for j in range(4):
        for ee in range(2):
            for h in range(2):
                e(f"ds_read_b128 {vr(TMP+j*16+ee*8+h*4,4)}, v{V_QRD} offset:{LDS_QP+ee*8*QP_ROW+j*128+h*16}")
    for i in range(32):
        e(f"v_mov_b32 v{OA+i}, 0")
    e(f"v_mov_b32 v{V_MC}, 0xf149f2ca")
    e(f"v_mov_b32 v{V_L}, 0")
    e(f"v_add_u32 v{V_QRD}, {4*QP_ROW}, v{V_QRD}")
    for j in range(4):
        e(f"s_waitcnt lgkmcnt({12-4*j})")
        for i in range(4):
            e(f"v_pk_add_f32 {vr(TMP+j*16+2*i,2)}, {vr(TMP+j*16+2*i,2)}, {vr(TMP+j*16+8+2*i,2)}")
        for i in range(4):
            e(f"v_cvt_pk_bf16_f32 v{QF+j*4+i}, v{TMP+j*16+2*i}, v{TMP+j*16+2*i+1}")
    e(f"v_mov_b32 v{XT}, 0xf149f2ca")
    e(f"s_cmp_lg_u32 s{S_IT}, 0")
    e("s_cbranch_scc1 L_loop")
    stamp(4)
    e(f"s_cmp_ge_u32 s{S_WAVE}, 2")
    e("s_cbranch_scc1 L_extra")

    def unit_mma(buf, bfrag, acc, first, T0):
        def perms(i):
            w_, h = i >> 1, i & 1
            sel = S_HI if h else S_LO
            T = T0 + (i & 1) * 4
            for u_ in range(4):
                e(f"v_perm_b32 v{T+u_}, v{buf+(2*u_+1)*4+w_}, v{buf+(2*u_)*4+w_}, s{sel}")
        perms(0)
        for i in range(8):
            if i + 1 < 8: perms(i + 1)
            else: e("s_nop 1")
            T = T0 + (i & 1) * 4
            cc = "0" if first else vr(acc+4*i, 4)
            e(f"v_mfma_f32_16x16x32_bf16 {vr(acc+4*i,4)}, {vr(T,4)}, {vr(bfrag,4)}, {cc}")
    def adv():
        e(f"s_add_u32 s{S_OFF}, s{S_OFF}, 0x4000")
        e(f"s_bitcmp1_b32 s{S_OFF}, 19")
        e(f"s_cselect_b32 s{S_T0}, 0x780000, 0")
        e(f"s_add_u32 s{S_OFF}, s{S_OFF}, s{S_T0}")
    def lreduce():
        e(f"v_mov_b32 v{V_T1}, v{V_L}")
        e("s_nop 1")
        e(f"v_permlane32_swap_b32 v{V_L}, v{V_T1}")
        e(f"v_add_f32 v{V_L}, v{V_L}, v{V_T1}")
        e(f"v_mov_b32 v{V_T1}, v{V_L}")
        e("s_nop 1")
        e(f"v_permlane16_swap_b32 v{V_L}, v{V_T1}")
        e(f"v_add_f32 v{V_L}, v{V_L}, v{V_T1}")
    def compress(acc, dst):
        for ee in range(2):
            for i in range(8):
                e(f"v_cndmask_b32 v{dst+ee*8+i}, v{acc+4*i+ee}, v{acc+4*i+2+ee}, s[{S_MASK}:{S_MASK+1}]")

    def tile(p, wk, wv, kis=None, vis=None, last=False):
        kb, vb = KB[p], VB[p]
        e(f"s_waitcnt vmcnt({wk})")
        if kis and kis[0] == "early": ld_k(kis[1], f"s{S_OFF}")
        for j in range(4):
            for sub in range(2):
                cc = "0" if j == 0 else vr(ST+sub*4, 4)
                e(f"v_mfma_f32_16x16x32_bf16 {vr(ST+sub*4,4)}, {vr(kb+(sub*4+j)*4,4)}, {vr(QF+j*4,4)}, {cc}")
        if kis and kis[0] == "late": ld_k(kis[1], f"s{S_OFF}")
        else: e("s_nop 7")
        e("s_nop 1")
        S = [ST+i for i in range(8)]
        e(f"v_max3_f32 v{V_T0}, v{S[0]}, v{S[1]}, v{S[2]}")
        e(f"v_max3_f32 v{V_T1}, v{S[3]}, v{S[4]}, v{S[5]}")
        e(f"v_max3_f32 v{V_T2}, v{S[6]}, v{S[7]}, v{XT}")
        e(f"v_max3_f32 v{V_T0}, v{V_T0}, v{V_T1}, v{V_T2}")
        e(f"v_mov_b32 v{V_T1}, v{V_T0}")
        e("s_nop 1")
        e(f"v_permlane32_swap_b32 v{V_T0}, v{V_T1}")
        e(f"v_max_f32 v{V_T0}, v{V_T0}, v{V_T1}")
        e(f"v_mov_b32 v{V_T1}, v{V_T0}")
        e("s_nop 1")
        e(f"v_permlane16_swap_b32 v{V_T0}, v{V_T1}")
        e(f"v_max_f32 v{XT}, v{V_T0}, v{V_T1}")
        e(f"v_mul_f32 v{V_T0}, s{S_C}, v{XT}")
        e(f"v_sub_f32 v{V_AL}, v{V_MC}, v{V_T0}")
        e(f"v_exp_f32 v{V_AL}, v{V_AL}")
        e(f"v_mov_b32 v{V_MC}, v{V_T0}")
        for i in range(8):
            e(f"v_fma_f32 v{S[i]}, v{S[i]}, s{S_C}, -v{V_MC}")
        for i in range(8):
            e(f"v_exp_f32 v{S[i]}, v{S[i]}")
        def rescale():
            for i in range(16):
                e(f"v_pk_mul_f32 {vr(OA+2*i,2)}, {vr(OA+2*i,2)}, {vr(V_AL,2)} op_sel_hi:[1,0]")
        if not last: rescale()
        e(f"v_mul_f32 v{V_L}, v{V_L}, v{V_AL}")
        for i in range(4):
            e(f"v_cvt_pk_bf16_f32 v{PP+i}, v{S[2*i]}, v{S[2*i+1]}")
        e(f"v_add_f32 v{V_T0}, v{S[0]}, v{S[1]}")
        e(f"v_add_f32 v{V_T1}, v{S[2]}, v{S[3]}")
        e(f"v_add_f32 v{V_T2}, v{S[4]}, v{S[5]}")
        e(f"v_add_f32 v{V_T0}, v{V_T0}, v{V_T1}")
        e(f"v_add_f32 v{V_T1}, v{S[6]}, v{S[7]}")
        e(f"v_add_f32 v{V_T2}, v{V_T2}, v{V_T1}")
        e(f"v_add_f32 v{V_L}, v{V_L}, v{V_T0}")
        e(f"v_add_f32 v{V_L}, v{V_L}, v{V_T2}")
        if last:
            lreduce()
            e(f"ds_write_b32 v{V_MLW}, v{V_MC} offset:{LDS_ML+128}")
            e(f"ds_write_b32 v{V_MLW}, v{V_L} offset:{LDS_ML+256+128}")
            rescale()
            e("s_waitcnt lgkmcnt(0)")
            stamp(6)
            e("s_barrier")
            M0, L0 = TMP, TMP+2
            e(f"ds_read_b64 {vr(M0,2)}, v{V_T7} offset:{LDS_ML+128}")
            e(f"ds_read_b64 {vr(L0,2)}, v{V_T7} offset:{LDS_ML+256+128}")
            e("s_waitcnt lgkmcnt(0)")
            e(f"v_max_f32 v{V_T0}, v{M0}, v{M0+1}")
            e(f"v_sub_f32 v{M0}, v{M0}, v{V_T0}")
            e(f"v_sub_f32 v{M0+1}, v{M0+1}, v{V_T0}")
            e(f"v_sub_f32 v{V_AL}, v{V_MC}, v{V_T0}")
            e(f"v_exp_f32 v{M0}, v{M0}")
            e(f"v_exp_f32 v{M0+1}, v{M0+1}")
            e(f"v_exp_f32 v{V_AL}, v{V_AL}")
            e(f"v_mul_f32 v{V_T0}, v{M0}, v{L0}")
            e(f"v_fmac_f32 v{V_T0}, v{M0+1}, v{L0+1}")
            e(f"v_rcp_f32 v{V_T0}, v{V_T0}")
            e("s_nop 0")
            e(f"v_mul_f32 v{V_AL}, v{V_AL}, v{V_T0}")
        e(f"s_waitcnt vmcnt({wv})")
        if last: stamp(7)
        if vis and vis[0] == "early": ld_v(vis[1], f"s{S_OFF}")
        unit_mma(vb, PP, OA, False, ST)
        if vis and vis[0] == "late": ld_v(vis[1], f"s{S_OFF}")
        if vis: adv()

    kw = "early" if kearly else "late"
    vw = "early" if vearly else "late"
    tile(0, 24, 24, ("late", KB[0]), ("late", VB[0]))
    tile(1, 24, 16)
    e.label("L_loop")
    tile(0, 8, 8, (kw, KB[1]), (vw, VB[1]))
    e(f"s_cmp_eq_u32 s{S_IT}, 29")
    e("s_cbranch_scc1 L_last")
    tile(1, 8, 8, (kw, KB[0]), (vw, VB[0]))
    e(f"s_add_u32 s{S_IT}, s{S_IT}, 1")
    e(f"s_cmp_lg_u32 s{S_IT}, 14")
    e("s_cbranch_scc1 L_loop")
    stamp(5)
    e.label("L_flush")
    lreduce()
    e(f"ds_write_b32 v{V_MLW}, v{V_MC} offset:{LDS_ML}")
    e(f"ds_write_b32 v{V_MLW}, v{V_L} offset:{LDS_ML+256}")
    e("s_nop 4")
    compress(OA, TMP)
    for x_ in range(4):
        e(f"ds_write_b128 v{V_OPW}, {vr(TMP+4*x_,4)} offset:{LDS_OP+16*x_}")
    e("s_waitcnt lgkmcnt(0)")
    e(f"s_cmp_lt_u32 s{S_WAVE}, 2")
    e("s_cbranch_scc1 L_qload")
    e("s_setprio 0")
    e("s_branch L_wo")
    e.label("L_extra")
    tile(0, 24, 16)
    tile(1, 8, 0)
    e("s_branch L_flush")
    e.label("L_last")
    tile(1, 8, 0, last=True)
    e("s_nop 7")
    compress(OA, TMP)
    for i in range(8):
        e(f"v_pk_mul_f32 {vr(TMP+2*i,2)}, {vr(TMP+2*i,2)}, {vr(V_AL,2)} op_sel_hi:[1,0]")
    for i in range(8):
        e(f"v_cvt_pk_bf16_f32 v{TMP+16+i}, v{TMP+2*i}, v{TMP+2*i+1}")
    e(f"ds_write_b128 v{V_OBW}, {vr(TMP+16,4)}")
    e(f"ds_write_b128 v{V_OBW}, {vr(TMP+20,4)} offset:16")
    e("s_waitcnt lgkmcnt(0)")
    stamp(8)
    e("s_barrier")
    if stamps:
        stamp(9); stamp(10); stamp(11)
        e("s_branch L_dump")
    else:
        e("s_endpgm")

    e.label("L_qproj")
    V_WOFF, V_XOFF, V_QW = 1, 2, 3
    e(f"v_lshlrev_b32 v{V_T0}, 16, v{V_G}")
    e(f"v_lshl_add_u32 v{V_WOFF}, v{V_N}, 4, v{V_T0}")
    e(f"v_and_b32 v{V_T1}, 7, v{V_N}")
    e(f"v_mul_u32_u24 v{V_T0}, 1152, v{V_T1}")
    e(f"v_lshl_add_u32 v{V_XOFF}, v{V_G}, 4, v{V_T0}")
    e(f"s_mov_b32 s{S_WQ+3}, 0x00020000")
    e(f"s_mov_b32 s{S_X+3}, 0x00020000")
    e(f"s_and_b32 s{S_T1}, s{S_WAVE}, 1")
    e(f"s_bfe_u32 s{S_T3}, s{S_WAVE}, 0x10001")
    e(f"s_mul_i32 s{S_T2}, s{S_T1}, {288*8192}")
    e(f"s_lshl_b32 s{S_T0}, s{S_HKV}, 9")
    e(f"s_add_u32 s{S_T2}, s{S_T2}, s{S_T0}")
    e(f"s_lshl_b32 s{S_T0}, s{S_T3}, 8")
    e(f"s_add_u32 s{S_T2}, s{S_T2}, s{S_T0}")
    e(f"s_sub_u32 s{S_WQ+2}, {576*8192}, s{S_T2}")
    e(f"s_mul_i32 s{S_IT}, s{S_T1}, 576")
    e(f"s_mul_i32 s{S_T0}, s{S_BP}, {8*1152}")
    e(f"s_add_u32 s{S_IT}, s{S_IT}, s{S_T0}")
    e(f"s_sub_u32 s{S_X+2}, {128*1152}, s{S_IT}")
    e(f"s_lshr_b32 s{S_U}, s{S_BP}, 1")
    e("s_waitcnt lgkmcnt(0)")
    e(f"s_add_u32 s{S_X}, s32, s{S_IT}")
    e(f"s_addc_u32 s{S_X+1}, s33, 0")
    e(f"s_add_u32 s{S_WQ}, s38, s{S_T2}")
    e(f"s_addc_u32 s{S_WQ+1}, s39, 0")
    stamp(1)
    def q_issue(s_):
        buf = WB + 32 * (s_ % NWB)
        e(f"s_lshl_b32 s{S_OFF}, s{S_U}, 6")
        e(f"buffer_load_dwordx4 {vr(XF+4*s_,4)}, v{V_XOFF}, s[{S_X}:{S_X+3}], s{S_OFF} offen")
        e(f"s_lshl_b32 s{S_OFF}, s{S_U}, 18")
        for t in range(8):
            e(f"buffer_load_dwordx4 {vr(buf+4*t,4)}, v{V_WOFF}, s[{S_WQ}:{S_WQ+3}], s{S_OFF} offen {wpol}")
            if t < 7: e(f"s_add_u32 s{S_OFF}, s{S_OFF}, 8192")
        if s_ < 8:
            e(f"s_add_u32 s{S_U}, s{S_U}, 1")
            e(f"s_cmp_eq_u32 s{S_U}, 9")
            e(f"s_cselect_b32 s{S_U}, 0, s{S_U}")
        else:
            stamp(2)
            e("s_barrier")
    for s_ in range(qdepth): q_issue(s_)
    e(f"v_mul_u32_u24 v{V_T0}, {QP_ROW}, v{V_T1}")
    e(f"v_lshrrev_b32 v{V_T2}, 3, v{V_N}")
    e(f"v_lshl_add_u32 v{V_T2}, v{V_G}, 1, v{V_T2}")
    e(f"v_lshl_add_u32 v{V_T0}, v{V_T2}, 6, v{V_T0}")
    e(f"s_mul_i32 s{S_T0}, s{S_T1}, {8*QP_ROW}")
    e(f"s_lshl_b32 s{S_T3}, s{S_T3}, 9")
    e(f"s_add_u32 s{S_T0}, s{S_T0}, s{S_T3}")
    e(f"v_add_u32 v{V_QW}, s{S_T0}, v{V_T0}")
    assert qdepth < NWB
    for s_ in range(9):
        nxt = s_ + qdepth
        inflight = min(9, nxt) - s_ - 1
        e(f"s_waitcnt vmcnt({9*inflight})")
        if nxt < 9: q_issue(nxt)
        unit_mma(WB + 32 * (s_ % NWB), XF + 4*s_, QA, s_ == 0, QT)
    e("s_nop 7")
    compress(QA, QC)
    for x_ in range(4):
        e(f"ds_write_b128 v{V_QW}, {vr(QC+4*x_,4)} offset:{LDS_QP+16*x_}")
    e("s_waitcnt lgkmcnt(0)")
    stamp(3)
    e("s_barrier")
    stamp(4)

    e.label("L_wo")
    V_WO, V_OPR, V_MLR, V_OBC, V_BRD, V_STO = 1, 2, 3, 4, 5, 6
    A0, A1, A2, AN, AG = 232, 233, 234, 235, 236
    e(f"v_and_b32 v{AN}, 15, v0")
    e(f"v_lshrrev_b32 v{AG}, 4, v0")
    e(f"s_sub_u32 s{S_T3}, s{S_WAVE}, 2")
    e(f"v_mul_u32_u24 v{A0}, {8*1152}, v{AG}")
    e(f"v_mul_u32_u24 v{A1}, 12, v{AN}")
    e(f"s_mul_i32 s{S_T0}, s{S_T3}, 192")
    e(f"v_add3_u32 v{V_WO}, v{A0}, v{A1}, s{S_T0}")
    e(f"s_mul_i32 s{S_T0}, s{S_HKV}, {256*1152}")
    e(f"s_add_u32 s{S_WO}, s40, s{S_T0}")
    e(f"s_addc_u32 s{S_WO+1}, s41, 0")
    e(f"s_mov_b32 s{S_WO+2}, {256*1152}")
    e(f"s_mov_b32 s{S_WO+3}, 0x00020000")
    e(f"s_mul_i32 s{S_T0}, s{S_HKV}, {128*2304}")
    e(f"s_mul_i32 s{S_T1}, s{S_BP}, {8*2304}")
    e(f"s_add_u32 s{S_T0}, s{S_T0}, s{S_T1}")
    e(f"s_add_u32 s{S_WS}, s42, s{S_T0}")
    e(f"s_addc_u32 s{S_WS+1}, s43, 0")
    e(f"s_mov_b32 s{S_WS+2}, {8*2304}")
    e(f"s_mov_b32 s{S_WS+3}, 0x00020000")
    e(f"v_mul_u32_u24 v{A0}, {OB_ROW}, v{AN}")
    e(f"v_lshl_add_u32 v{V_BRD}, v{AG}, 4, v{A0}")
    e(f"v_and_b32 v{A0}, 7, v{AN}")
    e(f"v_mul_u32_u24 v{A0}, 2304, v{A0}")
    e(f"v_lshrrev_b32 v{A1}, 3, v{AN}")
    e(f"v_lshl_add_u32 v{A1}, v{AG}, 1, v{A1}")
    e(f"v_mul_u32_u24 v{A1}, 48, v{A1}")
    e(f"s_mul_i32 s{S_T0}, s{S_T3}, 384")
    e(f"v_add3_u32 v{V_STO}, v{A0}, v{A1}, s{S_T0}")
    e(f"v_lshrrev_b32 v{A1}, 5, v0")
    e(f"s_and_b32 s{S_T1}, s{S_WAVE}, 3")
    e(f"s_lshl_b32 s{S_T1}, s{S_T1}, 1")
    e(f"v_add_u32 v{A1}, s{S_T1}, v{A1}")
    e(f"v_and_b32 v{A2}, 31, v0")
    e(f"v_mul_u32_u24 v{V_OPR}, {OP_ROW}, v{A1}")
    e(f"v_lshl_add_u32 v{V_OPR}, v{A2}, 4, v{V_OPR}")
    e(f"v_lshlrev_b32 v{V_MLR}, 4, v{A1}")
    e(f"v_and_b32 v{A0}, 3, v{A1}")
    e(f"v_mul_u32_u24 v{A0}, {OB_ROW}, v{A0}")
    e(f"v_lshrrev_b32 v{A1}, 2, v{A1}")
    e(f"v_lshl_add_u32 v{A0}, v{A1}, 8, v{A0}")
    e(f"v_lshl_add_u32 v{V_OBC}, v{A2}, 3, v{A0}")
    e(f"s_cmp_ge_u32 s{S_WAVE}, 4")
    e("s_cbranch_scc1 L_nozero")
    for i in range(4): e(f"v_mov_b32 v{240+i}, 0")
    e(f"ds_write_b128 v{V_OPR}, v[240:243] offset:{LDS_OB+4*OB_ROW}")
    e.label("L_nozero")
    for j in range(8):
        for t in range(8):
            if t % 4 == 0: e(f"s_mov_b32 s{S_T0}, {(32*j+t)*1152}")
            e(f"buffer_load_dwordx3 {vr(BF+4*t,3)}, v{V_WO}, s[{S_WO}:{S_WO+3}], s{S_T0} offen offset:{(t%4)*1152} {wopol}")
            if (t + 1) % wog == 0:
                e("s_waitcnt vmcnt(0)")
                if wosleep: e(f"s_sleep {wosleep}")
        for i in range(6):
            w_, h = i >> 1, i & 1
            sel = S_HI if h else S_LO
            for u_ in range(4):
                e(f"v_perm_b32 v{WF+(j*6+i)*4+u_}, v{BF+(2*u_+1)*4+w_}, v{BF+(2*u_)*4+w_}, s{sel}")
    e("s_waitcnt lgkmcnt(0)")
    stamp(6)
    e("s_barrier")
    stamp(7)
    e(f"s_cmp_lt_u32 s{S_WAVE}, 4")
    e("s_cbranch_scc1 L_barB")
    MM, LL, OO, CT = BF, BF+4, BF+8, 7
    e(f"ds_read_b128 {vr(MM,4)}, v{V_MLR} offset:{LDS_ML}")
    e(f"ds_read_b128 {vr(LL,4)}, v{V_MLR} offset:{LDS_ML+256}")
    for p in range(4):
        e(f"ds_read_b128 {vr(OO+4*p,4)}, v{V_OPR} offset:{LDS_OP+p*8*OP_ROW}")
    e("s_waitcnt lgkmcnt(4)")
    e(f"v_max3_f32 v{CT}, v{MM}, v{MM+1}, v{MM+2}")
    e(f"v_max_f32 v{CT}, v{CT}, v{MM+3}")
    for p in range(4): e(f"v_sub_f32 v{MM+p}, v{MM+p}, v{CT}")
    for p in range(4): e(f"v_exp_f32 v{MM+p}, v{MM+p}")
    e("s_nop 0")
    e(f"v_mul_f32 v{CT}, v{MM}, v{LL}")
    for p in range(1, 4): e(f"v_fmac_f32 v{CT}, v{MM+p}, v{LL+p}")
    e(f"v_rcp_f32 v{CT}, v{CT}")
    e("s_nop 0")
    for p in range(4): e(f"v_mul_f32 v{MM+p}, v{MM+p}, v{CT}")
    e("s_waitcnt lgkmcnt(0)")
    for i in range(4): e(f"v_mul_f32 v{OO+i}, v{OO+i}, v{MM}")
    for p in range(1, 4):
        for i in range(4): e(f"v_fmac_f32 v{OO+i}, v{OO+4*p+i}, v{MM+p}")
    e(f"v_cvt_pk_bf16_f32 v{LL}, v{OO}, v{OO+1}")
    e(f"v_cvt_pk_bf16_f32 v{LL+1}, v{OO+2}, v{OO+3}")
    e(f"ds_write_b64 v{V_OBC}, {vr(LL,2)} offset:{LDS_OB}")
    e("s_waitcnt lgkmcnt(0)")
    e.label("L_barB")
    stamp(8)
    e("s_barrier")
    stamp(9)
    for j in range(8):
        e(f"ds_read_b128 {vr(BF+4*j,4)}, v{V_BRD} offset:{LDS_OB+j*64}")
    for j in range(8):
        e(f"s_waitcnt lgkmcnt({7-j})")
        for i in range(6):
            cc = "0" if j == 0 else vr(PA+4*i, 4)
            e(f"v_mfma_f32_16x16x32_bf16 {vr(PA+4*i,4)}, {vr(WF+(j*6+i)*4,4)}, {vr(BF+4*j,4)}, {cc}")
    e("s_nop 7")
    for rr in range(2):
        for i in range(6):
            d = WF + rr*6 + i
            e(f"v_add_f32_dpp v{d}, v{PA+4*i+rr}, v{PA+4*i+rr} row_ror:8 row_mask:0xf bank_mask:0x3")
            e(f"v_add_f32_dpp v{d}, v{PA+4*i+2+rr}, v{PA+4*i+2+rr} row_ror:8 row_mask:0xf bank_mask:0xc")
    for x_ in range(3):
        e(f"buffer_store_dwordx4 {vr(WF+4*x_,4)}, v{V_STO}, s[{S_WS}:{S_WS+3}], 0 offen offset:{16*x_} {stpol}")
    if stamps:
        stamp(10)
        e("s_waitcnt vmcnt(0)")
        stamp(11)
        e.label("L_dump")
        e(f"s_add_u32 s{S_WS}, s42, 0x800000")
        e(f"s_addc_u32 s{S_WS+1}, s43, 0")
        e(f"s_mov_b32 s{S_WS+2}, 0x100000")
        e(f"s_mov_b32 s{S_WS+3}, 0x00020000")
        e(f"s_lshl_b32 s{S_T0}, s2, 3")
        e(f"s_add_u32 s{S_T0}, s{S_T0}, s{S_WAVE}")
        e(f"s_lshl_b32 s{S_T0}, s{S_T0}, 6")
        e("v_mov_b32 v1, 0")
        for i in range(NST):
            e(f"v_mov_b32 v2, s{64+2*i}")
            e(f"buffer_store_dword v2, v1, s[{S_WS}:{S_WS+3}], s{S_T0} offen offset:{4*i}")
    e.label("L_end")
    e("s_endpgm")

    e.raw(".globl reduce_kernel\n.p2align 8\n.type reduce_kernel,@function\nreduce_kernel:")
    e("s_cmp_ge_u32 s2, 72")
    e("s_cbranch_scc1 L_rend")
    if stamps:
        e("s_memrealtime s[16:17]")
    e("s_load_dwordx2 s[4:5], s[0:1], 56")
    e("s_load_dwordx2 s[8:9], s[0:1], 40")
    e("s_lshl_b32 s3, s2, 8")
    e("v_add_u32 v0, s3, v0")
    e("v_lshlrev_b32 v1, 4, v0")
    e("v_lshlrev_b32 v2, 3, v0")
    e(f"s_mov_b32 s6, {16*294912}")
    e("s_mov_b32 s7, 0x00020000")
    e(f"s_mov_b32 s10, {128*1152}")
    e("s_mov_b32 s11, 0x00020000")
    e("s_waitcnt lgkmcnt(0)")
    for h in range(16):
        e(f"s_mov_b32 s12, {h*294912}")
        e(f"buffer_load_dwordx4 {vr(4+4*h,4)}, v1, s[4:7], s12 offen")
    for h in range(1, 16):
        e(f"s_waitcnt vmcnt({15-h})")
        e(f"v_pk_add_f32 v[4:5], v[4:5], {vr(4+4*h,2)}")
        e(f"v_pk_add_f32 v[6:7], v[6:7], {vr(6+4*h,2)}")
    e("v_cvt_pk_bf16_f32 v4, v4, v5")
    e("v_cvt_pk_bf16_f32 v5, v6, v7")
    e("buffer_store_dwordx2 v[4:5], v2, s[8:11], 0 offen")
    if stamps:
        e("s_waitcnt vmcnt(0)")
        e("s_memrealtime s[18:19]")
        e("s_waitcnt lgkmcnt(0)")
        e("s_add_u32 s4, s4, 0x900000")
        e("s_addc_u32 s5, s5, 0")
        e("s_lshl_b32 s12, s2, 3")
        e("v_mov_b32 v1, 0")
        e("v_mov_b32 v2, s16")
        e("v_mov_b32 v3, s18")
        e("buffer_store_dwordx2 v[2:3], v1, s[4:7], s12 offen")
    e.label("L_rend")
    e("s_endpgm")

    e.raw('.section .rodata,"a"')
    for kn, nv, ns in (("attn_kernel", 256, 96), ("reduce_kernel", 72, 24)):
        e.raw(f""".p2align 6
.amdhsa_kernel {kn}
  .amdhsa_next_free_vgpr {nv}
  .amdhsa_next_free_sgpr {ns}
  .amdhsa_accum_offset {nv}
  .amdhsa_group_segment_fixed_size 0
  .amdhsa_kernarg_size 64
  .amdhsa_user_sgpr_count 2
  .amdhsa_user_sgpr_kernarg_segment_ptr 1
  .amdhsa_system_sgpr_workgroup_id_x 1
.end_amdhsa_kernel""")
    open(name, "w").write(e.text())
    return name

if __name__ == "__main__":
    L = [gen("k3.s"), gen("k3_st.s", stamps=True), gen("k3_st_a.s", stamps=True, types="a"), gen("k3_st_b.s", stamps=True, types="b"),
         gen("k3_st_late.s", stamps=True, kearly=False, vearly=False), gen("k3_st_sl.s", stamps=True, wosleep=16)]
    print(" ".join(L))
    import json; print(json.dumps(["work/"+x for x in L]))
```

```python
import sys, math, struct
from gen2 import HEADER, E, vr

KN = "standalone__gqa_block_cached__sampling_kernel"
V_KOFF, V_VOFF, V_QRD, V_OPW, V_MLW, V_OBW, V_XW = 1, 2, 3, 4, 5, 6, 7
V_MC, V_L, V_AL, V_T0, V_T1, V_T2, V_N, V_G = 8, 9, 10, 11, 12, 13, 14, 15
QF, XT, V_XR, V_Z, V_LR, OA = 16, 24, 25, 26, 28, 32
KB, VB = [64, 128], [96, 160]
TMP, ST, PT, PP, SS = 192, 224, 240, 248, 252
XF, XB, QA, WB = 16, 36, 44, 76
WF, BF, PA = 8, 200, 232
S_K, S_V, S_WQ, S_X, S_WO, S_WS = 8, 12, 16, 20, 24, 28
S_OUT, S_DBG = 8, 12
S_WAVE, S_HKV, S_BP = 3, 48, 49
S_LO, S_HI, S_C = 50, 51, 52
S_IT, S_OFF, S_T0, S_T1, S_T2, S_T3 = 53, 54, 55, 56, 57, 58
S_NPRE = 59
S_MASK = 60
S_U, S_LIM = 62, 63
S_CAP = 62
OP_ROW = 528; OB_ROW = 528; QP_ROW = 1040
LDS_ML = 131072
LDS_XCH = LDS_ML + 256
LDS_FLAG = LDS_XCH + 256
LDS_OB = LDS_FLAG + 16
LDS_QP = LDS_OB + 16 * OB_ROW
LDS_TOTAL = LDS_QP + 16 * QP_ROW
NST = 12
GRP = 48 * 8192

def gen(name, pol="nt", wpol="", wopol="", stamps=False, npre=(0, 3), Es=(4, 4), kearly=True, vearly=True,
        wog=2, prio=(3, 2), qdepth=3, nwb=4, wostart=2, dry=True, dryl=True, bar1=8, nwarm=1,
        slp=(24, 16, 8, 4), qprio=3, kprio0=1):
    e = E()
    QT = WB + 32 * nwb
    SB = LDS_ML
    def stamp(i):
        if not stamps: return
        e(f"s_memrealtime s[{64+2*i}:{65+2*i}]")
        e("s_waitcnt lgkmcnt(0)")
    def table(vals):
        t = 0
        for i in range(8): t |= vals[i % len(vals)] << (4 * i)
        return t
    e.raw(HEADER.rstrip("\n"))
    e.raw(f"; @launch grid=(256,1,1) block=(512,1,1) lds={LDS_TOTAL}")
    if stamps: e.raw(f"; NSTAMPS={NST}")
    e.raw('.amdgcn_target "amdgcn-amd-amdhsa--gfx950"')
    e.raw(".text")
    e.raw(f".globl {KN}\n.p2align 8\n.type {KN},@function\n{KN}:")
    e("s_cmp_ge_u32 s2, 256")
    e("s_cbranch_scc1 L_end")
    stamp(0)
    e("s_load_dwordx8 s[32:39], s[0:1], 0")
    e("s_load_dwordx8 s[40:47], s[0:1], 32")
    e("v_lshrrev_b32 v1, 6, v0")
    e("v_and_b32 v0, 63, v0")
    e(f"v_readfirstlane_b32 s{S_WAVE}, v1")
    e(f"v_and_b32 v{V_N}, 15, v0")
    e(f"v_lshrrev_b32 v{V_G}, 4, v0")
    e(f"s_and_b32 s{S_T0}, s2, 7")
    e(f"s_lshl_b32 s{S_HKV}, s{S_T0}, 1")
    e(f"s_bfe_u32 s{S_T0}, s2, 0x10003")
    e(f"s_add_u32 s{S_HKV}, s{S_HKV}, s{S_T0}")
    e(f"s_lshr_b32 s{S_BP}, s2, 4")
    if stamps:
        for i in range(1, NST): e(f"s_mov_b32 s{64+2*i}, s64")
    e(f"s_cmp_lt_u32 s{S_WAVE}, 4")
    e("s_cbranch_scc1 L_kv")

    def consts():
        e(f"s_mov_b32 s{S_LO}, 0x05040100")
        e(f"s_mov_b32 s{S_HI}, 0x07060302")
        e(f"s_mov_b32 s{S_MASK}, 0xff00ff00")
        e(f"s_mov_b32 s{S_MASK+1}, 0xff00ff00")
    def unit_mma(buf, bfrag, acc, first, T0):
        def perms(i):
            w_, h = i >> 1, i & 1
            sel = S_HI if h else S_LO
            T = T0 + (i & 1) * 4
            for u_ in range(4):
                e(f"v_perm_b32 v{T+u_}, v{buf+(2*u_+1)*4+w_}, v{buf+(2*u_)*4+w_}, s{sel}")
        perms(0)
        for i in range(8):
            if i + 1 < 8: perms(i + 1)
            else: e("s_nop 1")
            T = T0 + (i & 1) * 4
            cc = "0" if first else vr(acc+4*i, 4)
            e(f"v_mfma_f32_16x16x32_bf16 {vr(acc+4*i,4)}, {vr(T,4)}, {vr(bfrag,4)}, {cc}")
    def wait_flag(lab, off, val, vz, vt, slp_=1):
        e.label(lab)
        e(f"ds_read_b32 v{vt}, v{vz} offset:{off-SB}")
        e("s_waitcnt lgkmcnt(0)")
        e(f"v_readfirstlane_b32 s{S_T0}, v{vt}")
        e(f"s_cmp_ge_u32 s{S_T0}, {val}")
        e(f"s_cbranch_scc1 {lab}_d")
        e(f"s_sleep {slp_}")
        e(f"s_branch {lab}")
        e.label(lab + "_d")

    V_WOFF, XO, V_QW = 1, 2, 7
    if qprio: e(f"s_setprio {qprio}")
    e(f"v_lshlrev_b32 v{V_T0}, 16, v{V_G}")
    e(f"v_lshl_add_u32 v{V_WOFF}, v{V_N}, 4, v{V_T0}")
    e(f"v_and_b32 v{V_T1}, 7, v{V_N}")
    e(f"v_mul_u32_u24 v{V_T0}, 1152, v{V_T1}")
    e(f"v_lshl_add_u32 v{V_T0}, v{V_G}, 4, v{V_T0}")
    e(f"s_mul_i32 s{S_U}, s{S_BP}, 9")
    e(f"s_lshr_b32 s{S_U}, s{S_U}, 4")
    e(f"v_lshrrev_b32 v{V_T2}, 3, v{V_N}")
    e(f"v_add_u32 v{V_AL}, s{S_U}, v{V_T2}")
    e(f"v_lshlrev_b32 v{V_AL}, 6, v{V_AL}")
    e(f"s_mov_b32 s{S_WQ+3}, 0x00020000")
    e(f"s_mov_b32 s{S_X+3}, 0x00020000")
    e(f"s_and_b32 s{S_T1}, s{S_WAVE}, 1")
    e(f"s_bfe_u32 s{S_T3}, s{S_WAVE}, 0x10001")
    e(f"s_mul_i32 s{S_T2}, s{S_T1}, {288*8192}")
    e(f"s_lshl_b32 s{S_T0}, s{S_HKV}, 9")
    e(f"s_add_u32 s{S_T2}, s{S_T2}, s{S_T0}")
    e(f"s_lshl_b32 s{S_T0}, s{S_T3}, 8")
    e(f"s_add_u32 s{S_T2}, s{S_T2}, s{S_T0}")
    e(f"s_sub_u32 s{S_WQ+2}, {576*8192}, s{S_T2}")
    e(f"s_mul_i32 s{S_IT}, s{S_T1}, 576")
    e(f"s_mul_i32 s{S_T0}, s{S_BP}, {8*1152}")
    e(f"s_add_u32 s{S_IT}, s{S_IT}, s{S_T0}")
    e(f"s_sub_u32 s{S_X+2}, {128*1152}, s{S_IT}")
    for i in range(5):
        e(f"v_add_u32 v{V_MC}, {i*128}, v{V_AL}")
        e(f"v_add_u32 v{V_L}, {i*128-576}, v{V_AL}")
        e(f"v_min_u32 v{V_MC}, v{V_MC}, v{V_L}")
        e(f"v_add_u32 v{XO+i}, v{V_MC}, v{V_T0}")
    e("s_waitcnt lgkmcnt(0)")
    e(f"s_add_u32 s{S_WQ}, s38, s{S_T2}")
    e(f"s_addc_u32 s{S_WQ+1}, s39, 0")
    e(f"s_add_u32 s{S_X}, s32, s{S_IT}")
    e(f"s_addc_u32 s{S_X+1}, s33, 0")
    stamp(1)
    for i in range(5):
        e(f"buffer_load_dwordx4 {vr(XF+4*i,4)}, v{XO+i}, s[{S_X}:{S_X+3}], 0 offen")
    def q_issue(s_):
        if s_ == nwarm: e("s_barrier")
        buf = WB + 32 * (s_ % nwb)
        e(f"s_lshl_b32 s{S_OFF}, s{S_U}, 18")
        for t in range(8):
            e(f"buffer_load_dwordx4 {vr(buf+4*t,4)}, v{V_WOFF}, s[{S_WQ}:{S_WQ+3}], s{S_OFF} offen {wpol}")
            if t < 7: e(f"s_add_u32 s{S_OFF}, s{S_OFF}, 8192")
        if s_ < 8:
            e(f"s_add_u32 s{S_U}, s{S_U}, 1")
            e(f"s_cmp_eq_u32 s{S_U}, 9")
            e(f"s_cselect_b32 s{S_U}, 0, s{S_U}")
        else:
            stamp(2)
        if s_ == bar1: e("s_barrier")
    assert nwarm < qdepth
    for s_ in range(qdepth): q_issue(s_)
    consts()
    e(f"v_mul_u32_u24 v{V_T0}, {QP_ROW}, v{V_T1}")
    e(f"v_lshl_add_u32 v{V_T2}, v{V_G}, 1, v{V_T2}")
    e(f"v_lshl_add_u32 v{V_T0}, v{V_T2}, 6, v{V_T0}")
    e(f"s_mul_i32 s{S_T0}, s{S_T1}, {8*QP_ROW}")
    e(f"s_lshl_b32 s{S_T3}, s{S_T3}, 9")
    e(f"s_add_u32 s{S_T0}, s{S_T0}, s{S_T3}")
    e(f"s_add_u32 s{S_T0}, s{S_T0}, {LDS_QP}")
    e(f"v_add_u32 v{V_QW}, s{S_T0}, v{V_T0}")
    e(f"v_mov_b32 v{V_MC}, {SB}")
    e(f"v_mov_b32 v{V_L}, 1")
    assert qdepth < nwb
    for s_ in range(9):
        nxt = s_ + qdepth
        inflight = min(9, nxt) - s_ - 1
        e(f"s_waitcnt vmcnt({8*inflight})")
        if nxt < 9: q_issue(nxt)
        xb = XB + 4 * (s_ & 1); xf = XF + 4 * (s_ >> 1)
        for r in range(4):
            e(f"v_mov_b32_dpp v{xb+r}, v{xf+r} quad_perm:[0,1,2,3] row_mask:0xf bank_mask:{'0xc' if s_ & 1 else '0x3'}")
            e(f"v_mov_b32_dpp v{xb+r}, v{xf+r} row_ror:8 row_mask:0xf bank_mask:{'0x3' if s_ & 1 else '0xc'}")
        unit_mma(WB + 32 * (s_ % nwb), xb, QA, s_ == 0, QT)
    e("s_nop 0")
    QCC = WB + 32 * (9 % nwb)
    for i in range(8):
        for ee in range(2):
            e(f"v_cndmask_b32 v{QCC+ee*8+i}, v{QA+4*i+ee}, v{QA+4*i+2+ee}, s[{S_MASK}:{S_MASK+1}]")
    for x_ in range(4):
        e(f"ds_write_b128 v{V_QW}, {vr(QCC+4*x_,4)} offset:{16*x_}")
    e("s_mov_b64 exec, 1")
    e("s_waitcnt lgkmcnt(0)")
    e(f"ds_add_u32 v{V_MC}, v{V_L} offset:{LDS_FLAG-SB}")
    e("s_mov_b64 exec, -1")
    stamp(3)
    e("s_branch L_wo")

    e.label("L_kv")
    if kprio0: e(f"s_setprio {kprio0}")
    e(f"v_lshrrev_b32 v{V_T0}, 1, v{V_N}")
    e(f"v_lshlrev_b32 v{V_T0}, 10, v{V_T0}")
    e(f"v_and_b32 v{V_T1}, 1, v{V_N}")
    e(f"v_lshlrev_b32 v{V_T1}, 4, v{V_T1}")
    e(f"v_lshlrev_b32 v{V_T2}, 5, v{V_G}")
    e(f"v_add3_u32 v{V_KOFF}, v{V_T0}, v{V_T1}, v{V_T2}")
    e(f"v_lshlrev_b32 v{V_T0}, 11, v{V_G}")
    e(f"v_lshl_add_u32 v{V_VOFF}, v{V_N}, 4, v{V_T0}")
    e(f"v_mov_b32 v{V_Z}, 0")
    e(f"v_mov_b32 v{V_Z+1}, 0")
    e(f"v_mov_b32 v{V_T0}, -1")
    e(f"v_mov_b32 v{V_T2}, {SB}")
    e(f"v_lshl_add_u32 v{V_T1}, v0, 2, v{V_T2}")
    e(f"ds_write_b64 v{V_T2}, {vr(V_Z,2)} offset:{LDS_FLAG-SB}")
    e(f"ds_write_b32 v{V_T1}, v{V_T0} offset:{LDS_XCH-SB}")
    e(f"s_lshl_b32 s{S_T0}, s{S_BP}, 5")
    e(f"s_add_u32 s{S_T0}, s{S_T0}, s{S_HKV}")
    e(f"s_lshl_b32 s{S_T0}, s{S_T0}, 19")
    e(f"s_lshl_b32 s{S_T1}, s{S_BP}, 2")
    e(f"s_lshr_b32 s{S_NPRE}, 0x{table(npre):08x}, s{S_T1}")
    e(f"s_and_b32 s{S_NPRE}, s{S_NPRE}, 15")
    e(f"s_lshr_b32 s{S_IT}, 0x{table([x//2 for x in Es]):08x}, s{S_T1}")
    e(f"s_and_b32 s{S_IT}, s{S_IT}, 15")
    e(f"s_lshl_b32 s{S_LIM}, s{S_IT}, 16")
    e(f"s_sub_u32 s{S_T1}, 16, s{S_IT}")
    e(f"s_cmp_ge_u32 s{S_WAVE}, 2")
    e(f"s_cselect_b32 s{S_K+2}, s{S_LIM}, 0x880000")
    e(f"s_cselect_b32 s{S_V+2}, s{S_LIM}, 0x880000")
    e(f"s_cselect_b32 s{S_IT}, s{S_IT}, s{S_T1}")
    e(f"s_mov_b32 s{S_K+3}, 0x00020000")
    e(f"s_mov_b32 s{S_V+3}, 0x00020000")
    e(f"s_lshl_b32 s{S_OFF}, s{S_WAVE}, 13")
    e(f"s_lshl_b32 m0, s{S_WAVE}, 15")
    e("s_waitcnt lgkmcnt(0)")
    e(f"s_add_u32 s{S_K}, s34, s{S_T0}")
    e(f"s_addc_u32 s{S_K+1}, s35, 0")
    e(f"s_add_u32 s{S_V}, s36, s{S_T0}")
    e(f"s_addc_u32 s{S_V+1}, s37, 0")
    stamp(1)
    def ld_k(buf, soff):
        for u in range(4):
            for j in range(2):
                e(f"buffer_load_dwordx4 {vr(buf+(u*2+j)*4,4)}, v{V_KOFF}, s[{S_K}:{S_K+3}], {soff} offen offset:{u*256+j*128} {pol}")
    def ld_v(buf, soff):
        for t in range(8):
            e(f"buffer_load_dwordx4 {vr(buf+t*4,4)}, v{V_VOFF}, s[{S_V}:{S_V+3}], {soff} offen offset:{t*256} {pol}")
    def ld_lds():
        for i in range(8):
            e(f"buffer_load_dwordx4 v{V_KOFF}, s[{S_K}:{S_K+3}], s{S_OFF} offen offset:{i*128} {pol} lds")
            e(f"s_add_u32 m0, m0, {896 if i < 7 else 8192-7*896}")
            e("s_nop 0" if i < 7 else "s_waitcnt vmcnt(55)")
        for t in range(8):
            e(f"buffer_load_dwordx4 v{V_VOFF}, s[{S_V}:{S_V+3}], s{S_OFF} offen offset:{t*256} {pol} lds")
            e(f"s_add_u32 m0, m0, {768 if t < 7 else 8192-7*768}")
            if t < 7: e("s_nop 0")
    def gate(g):
        e(f"s_cmp_lg_u32 s{S_NPRE}, {g}")
        e(f"s_cbranch_scc1 L_g{g}")
        e("s_barrier")
        e("s_barrier")
        e.label(f"L_g{g}")
    for g in range(5):
        if g in npre: gate(g)
        if g < 2: ld_k(KB[g], f"s{S_OFF}"); ld_v(VB[g], f"s{S_OFF}")
        elif g < 4: ld_lds()
        if g < 4: e(f"s_add_u32 s{S_OFF}, s{S_OFF}, 0x8000")
    stamp(2)
    e(f"s_setprio {prio[1]}")
    if prio[0] != prio[1]:
        e(f"s_cmp_ge_u32 s{S_WAVE}, 2")
        e("s_cbranch_scc1 L_pr")
        e(f"s_setprio {prio[0]}")
        e.label("L_pr")
    consts()
    c = math.log2(math.e) / math.sqrt(128.0)
    cbits = struct.unpack("<I", struct.pack("<f", c))[0]
    e(f"s_mov_b32 s{S_C}, 0x{cbits:08x}")
    A0, A1, A2, A3 = TMP, TMP+1, TMP+2, TMP+3
    e(f"v_lshrrev_b32 v{A3}, 3, v0")
    e(f"v_and_b32 v{A1}, 3, v{V_N}")
    e(f"v_mul_u32_u24 v{A0}, {QP_ROW}, v{A1}")
    e(f"v_bfe_u32 v{A2}, v{V_N}, 2, 1")
    e(f"v_lshl_add_u32 v{A0}, v{A2}, 9, v{A0}")
    e(f"v_lshl_add_u32 v{A0}, v{A3}, 5, v{A0}")
    e(f"v_add_u32 v{V_QRD}, {LDS_QP}, v{A0}")
    e(f"v_mul_u32_u24 v{A0}, {OB_ROW}, v{A1}")
    e(f"v_lshl_add_u32 v{A0}, v{A2}, 8, v{A0}")
    e(f"v_lshl_add_u32 v{A0}, v{A3}, 5, v{A0}")
    e(f"s_mul_i32 s{S_T0}, s{S_WAVE}, {8*OB_ROW}")
    e(f"s_add_u32 s{S_T3}, s{S_T0}, {LDS_OB + 4*OB_ROW}")
    e(f"s_lshl_b32 s{S_T0}, s{S_WAVE}, 15")
    e(f"s_add_u32 s{S_T1}, s{S_T0}, 16384")
    e(f"s_cmp_ge_u32 s{S_WAVE}, 2")
    e(f"s_cselect_b32 s{S_T3}, s{S_T1}, s{S_T3}")
    e(f"s_cselect_b32 s{S_T1}, 0, 64")
    e(f"v_add_u32 v{V_OBW}, s{S_T3}, v{A0}")
    e(f"v_lshlrev_b32 v{A0}, 4, v0")
    e(f"v_add_u32 v{V_LR}, s{S_T0}, v{A0}")
    e(f"v_and_b32 v{A2}, 7, v{V_N}")
    e(f"v_mul_u32_u24 v{A0}, {OP_ROW}, v{A2}")
    e(f"v_lshl_add_u32 v{A0}, v{A3}, 6, v{A0}")
    e(f"v_add_u32 v{V_OPW}, s{S_T0}, v{A0}")
    e(f"s_lshl_b32 s{S_T0}, s{S_WAVE}, 2")
    e(f"s_add_u32 s{S_T0}, s{S_T0}, {SB}")
    e(f"v_lshlrev_b32 v{A0}, 4, v{A2}")
    e(f"v_add_u32 v{V_MLW}, s{S_T0}, v{A0}")
    e(f"s_lshl_b32 s{S_T0}, s{S_WAVE}, 6")
    e(f"s_add_u32 s{S_T0}, s{S_T0}, {SB}")
    e(f"v_lshlrev_b32 v{A0}, 3, v{A2}")
    e(f"v_add_u32 v{V_XW}, s{S_T0}, v{A0}")
    e(f"v_xor_b32 v{V_XR}, s{S_T1}, v{V_XW}")
    wait_flag("L_wq", LDS_FLAG, 4, V_T2, V_T0)
    stamp(3)
    e.label("L_qload")
    for j in range(2):
        for ee in range(2):
            for h in range(2):
                e(f"ds_read_b128 {vr(TMP+j*16+ee*8+h*4,4)}, v{V_QRD} offset:{ee*8*QP_ROW+j*256+h*16}")
    for i in range(16):
        e(f"v_pk_mul_f32 {vr(OA+2*i,2)}, {vr(V_Z,2)}, {vr(V_Z,2)}")
    e(f"v_mov_b32 v{V_MC}, 0xf149f2ca")
    e(f"v_mov_b32 v{V_L}, 0")
    e(f"v_mov_b32 v{XT}, 0xf149f2ca")
    e(f"v_add_u32 v{V_QRD}, {4*QP_ROW}, v{V_QRD}")
    for j in range(2):
        e(f"s_waitcnt lgkmcnt({4-4*j})")
        for i in range(4):
            e(f"v_pk_add_f32 {vr(TMP+j*16+2*i,2)}, {vr(TMP+j*16+2*i,2)}, {vr(TMP+j*16+8+2*i,2)}")
        for i in range(4):
            e(f"v_cvt_pk_bf16_f32 v{QF+j*4+i}, v{TMP+j*16+2*i}, v{TMP+j*16+2*i+1}")
    e(f"s_cmp_ge_u32 s{S_IT}, 100")
    e("s_cbranch_scc1 L_loop")
    stamp(4)

    def adv():
        e(f"s_cmp_lt_u32 s{S_OFF}, s{S_LIM}")
        e(f"s_cselect_b32 s{S_T0}, 2, 1")
        e(f"s_lshl_b32 s{S_T0}, s{S_T0}, 14")
        e(f"s_add_u32 s{S_OFF}, s{S_OFF}, s{S_T0}")
        e(f"s_bitcmp1_b32 s{S_OFF}, 19")
        e(f"s_cselect_b32 s{S_T0}, 0x780000, 0")
        e(f"s_add_u32 s{S_OFF}, s{S_OFF}, s{S_T0}")
    def lreduce():
        e("s_nop 1")
        e(f"v_add_f32_dpp v{V_L}, v{V_L}, v{V_L} row_ror:8 row_mask:0xf bank_mask:0xf")
        e(f"v_mov_b32 v{V_T1}, v{V_L}")
        e("s_nop 1")
        e(f"v_permlane32_swap_b32 v{V_L}, v{V_T1}")
        e(f"v_add_f32 v{V_L}, v{V_L}, v{V_T1}")
        e(f"v_mov_b32 v{V_T1}, v{V_L}")
        e("s_nop 1")
        e(f"v_permlane16_swap_b32 v{V_L}, v{V_T1}")
        e(f"v_add_f32 v{V_L}, v{V_L}, v{V_T1}")
    def merge(acc, dst):
        for i in range(8):
            for ee in range(2):
                e(f"v_add_f32_dpp v{dst+ee*8+i}, v{acc+4*i+ee}, v{acc+4*i+ee} row_ror:8 row_mask:0xf bank_mask:0x3")
                e(f"v_add_f32_dpp v{dst+ee*8+i}, v{acc+4*i+2+ee}, v{acc+4*i+2+ee} row_ror:8 row_mask:0xf bank_mask:0xc")

    def tile(p, wk, wv, kis=None, vis=None, last=False, lds=None):
        kb, vb = (KB[p], VB[p]) if lds is None else (TMP, TMP)
        e(f"s_waitcnt vmcnt({wk})")
        if lds is not None:
            for j in range(2):
                for u in range(4):
                    e(f"ds_read_b128 {vr(TMP+(u*2+j)*4,4)}, v{V_LR} offset:{lds*16384+(u*2+j)*1024}")
        if kis and kis[0] == "early": ld_k(kis[1], f"s{S_OFF}")
        for j in range(2):
            if lds is not None: e(f"s_waitcnt lgkmcnt({4-4*j})")
            for u in range(4):
                cc = "0" if j == 0 else vr(ST+u*4, 4)
                e(f"v_mfma_f32_16x16x32_bf16 {vr(ST+u*4,4)}, {vr(kb+(u*2+j)*4,4)}, {vr(QF+j*4,4)}, {cc}")
        if kis and kis[0] == "late": ld_k(kis[1], f"s{S_OFF}")
        elif lds is not None:
            e(f"s_waitcnt vmcnt({wv})")
            for t in range(8):
                e(f"ds_read_b128 {vr(TMP+t*4,4)}, v{V_LR} offset:{lds*16384+8192+t*1024}")
        else: e("s_nop 4")
        S = [SS+i for i in range(4)]
        for u in range(4):
            a = ST + 4*u
            e(f"v_add_f32_dpp v{S[u]}, v{a+1}, v{a} row_ror:8 row_mask:0xf bank_mask:0x3")
            e(f"v_add_f32_dpp v{S[u]}, v{a+2}, v{a+3} row_ror:8 row_mask:0xf bank_mask:0xc")
        e(f"v_max3_f32 v{V_T0}, v{S[0]}, v{S[1]}, v{XT}")
        e(f"v_max3_f32 v{V_T0}, v{S[2]}, v{S[3]}, v{V_T0}")
        e("s_nop 1")
        e(f"v_max_f32_dpp v{V_T0}, v{V_T0}, v{V_T0} row_ror:8 row_mask:0xf bank_mask:0xf")
        e(f"v_mov_b32 v{V_T1}, v{V_T0}")
        e("s_nop 1")
        e(f"v_permlane32_swap_b32 v{V_T0}, v{V_T1}")
        e(f"v_max_f32 v{V_T0}, v{V_T0}, v{V_T1}")
        e(f"v_mov_b32 v{V_T1}, v{V_T0}")
        e("s_nop 1")
        e(f"v_permlane16_swap_b32 v{V_T0}, v{V_T1}")
        e(f"v_max_f32 v{XT}, v{V_T0}, v{V_T1}")
        e(f"v_mul_f32 v{V_T0}, s{S_C}, v{XT}")
        e(f"v_sub_f32 v{V_AL}, v{V_MC}, v{V_T0}")
        e(f"v_exp_f32 v{V_AL}, v{V_AL}")
        e(f"v_mov_b32 v{V_MC}, v{V_T0}")
        for i in range(4):
            e(f"v_fma_f32 v{S[i]}, v{S[i]}, s{S_C}, -v{V_MC}")
        for i in range(4):
            e(f"v_exp_f32 v{S[i]}, v{S[i]}")
        def rescale():
            for i in range(16):
                e(f"v_pk_mul_f32 {vr(OA+2*i,2)}, {vr(OA+2*i,2)}, {vr(V_AL,2)} op_sel_hi:[1,0]")
        if not last: rescale()
        e(f"v_add_f32 v{V_T0}, v{S[0]}, v{S[1]}")
        e(f"v_add_f32 v{V_T1}, v{S[2]}, v{S[3]}")
        e(f"v_fma_f32 v{V_L}, v{V_L}, v{V_AL}, v{V_T0}")
        e(f"v_add_f32 v{V_L}, v{V_L}, v{V_T1}")
        if last:
            lreduce()
            e(f"ds_write_b64 v{V_XW}, {vr(V_MC,2)} offset:{LDS_XCH-SB}")
            M2, L2 = TMP, TMP+1
            e.label("L_xch")
            e(f"ds_read_b64 {vr(M2,2)}, v{V_XR} offset:{LDS_XCH-SB}")
            e("s_waitcnt lgkmcnt(0)")
            e(f"v_cmp_eq_u32 vcc, -1, v{M2}")
            e("s_cbranch_vccnz L_xch")
            e(f"v_max_f32 v{V_T0}, v{M2}, v{V_MC}")
            e(f"v_sub_f32 v{M2}, v{M2}, v{V_T0}")
            e(f"v_sub_f32 v{V_T1}, v{V_MC}, v{V_T0}")
            e(f"v_exp_f32 v{M2}, v{M2}")
            e(f"v_exp_f32 v{V_T1}, v{V_T1}")
            e(f"v_mul_f32 v{V_T0}, v{M2}, v{L2}")
            e(f"v_fmac_f32 v{V_T0}, v{V_T1}, v{V_L}")
            e(f"v_rcp_f32 v{V_T0}, v{V_T0}")
            e("s_nop 0")
            e(f"v_mul_f32 v{V_T1}, v{V_T1}, v{V_T0}")
            e(f"v_mul_f32 v{V_AL}, v{V_AL}, v{V_T1}")
            for i in range(4):
                e(f"v_mul_f32 v{S[i]}, v{S[i]}, v{V_T1}")
            rescale()
            stamp(6)
        e(f"v_cvt_pk_bf16_f32 v{V_T0}, v{S[0]}, v{S[1]}")
        e(f"v_cvt_pk_bf16_f32 v{V_T1}, v{S[2]}, v{S[3]}")
        e(f"v_cndmask_b32 v{PP}, v{V_T0}, 0, s[{S_MASK}:{S_MASK+1}]")
        e(f"v_cndmask_b32 v{PP+1}, v{V_T1}, 0, s[{S_MASK}:{S_MASK+1}]")
        e(f"v_cndmask_b32 v{PP+2}, 0, v{V_T0}, s[{S_MASK}:{S_MASK+1}]")
        e(f"v_cndmask_b32 v{PP+3}, 0, v{V_T1}, s[{S_MASK}:{S_MASK+1}]")
        if lds is not None: e("s_waitcnt lgkmcnt(0)")
        else: e(f"s_waitcnt vmcnt({wv})")
        if last: stamp(7)
        if vis and vis[0] == "early": ld_v(vis[1], f"s{S_OFF}")
        unit_mma(vb, PP, OA, False, PT)
        if vis and vis[0] == "late": ld_v(vis[1], f"s{S_OFF}")
        if vis: adv()

    kw = "early" if kearly else "late"
    vw = "early" if vearly else "late"
    tile(0, 55, 55, ("late", KB[0]), ("late", VB[0]))
    tile(1, 56, 48)
    tile(0, 40, 32, lds=0)
    tile(0, 24, 16, lds=1)
    e(f"s_sub_u32 s{S_IT}, s{S_IT}, 2")
    e(f"s_cmp_eq_u32 s{S_IT}, 0")
    e("s_cbranch_scc1 L_flush")
    e.label("L_loop")
    tile(0, 8, 8, (kw, KB[1]), (vw, VB[1]))
    e(f"s_cmp_eq_u32 s{S_IT}, 101")
    e("s_cbranch_scc1 L_last")
    tile(1, 8, 8, (kw, KB[0]), (vw, VB[0]))
    e(f"s_sub_u32 s{S_IT}, s{S_IT}, 1")
    e(f"s_cmp_lg_u32 s{S_IT}, 0")
    e("s_cbranch_scc1 L_loop")
    e.label("L_flush")
    stamp(5)
    lreduce()
    e(f"ds_write_b32 v{V_MLW}, v{V_MC} offset:{LDS_ML-SB}")
    e(f"ds_write_b32 v{V_MLW}, v{V_L} offset:{LDS_ML+128-SB}")
    merge(OA, TMP)
    for x_ in range(4):
        e(f"ds_write_b128 v{V_OPW}, {vr(TMP+4*x_,4)} offset:{16*x_}")
    e(f"v_mov_b32 v{V_T0}, 1")
    e("s_mov_b64 exec, 1")
    e("s_waitcnt lgkmcnt(0)")
    e(f"ds_add_u32 v{V_T2}, v{V_T0} offset:{LDS_FLAG+4-SB}")
    e("s_mov_b64 exec, -1")
    e(f"s_mov_b32 s{S_IT}, 116")
    e(f"s_cmp_lt_u32 s{S_WAVE}, 2")
    e("s_cbranch_scc1 L_qload")
    if not dryl: e("s_branch L_wo")
    e.label("L_last")
    tile(1, 8, 0, last=True)
    e("s_nop 0")
    merge(OA, TMP)
    for i in range(8):
        e(f"v_cvt_pk_bf16_f32 v{TMP+16+i}, v{TMP+2*i}, v{TMP+2*i+1}")
    e(f"ds_write_b128 v{V_OBW}, {vr(TMP+16,4)}")
    e(f"ds_write_b128 v{V_OBW}, {vr(TMP+20,4)} offset:16")
    if dryl:
        e(f"s_cmp_ge_u32 s{S_WAVE}, 2")
        e("s_cbranch_scc1 L_wo")
    e("s_waitcnt lgkmcnt(0)")
    stamp(8)
    e("s_barrier")
    if stamps:
        stamp(9); stamp(10); stamp(11)
        e("s_branch L_dump")
    else:
        e("s_endpgm")

    e.label("L_wo")
    e("s_setprio 0")
    V_WO, V_OPR, V_MLR, V_OBC, V_BRD, V_STO, V_PL, V_OO, V_TAG, V_SB = 1, 2, 3, 4, 5, 6, 7, 1, 2, 3
    A0, A1, A2, AN, AG, AZ, AS = 232, 233, 234, 235, 236, 237, 238
    e(f"v_and_b32 v{AN}, 15, v0")
    e(f"v_lshrrev_b32 v{AG}, 4, v0")
    e(f"v_mov_b32 v{AZ}, 0")
    e(f"v_mov_b32 v{AS}, {SB}")
    e(f"s_sub_u32 s{S_T3}, s{S_WAVE}, 2")
    e(f"v_mul_u32_u24 v{A0}, {8*1152}, v{AG}")
    e(f"v_mul_u32_u24 v{A1}, 12, v{AN}")
    e(f"s_mul_i32 s{S_T0}, s{S_T3}, 192")
    e(f"v_add3_u32 v{V_WO}, v{A0}, v{A1}, s{S_T0}")
    e(f"s_mul_i32 s{S_T0}, s{S_HKV}, {256*1152}")
    e(f"s_add_u32 s{S_WO}, s40, s{S_T0}")
    e(f"s_addc_u32 s{S_WO+1}, s41, 0")
    e(f"s_mov_b32 s{S_WO+2}, {256*1152}")
    e(f"s_mov_b32 s{S_WO+3}, 0x00020000")
    e(f"s_mul_i32 s{S_T0}, s{S_BP}, {GRP}")
    e(f"s_add_u32 s{S_WS}, s46, s{S_T0}")
    e(f"s_addc_u32 s{S_WS+1}, s47, 0")
    e(f"s_mov_b32 s{S_WS+2}, {GRP}")
    e(f"s_mov_b32 s{S_WS+3}, 0x00020000")
    e(f"s_mov_b32 s{S_OUT}, s42")
    e(f"s_mov_b32 s{S_OUT+1}, s43")
    e(f"s_mov_b32 s{S_OUT+2}, {128*1152}")
    e(f"s_mov_b32 s{S_OUT+3}, 0x00020000")
    e(f"s_mov_b32 s{S_DBG}, s44")
    e(f"s_mov_b32 s{S_DBG+1}, s45")
    e(f"s_mov_b32 s{S_DBG+2}, 256")
    e(f"s_mov_b32 s{S_DBG+3}, 0x00020000")
    e(f"v_mul_u32_u24 v{A0}, {OB_ROW}, v{AN}")
    e(f"v_lshl_add_u32 v{A0}, v{AG}, 4, v{A0}")
    e(f"v_add_u32 v{V_BRD}, {LDS_OB}, v{A0}")
    e(f"v_and_b32 v{A0}, 7, v{AN}")
    e(f"v_mul_u32_u24 v{A0}, {6*8192}, v{A0}")
    e(f"v_lshrrev_b32 v{A1}, 3, v0")
    e(f"v_lshlrev_b32 v{A1}, 4, v{A1}")
    e(f"s_lshl_b32 s{S_T0}, s{S_T3}, 13")
    e(f"s_lshl_b32 s{S_T1}, s{S_HKV}, 9")
    e(f"s_add_u32 s{S_T1}, s{S_T1}, s{S_T0}")
    e(f"v_add3_u32 v{V_STO}, v{A0}, v{A1}, s{S_T1}")
    e(f"s_lshr_b32 s{S_T1}, s{S_HKV}, 1")
    e(f"s_mul_i32 s{S_T1}, s{S_T1}, {6*8192}")
    e(f"s_add_u32 s{S_T0}, s{S_T0}, s{S_T1}")
    e(f"s_and_b32 s{S_T1}, s{S_HKV}, 1")
    e(f"s_lshl_b32 s{S_T1}, s{S_T1}, 6")
    e(f"s_add_u32 s{S_T0}, s{S_T0}, s{S_T1}")
    e(f"v_lshlrev_b32 v{A0}, 9, v{AN}")
    e(f"v_lshlrev_b32 v{A1}, 4, v{AG}")
    e(f"v_add3_u32 v{V_PL}, v{A0}, v{A1}, s{S_T0}")
    e(f"v_lshrrev_b32 v{A1}, 5, v0")
    e(f"s_and_b32 s{S_T1}, s{S_WAVE}, 3")
    e(f"s_lshl_b32 s{S_T1}, s{S_T1}, 1")
    e(f"v_add_u32 v{A1}, s{S_T1}, v{A1}")
    e(f"v_and_b32 v{A2}, 31, v0")
    e(f"v_mul_u32_u24 v{V_OPR}, {OP_ROW}, v{A1}")
    e(f"v_lshl_add_u32 v{V_OPR}, v{A2}, 4, v{V_OPR}")
    e(f"v_lshl_add_u32 v{V_MLR}, v{A1}, 4, v{AS}")
    e(f"v_and_b32 v{A0}, 3, v{A1}")
    e(f"v_mul_u32_u24 v{A0}, {OB_ROW}, v{A0}")
    e(f"v_lshrrev_b32 v{A1}, 2, v{A1}")
    e(f"v_lshl_add_u32 v{A0}, v{A1}, 8, v{A0}")
    e(f"v_lshl_add_u32 v{A0}, v{A2}, 3, v{A0}")
    e(f"v_add_u32 v{V_OBC}, v{AS}, v{A0}")
    e(f"s_cmp_ge_u32 s{S_WAVE}, 4")
    e("s_cbranch_scc1 L_nozero")
    for i in range(4): e(f"v_mov_b32 v{240+i}, 0")
    e(f"v_add_u32 v{A0}, v{AS}, v{V_OPR}")
    e(f"ds_write_b128 v{A0}, v[240:243] offset:{LDS_OB+4*OB_ROW-SB}")
    e.label("L_nozero")
    e(f"s_lshl_b32 s{S_T0}, s2, 3")
    e(f"s_add_u32 s{S_T0}, s{S_T0}, s{S_WAVE}")
    e(f"s_cmp_lg_u32 s{S_T0}, 7")
    e("s_cbranch_scc1 L_notag")
    e(f"s_memrealtime s[{S_T1}:{S_T1+1}]")
    e("s_waitcnt lgkmcnt(0)")
    e(f"s_or_b32 s{S_T1}, s{S_T1}, 1")
    e(f"v_mov_b32 v{A1}, s{S_T1}")
    e("s_mov_b64 exec, 1")
    e(f"buffer_store_dword v{A1}, v{AZ}, s[{S_DBG}:{S_DBG+3}], 0 offen sc1")
    e("s_mov_b64 exec, -1")
    e.label("L_notag")
    if wostart:
        wait_flag("L_ws", LDS_FLAG+4, wostart, AS, A0, 8)
    stamp(4)
    for j in range(8):
        for t in range(8):
            if t % 4 == 0: e(f"s_mov_b32 s{S_T0}, {(32*j+t)*1152}")
            e(f"buffer_load_dwordx3 {vr(BF+4*t,3)}, v{V_WO}, s[{S_WO}:{S_WO+3}], s{S_T0} offen offset:{(t%4)*1152} {wopol}")
            if (t + 1) % wog == 0:
                e("s_waitcnt vmcnt(0)")
        for i in range(6):
            w_, h = i >> 1, i & 1
            sel = S_HI if h else S_LO
            for u_ in range(4):
                e(f"v_perm_b32 v{WF+(j*6+i)*4+u_}, v{BF+(2*u_+1)*4+w_}, v{BF+(2*u_)*4+w_}, s{sel}")
    stamp(5)
    e(f"s_lshl_b32 s{S_T0}, s{S_BP}, 3")
    e(f"s_lshr_b32 s{S_T1}, s{S_HKV}, 1")
    e(f"s_add_u32 s{S_T0}, s{S_T0}, s{S_T1}")
    e(f"s_mul_i32 s{S_T0}, s{S_T0}, 1152")
    e(f"s_mul_i32 s{S_T1}, s{S_T3}, 192")
    e(f"s_add_u32 s{S_T0}, s{S_T0}, s{S_T1}")
    e(f"s_and_b32 s{S_T1}, s{S_HKV}, 1")
    e(f"s_mul_i32 s{S_T1}, s{S_T1}, 96")
    e(f"s_add_u32 s{S_T0}, s{S_T0}, s{S_T1}")
    e(f"v_lshrrev_b32 v{A0}, 3, v0")
    e(f"v_mul_u32_u24 v{A0}, 12, v{A0}")
    e(f"v_add_u32 v{V_OO}, s{S_T0}, v{A0}")
    e(f"s_cmp_lg_u32 s{S_WAVE}, 3")
    e("s_cbranch_scc1 L_nochk")
    e(f"s_mov_b32 s{S_T1}, 0x40000")
    e.label("L_chk")
    e(f"buffer_load_dword v{A0}, v{AZ}, s[{S_DBG}:{S_DBG+3}], 0 offen sc1")
    e("s_waitcnt vmcnt(0)")
    e(f"v_readfirstlane_b32 s{S_T0}, v{A0}")
    e(f"ds_write_b32 v{AS}, v{A0} offset:{LDS_FLAG+8-SB}")
    e(f"s_sub_u32 s{S_T1}, s{S_T1}, 1")
    e("s_cbranch_scc1 L_nochk")
    e(f"s_cmp_lg_u32 s{S_T0}, 0")
    e("s_cbranch_scc1 L_nochk")
    e("s_sleep 8")
    e("s_branch L_chk")
    e.label("L_nochk")
    e(f"s_cmp_lt_u32 s{S_WAVE}, 4")
    e("s_cbranch_scc1 L_comb_d")
    wait_flag("L_wf", LDS_FLAG+4, 4, AS, A0, 8)
    MM, LL, OO, CT = BF, BF+4, BF+8, A0
    e(f"ds_read_b128 {vr(MM,4)}, v{V_MLR} offset:{LDS_ML-SB}")
    e(f"ds_read_b128 {vr(LL,4)}, v{V_MLR} offset:{LDS_ML+128-SB}")
    e(f"v_add_u32 v{A1}, 0x10000, v{V_OPR}")
    for p in range(4):
        e(f"ds_read_b128 {vr(OO+4*p,4)}, v{V_OPR if p < 2 else A1} offset:{(p&1)*32768}")
    e("s_waitcnt lgkmcnt(4)")
    e(f"v_max3_f32 v{CT}, v{MM}, v{MM+1}, v{MM+2}")
    e(f"v_max_f32 v{CT}, v{CT}, v{MM+3}")
    for p in range(4): e(f"v_sub_f32 v{MM+p}, v{MM+p}, v{CT}")
    for p in range(4): e(f"v_exp_f32 v{MM+p}, v{MM+p}")
    e("s_nop 0")
    e(f"v_mul_f32 v{CT}, v{MM}, v{LL}")
    for p in range(1, 4): e(f"v_fmac_f32 v{CT}, v{MM+p}, v{LL+p}")
    e(f"v_rcp_f32 v{CT}, v{CT}")
    e("s_nop 0")
    for p in range(4): e(f"v_mul_f32 v{MM+p}, v{MM+p}, v{CT}")
    e("s_waitcnt lgkmcnt(0)")
    for i in range(4): e(f"v_mul_f32 v{OO+i}, v{OO+i}, v{MM}")
    for p in range(1, 4):
        for i in range(4): e(f"v_fmac_f32 v{OO+i}, v{OO+4*p+i}, v{MM+p}")
    e(f"v_cvt_pk_bf16_f32 v{LL}, v{OO}, v{OO+1}")
    e(f"v_cvt_pk_bf16_f32 v{LL+1}, v{OO+2}, v{OO+3}")
    e(f"ds_write_b64 v{V_OBC}, {vr(LL,2)} offset:{LDS_OB-SB}")
    e.label("L_comb_d")
    e(f"v_mov_b32 v{V_SB}, {SB}")
    if dry:
        e(f"s_mov_b32 s{S_WS+2}, 0")
        e(f"s_mov_b32 s{S_OUT+2}, 0")
        e(f"s_mov_b32 s{S_CAP}, 0")
        e("s_branch L_tail")
        e.label("L_barB")
        e(f"s_mov_b32 s{S_WS+2}, {GRP}")
        e(f"s_mov_b32 s{S_OUT+2}, {128*1152}")
        e("s_mov_b64 exec, -1")
    e(f"s_mov_b32 s{S_CAP}, 0x40000")
    e("s_waitcnt vmcnt(0) lgkmcnt(0)")
    stamp(6)
    e("s_barrier")
    stamp(7)
    e.label("L_tail")
    for j in range(8):
        e(f"ds_read_b128 {vr(BF+4*j,4)}, v{V_BRD} offset:{j*64}")
        if j == 3: e(f"ds_read_b32 v{V_TAG}, v{V_SB} offset:{LDS_FLAG+8-SB}")
    for j in range(8):
        e(f"s_waitcnt lgkmcnt({8-j if j < 4 else 7-j})")
        for i in range(6):
            cc = "0" if j == 0 else vr(PA+4*i, 4)
            e(f"v_mfma_f32_16x16x32_bf16 {vr(PA+4*i,4)}, {vr(WF+(j*6+i)*4,4)}, {vr(BF+4*j,4)}, {cc}")
            if j == 5 and i < 4: e(f"v_mov_b32 v{BF+4*i+3}, v{V_TAG}")
    e("s_nop 2")
    def gr(base, v): return base + (v // 3) * 4 + v % 3
    for i in range(6):
        for rr in range(2):
            d = gr(BF, rr*6 + i)
            e(f"v_add_f32_dpp v{d}, v{PA+4*i+rr}, v{PA+4*i+rr} row_ror:8 row_mask:0xf bank_mask:0x3")
            e(f"v_add_f32_dpp v{d}, v{PA+4*i+2+rr}, v{PA+4*i+2+rr} row_ror:8 row_mask:0xf bank_mask:0xc")
        if i == 2 or i == 5:
            for x_ in ((0, 2) if i == 2 else (1, 3)):
                e(f"buffer_store_dwordx4 {vr(BF+4*x_,4)}, v{V_STO}, s[{S_WS}:{S_WS+3}], 0 offen offset:{128*x_} sc1")
    stamp(8)
    R = BF + 16; D = PA; PT0, PT1 = PA + 6, PA + 7
    e(f"s_mov_b32 s{S_T1}, s{S_CAP}")
    e.label("L_poll")
    for x_ in range(4):
        e(f"buffer_load_dwordx4 {vr(R+4*x_,4)}, v{V_PL}, s[{S_WS}:{S_WS+3}], 0 offen offset:{128*x_} sc1")
    e("s_waitcnt vmcnt(0)")
    e(f"v_min3_u32 v{PT0}, v{R+3}, v{R+7}, v{V_TAG}")
    e(f"v_max3_u32 v{PT1}, v{R+3}, v{R+7}, v{V_TAG}")
    e(f"v_min3_u32 v{PT0}, v{R+11}, v{R+15}, v{PT0}")
    e(f"v_max3_u32 v{PT1}, v{R+11}, v{R+15}, v{PT1}")
    e(f"v_cmp_ne_u32 vcc, v{PT0}, v{PT1}")
    e("s_and_b64 exec, exec, vcc")
    e("s_cbranch_scc0 L_pdone")
    e(f"s_sub_u32 s{S_T1}, s{S_T1}, 1")
    e("s_cbranch_scc1 L_pdone")
    e(f"s_bcnt1_i32_b64 s{S_T0}, exec")
    e(f"s_cmp_lt_u32 s{S_T0}, {slp[2]}")
    e("s_cbranch_scc1 L_poll")
    e(f"s_sleep {slp[3]}")
    e(f"s_cmp_lt_u32 s{S_T0}, {slp[0]}")
    e("s_cbranch_scc1 L_poll")
    e(f"s_sleep {slp[1]}")
    e("s_branch L_poll")
    e.label("L_pdone")
    e("s_mov_b64 exec, -1")
    stamp(9)
    for k in range(6):
        e(f"v_add_f32_dpp v{D+k}, v{gr(R,k)}, v{gr(R,k)} row_ror:8 row_mask:0xf bank_mask:0x3")
        e(f"v_add_f32_dpp v{D+k}, v{gr(R,6+k)}, v{gr(R,6+k)} row_ror:8 row_mask:0xf bank_mask:0xc")
    for m in ("row_half_mirror", "quad_perm:[1,0,3,2]", "quad_perm:[2,3,0,1]"):
        for k in range(6):
            e(f"v_add_f32_dpp v{D+k}, v{D+k}, v{D+k} {m} row_mask:0xf bank_mask:0xf")
    for k in range(3):
        e(f"v_cvt_pk_bf16_f32 v{R+k}, v{D+2*k}, v{D+2*k+1}")
    e("s_mov_b32 exec_lo, 0x01010101")
    e("s_mov_b32 exec_hi, 0x01010101")
    e(f"buffer_store_dwordx3 {vr(R,3)}, v{V_OO}, s[{S_OUT}:{S_OUT+3}], 0 offen")
    if dry:
        e(f"s_cmp_eq_u32 s{S_CAP}, 0")
        e("s_cbranch_scc1 L_barB")
    if stamps:
        e("s_mov_b64 exec, -1")
        stamp(10)
        e("s_waitcnt vmcnt(0)")
        stamp(11)
        e.label("L_dump")
        e(f"s_add_u32 s{S_WS}, s46, 0x800000")
        e(f"s_addc_u32 s{S_WS+1}, s47, 0")
        e(f"s_mov_b32 s{S_WS+2}, 0x100000")
        e(f"s_mov_b32 s{S_WS+3}, 0x00020000")
        e(f"s_lshl_b32 s{S_T0}, s2, 3")
        e(f"s_add_u32 s{S_T0}, s{S_T0}, s{S_WAVE}")
        e(f"s_lshl_b32 s{S_T0}, s{S_T0}, 6")
        e("v_mov_b32 v1, 0")
        for i in range(NST):
            e(f"v_mov_b32 v2, s{64+2*i}")
            e(f"buffer_store_dword v2, v1, s[{S_WS}:{S_WS+3}], s{S_T0} offen offset:{4*i}")
        e(f"s_getreg_b32 s{S_T1}, hwreg(HW_REG_XCC_ID)")
        e(f"v_mov_b32 v2, s{S_T1}")
        e(f"buffer_store_dword v2, v1, s[{S_WS}:{S_WS+3}], s{S_T0} offen offset:56")
        e(f"buffer_store_dword v1, v1, s[{S_WS}:{S_WS+3}], s{S_T0} offen offset:52")
    e.label("L_end")
    e("s_endpgm")

    e.raw('.section .rodata,"a"')
    e.raw(f""".p2align 6
.amdhsa_kernel {KN}
  .amdhsa_next_free_vgpr 256
  .amdhsa_next_free_sgpr 96
  .amdhsa_accum_offset 256
  .amdhsa_group_segment_fixed_size 0
  .amdhsa_kernarg_size 64
  .amdhsa_user_sgpr_count 2
  .amdhsa_user_sgpr_kernarg_segment_ptr 1
  .amdhsa_system_sgpr_workgroup_id_x 1
.end_amdhsa_kernel""")
    open(name, "w").write(e.text())
    return name

if __name__ == "__main__":
    S = dict(stamps=True)
    L = [gen("k5.s"), gen("k5_st.s", **S), gen("k5_02.s", npre=(0, 2), **S), gen("k5_04.s", npre=(0, 4), **S), gen("k5_e6.s", Es=(6, 6), **S),
         gen("k5_w0.s", nwarm=0, **S), gen("k5_0234.s", npre=(0, 3, 2, 4), **S)]
    print(" ".join("work/"+x for x in L))
    import json; print(json.dumps(["work/"+x for x in L]))
```

```python
import sys, math, struct
from gen2 import HEADER, E, vr

KN = "standalone__gqa_block_cached__sampling_kernel"
V_KOFF, V_VOFF, V_QRD, V_OPW, V_MLW, V_OBW, V_XW = 1, 2, 3, 4, 5, 6, 7
V_MC, V_L, V_AL, V_T0, V_T1, V_T2, V_N, V_G = 8, 9, 10, 11, 12, 13, 14, 15
QF, XT, V_XR, V_Z, V_LR, OA = 16, 24, 25, 26, 28, 32
KB, VB = [64, 128], [96, 160]
TMP, ST, PT, PP, SS = 192, 224, 240, 248, 252
XF, XB, QA, WB = 16, 36, 44, 76
WF, BF, PA = 8, 200, 232
S_K, S_V, S_WQ, S_X, S_WO, S_WS = 8, 12, 16, 20, 24, 28
S_OUT, S_DBG = 8, 12
S_WAVE, S_HKV, S_BP = 3, 48, 49
S_LO, S_HI, S_C = 50, 51, 52
S_IT, S_OFF, S_T0, S_T1, S_T2, S_T3 = 53, 54, 55, 56, 57, 58
S_NPRE = 59
S_MASK = 60
S_U, S_LIM = 62, 63
S_CAP = 62
OP_ROW = 528; OB_ROW = 544; QP_ROW = 1040
LDS_ML = 131072
LDS_XCH = LDS_ML + 256
LDS_FLAG = LDS_XCH + 256
LDS_OB = LDS_FLAG + 16
LDS_QP = LDS_OB + 16 * OB_ROW
LDS_TOTAL = LDS_QP + 16 * QP_ROW
NST = 12
GRP = 48 * 4096

def gen(name, pol="nt", wpol="", wopol="", stamps=False, npre=(0, 3), Es=(4, 4), kearly=True, vearly=True,
        wog=2, prio=(3, 2), qdepth=3, nwb=4, wostart=2, dry=True, dryl=True, bar1=8, nwarm=1,
        slp=(40, 16, 17, 4), qprio=3, kprio0=1, nostore=False, nopoll=False, nowo=False, tprio=2, g0late=False, spol='sc1', ppol='sc1'):
    e = E()
    QT = WB + 32 * nwb
    SB = LDS_ML
    def stamp(i):
        if not stamps: return
        e(f"s_memrealtime s[{64+2*i}:{65+2*i}]")
        e("s_waitcnt lgkmcnt(0)")
    def table(vals):
        t = 0
        for i in range(8): t |= vals[i % len(vals)] << (4 * i)
        return t
    e.raw(HEADER.rstrip("\n"))
    e.raw(f"; @launch grid=(256,1,1) block=(512,1,1) lds={LDS_TOTAL}")
    if stamps: e.raw(f"; NSTAMPS={NST}")
    e.raw('.amdgcn_target "amdgcn-amd-amdhsa--gfx950"')
    e.raw(".text")
    e.raw(f".globl {KN}\n.p2align 8\n.type {KN},@function\n{KN}:")
    e("s_cmp_ge_u32 s2, 256")
    e("s_cbranch_scc1 L_end")
    stamp(0)
    e("s_load_dwordx8 s[32:39], s[0:1], 0")
    e("s_load_dwordx8 s[40:47], s[0:1], 32")
    e("v_lshrrev_b32 v1, 6, v0")
    e("v_and_b32 v0, 63, v0")
    e(f"v_readfirstlane_b32 s{S_WAVE}, v1")
    e(f"v_and_b32 v{V_N}, 15, v0")
    e(f"v_lshrrev_b32 v{V_G}, 4, v0")
    e(f"s_and_b32 s{S_T0}, s2, 7")
    e(f"s_lshl_b32 s{S_HKV}, s{S_T0}, 1")
    e(f"s_bfe_u32 s{S_T0}, s2, 0x10003")
    e(f"s_add_u32 s{S_HKV}, s{S_HKV}, s{S_T0}")
    e(f"s_lshr_b32 s{S_BP}, s2, 4")
    if stamps:
        for i in range(1, NST): e(f"s_mov_b32 s{64+2*i}, s64")
    e(f"s_cmp_lt_u32 s{S_WAVE}, 4")
    e("s_cbranch_scc1 L_kv")

    def consts():
        e(f"s_mov_b32 s{S_LO}, 0x05040100")
        e(f"s_mov_b32 s{S_HI}, 0x07060302")
        e(f"s_mov_b32 s{S_MASK}, 0xff00ff00")
        e(f"s_mov_b32 s{S_MASK+1}, 0xff00ff00")
    def unit_mma(buf, bfrag, acc, first, T0):
        def perms(i):
            w_, h = i >> 1, i & 1
            sel = S_HI if h else S_LO
            T = T0 + (i & 1) * 4
            for u_ in range(4):
                e(f"v_perm_b32 v{T+u_}, v{buf+(2*u_+1)*4+w_}, v{buf+(2*u_)*4+w_}, s{sel}")
        perms(0)
        for i in range(8):
            if i + 1 < 8: perms(i + 1)
            else: e("s_nop 1")
            T = T0 + (i & 1) * 4
            cc = "0" if first else vr(acc+4*i, 4)
            e(f"v_mfma_f32_16x16x32_bf16 {vr(acc+4*i,4)}, {vr(T,4)}, {vr(bfrag,4)}, {cc}")
    def wait_flag(lab, off, val, vz, vt, slp_=1):
        e.label(lab)
        e(f"ds_read_b32 v{vt}, v{vz} offset:{off-SB}")
        e("s_waitcnt lgkmcnt(0)")
        e(f"v_readfirstlane_b32 s{S_T0}, v{vt}")
        e(f"s_cmp_ge_u32 s{S_T0}, {val}")
        e(f"s_cbranch_scc1 {lab}_d")
        e(f"s_sleep {slp_}")
        e(f"s_branch {lab}")
        e.label(lab + "_d")

    V_WOFF, XO, V_QW = 1, 2, 7
    if qprio: e(f"s_setprio {qprio}")
    e(f"v_lshlrev_b32 v{V_T0}, 16, v{V_G}")
    e(f"v_lshl_add_u32 v{V_WOFF}, v{V_N}, 4, v{V_T0}")
    e(f"v_and_b32 v{V_T1}, 7, v{V_N}")
    e(f"v_mul_u32_u24 v{V_T0}, 1152, v{V_T1}")
    e(f"v_lshl_add_u32 v{V_T0}, v{V_G}, 4, v{V_T0}")
    e(f"s_mul_i32 s{S_U}, s{S_BP}, 9")
    e(f"s_lshr_b32 s{S_U}, s{S_U}, 4")
    e(f"v_lshrrev_b32 v{V_T2}, 3, v{V_N}")
    e(f"v_add_u32 v{V_AL}, s{S_U}, v{V_T2}")
    e(f"v_lshlrev_b32 v{V_AL}, 6, v{V_AL}")
    e(f"s_mov_b32 s{S_WQ+3}, 0x00020000")
    e(f"s_mov_b32 s{S_X+3}, 0x00020000")
    e(f"s_and_b32 s{S_T1}, s{S_WAVE}, 1")
    e(f"s_bfe_u32 s{S_T3}, s{S_WAVE}, 0x10001")
    e(f"s_mul_i32 s{S_T2}, s{S_T1}, {288*8192}")
    e(f"s_lshl_b32 s{S_T0}, s{S_HKV}, 9")
    e(f"s_add_u32 s{S_T2}, s{S_T2}, s{S_T0}")
    e(f"s_lshl_b32 s{S_T0}, s{S_T3}, 8")
    e(f"s_add_u32 s{S_T2}, s{S_T2}, s{S_T0}")
    e(f"s_sub_u32 s{S_WQ+2}, {576*8192}, s{S_T2}")
    e(f"s_mul_i32 s{S_IT}, s{S_T1}, 576")
    e(f"s_mul_i32 s{S_T0}, s{S_BP}, {8*1152}")
    e(f"s_add_u32 s{S_IT}, s{S_IT}, s{S_T0}")
    e(f"s_sub_u32 s{S_X+2}, {128*1152}, s{S_IT}")
    for i in range(5):
        e(f"v_add_u32 v{V_MC}, {i*128}, v{V_AL}")
        e(f"v_add_u32 v{V_L}, {i*128-576}, v{V_AL}")
        e(f"v_min_u32 v{V_MC}, v{V_MC}, v{V_L}")
        e(f"v_add_u32 v{XO+i}, v{V_MC}, v{V_T0}")
    e("s_waitcnt lgkmcnt(0)")
    e(f"s_add_u32 s{S_WQ}, s38, s{S_T2}")
    e(f"s_addc_u32 s{S_WQ+1}, s39, 0")
    e(f"s_add_u32 s{S_X}, s32, s{S_IT}")
    e(f"s_addc_u32 s{S_X+1}, s33, 0")
    stamp(1)
    for i in range(5):
        e(f"buffer_load_dwordx4 {vr(XF+4*i,4)}, v{XO+i}, s[{S_X}:{S_X+3}], 0 offen")
    def q_issue(s_):
        if s_ == nwarm: e("s_barrier")
        buf = WB + 32 * (s_ % nwb)
        e(f"s_lshl_b32 s{S_OFF}, s{S_U}, 18")
        for t in range(8):
            e(f"buffer_load_dwordx4 {vr(buf+4*t,4)}, v{V_WOFF}, s[{S_WQ}:{S_WQ+3}], s{S_OFF} offen {wpol}")
            if t < 7: e(f"s_add_u32 s{S_OFF}, s{S_OFF}, 8192")
        if s_ < 8:
            e(f"s_add_u32 s{S_U}, s{S_U}, 1")
            e(f"s_cmp_eq_u32 s{S_U}, 9")
            e(f"s_cselect_b32 s{S_U}, 0, s{S_U}")
        else:
            stamp(2)
        if s_ == bar1: e("s_barrier")
    assert nwarm < qdepth
    for s_ in range(qdepth): q_issue(s_)
    consts()
    e(f"v_mul_u32_u24 v{V_T0}, {QP_ROW}, v{V_T1}")
    e(f"v_lshl_add_u32 v{V_T2}, v{V_G}, 1, v{V_T2}")
    e(f"v_lshl_add_u32 v{V_T0}, v{V_T2}, 6, v{V_T0}")
    e(f"s_mul_i32 s{S_T0}, s{S_T1}, {8*QP_ROW}")
    e(f"s_lshl_b32 s{S_T3}, s{S_T3}, 9")
    e(f"s_add_u32 s{S_T0}, s{S_T0}, s{S_T3}")
    e(f"s_add_u32 s{S_T0}, s{S_T0}, {LDS_QP}")
    e(f"v_add_u32 v{V_QW}, s{S_T0}, v{V_T0}")
    e(f"v_mov_b32 v{V_MC}, {SB}")
    e(f"v_mov_b32 v{V_L}, 1")
    assert qdepth < nwb
    for s_ in range(9):
        nxt = s_ + qdepth
        inflight = min(9, nxt) - s_ - 1
        e(f"s_waitcnt vmcnt({8*inflight})")
        if nxt < 9: q_issue(nxt)
        xb = XB + 4 * (s_ & 1); xf = XF + 4 * (s_ >> 1)
        for r in range(4):
            e(f"v_mov_b32_dpp v{xb+r}, v{xf+r} quad_perm:[0,1,2,3] row_mask:0xf bank_mask:{'0xc' if s_ & 1 else '0x3'}")
            e(f"v_mov_b32_dpp v{xb+r}, v{xf+r} row_ror:8 row_mask:0xf bank_mask:{'0x3' if s_ & 1 else '0xc'}")
        unit_mma(WB + 32 * (s_ % nwb), xb, QA, s_ == 0, QT)
    e("s_nop 0")
    QCC = WB + 32 * (9 % nwb)
    for i in range(8):
        for ee in range(2):
            e(f"v_cndmask_b32 v{QCC+ee*8+i}, v{QA+4*i+ee}, v{QA+4*i+2+ee}, s[{S_MASK}:{S_MASK+1}]")
    for x_ in range(4):
        e(f"ds_write_b128 v{V_QW}, {vr(QCC+4*x_,4)} offset:{16*x_}")
    e("s_mov_b64 exec, 1")
    e("s_waitcnt lgkmcnt(0)")
    e(f"ds_add_u32 v{V_MC}, v{V_L} offset:{LDS_FLAG-SB}")
    e("s_mov_b64 exec, -1")
    stamp(3)
    e("s_branch L_wo")

    e.label("L_kv")
    if kprio0: e(f"s_setprio {kprio0}")
    e(f"v_lshrrev_b32 v{V_T0}, 1, v{V_N}")
    e(f"v_lshlrev_b32 v{V_T0}, 10, v{V_T0}")
    e(f"v_and_b32 v{V_T1}, 1, v{V_N}")
    e(f"v_lshlrev_b32 v{V_T1}, 4, v{V_T1}")
    e(f"v_lshlrev_b32 v{V_T2}, 5, v{V_G}")
    e(f"v_add3_u32 v{V_KOFF}, v{V_T0}, v{V_T1}, v{V_T2}")
    e(f"v_lshlrev_b32 v{V_T0}, 11, v{V_G}")
    e(f"v_lshl_add_u32 v{V_VOFF}, v{V_N}, 4, v{V_T0}")
    e(f"v_mov_b32 v{V_Z}, 0")
    e(f"v_mov_b32 v{V_Z+1}, 0")
    e(f"v_mov_b32 v{V_T0}, -1")
    e(f"v_mov_b32 v{V_T2}, {SB}")
    e(f"v_lshl_add_u32 v{V_T1}, v0, 2, v{V_T2}")
    e(f"ds_write_b64 v{V_T2}, {vr(V_Z,2)} offset:{LDS_FLAG-SB}")
    e(f"ds_write_b64 v{V_T2}, {vr(V_Z,2)} offset:{LDS_FLAG+8-SB}")
    e(f"ds_write_b32 v{V_T1}, v{V_T0} offset:{LDS_XCH-SB}")
    e(f"s_lshl_b32 s{S_T0}, s{S_BP}, 5")
    e(f"s_add_u32 s{S_T0}, s{S_T0}, s{S_HKV}")
    e(f"s_lshl_b32 s{S_T0}, s{S_T0}, 19")
    e(f"s_lshl_b32 s{S_T1}, s{S_BP}, 2")
    e(f"s_lshr_b32 s{S_NPRE}, 0x{table(npre):08x}, s{S_T1}")
    e(f"s_and_b32 s{S_NPRE}, s{S_NPRE}, 15")
    e(f"s_lshr_b32 s{S_IT}, 0x{table([x//2 for x in Es]):08x}, s{S_T1}")
    e(f"s_and_b32 s{S_IT}, s{S_IT}, 15")
    e(f"s_lshl_b32 s{S_LIM}, s{S_IT}, 16")
    e(f"s_sub_u32 s{S_T1}, 16, s{S_IT}")
    e(f"s_cmp_ge_u32 s{S_WAVE}, 2")
    e(f"s_cselect_b32 s{S_K+2}, s{S_LIM}, 0x880000")
    e(f"s_cselect_b32 s{S_V+2}, s{S_LIM}, 0x880000")
    e(f"s_cselect_b32 s{S_IT}, s{S_IT}, s{S_T1}")
    e(f"s_mov_b32 s{S_K+3}, 0x00020000")
    e(f"s_mov_b32 s{S_V+3}, 0x00020000")
    e(f"s_lshl_b32 s{S_OFF}, s{S_WAVE}, 13")
    e(f"s_lshl_b32 m0, s{S_WAVE}, 15")
    e("s_waitcnt lgkmcnt(0)")
    e(f"s_add_u32 s{S_K}, s34, s{S_T0}")
    e(f"s_addc_u32 s{S_K+1}, s35, 0")
    e(f"s_add_u32 s{S_V}, s36, s{S_T0}")
    e(f"s_addc_u32 s{S_V+1}, s37, 0")
    stamp(1)
    def ld_k(buf, soff):
        for u in range(4):
            for j in range(2):
                e(f"buffer_load_dwordx4 {vr(buf+(u*2+j)*4,4)}, v{V_KOFF}, s[{S_K}:{S_K+3}], {soff} offen offset:{u*256+j*128} {pol}")
    def ld_v(buf, soff):
        for t in range(8):
            e(f"buffer_load_dwordx4 {vr(buf+t*4,4)}, v{V_VOFF}, s[{S_V}:{S_V+3}], {soff} offen offset:{t*256} {pol}")
    def ld_lds():
        for i in range(8):
            e(f"buffer_load_dwordx4 v{V_KOFF}, s[{S_K}:{S_K+3}], s{S_OFF} offen offset:{i*128} {pol} lds")
            e(f"s_add_u32 m0, m0, {896 if i < 7 else 8192-7*896}")
            e("s_nop 0" if i < 7 else "s_waitcnt vmcnt(55)")
        for t in range(8):
            e(f"buffer_load_dwordx4 v{V_VOFF}, s[{S_V}:{S_V+3}], s{S_OFF} offen offset:{t*256} {pol} lds")
            e(f"s_add_u32 m0, m0, {768 if t < 7 else 8192-7*768}")
            if t < 7: e("s_nop 0")
    def gate(g):
        e(f"s_cmp_lg_u32 s{S_NPRE}, {g}")
        e(f"s_cbranch_scc1 L_g{g}")
        e("s_barrier")
        e("s_barrier")
        e.label(f"L_g{g}")
    for g in range(5):
        if g in npre: gate(g)
        if g < 2: ld_k(KB[g], f"s{S_OFF}"); ld_v(VB[g], f"s{S_OFF}")
        elif g < 4: ld_lds()
        if g < 4: e(f"s_add_u32 s{S_OFF}, s{S_OFF}, 0x8000")
    stamp(2)
    e(f"s_setprio {prio[1]}")
    if prio[0] != prio[1]:
        e(f"s_cmp_ge_u32 s{S_WAVE}, 2")
        e("s_cbranch_scc1 L_pr")
        e(f"s_setprio {prio[0]}")
        e.label("L_pr")
    consts()
    c = math.log2(math.e) / math.sqrt(128.0)
    cbits = struct.unpack("<I", struct.pack("<f", c))[0]
    e(f"s_mov_b32 s{S_C}, 0x{cbits:08x}")
    A0, A1, A2, A3 = TMP, TMP+1, TMP+2, TMP+3
    e(f"v_lshrrev_b32 v{A3}, 3, v0")
    e(f"v_and_b32 v{A1}, 3, v{V_N}")
    e(f"v_mul_u32_u24 v{A0}, {QP_ROW}, v{A1}")
    e(f"v_bfe_u32 v{A2}, v{V_N}, 2, 1")
    e(f"v_lshl_add_u32 v{A0}, v{A2}, 9, v{A0}")
    e(f"v_lshl_add_u32 v{A0}, v{A3}, 5, v{A0}")
    e(f"v_add_u32 v{V_QRD}, {LDS_QP}, v{A0}")
    e(f"v_mul_u32_u24 v{A0}, {OB_ROW}, v{A1}")
    e(f"v_lshl_add_u32 v{A0}, v{A2}, 8, v{A0}")
    e(f"v_lshl_add_u32 v{A0}, v{A3}, 5, v{A0}")
    e(f"s_mul_i32 s{S_T0}, s{S_WAVE}, {4*OB_ROW}")
    e(f"s_add_u32 s{S_T3}, s{S_T0}, {LDS_OB + 8*OB_ROW}")
    e(f"s_lshl_b32 s{S_T0}, s{S_WAVE}, 15")
    e(f"s_add_u32 s{S_T1}, s{S_T0}, 16384")
    e(f"s_cmp_ge_u32 s{S_WAVE}, 2")
    e(f"s_cselect_b32 s{S_T3}, s{S_T1}, s{S_T3}")
    e(f"s_cselect_b32 s{S_T1}, 0, 64")
    e(f"v_add_u32 v{V_OBW}, s{S_T3}, v{A0}")
    e(f"v_lshlrev_b32 v{A0}, 4, v0")
    e(f"v_add_u32 v{V_LR}, s{S_T0}, v{A0}")
    e(f"v_and_b32 v{A2}, 7, v{V_N}")
    e(f"v_mul_u32_u24 v{A0}, {OP_ROW}, v{A2}")
    e(f"v_lshl_add_u32 v{A0}, v{A3}, 6, v{A0}")
    e(f"v_add_u32 v{V_OPW}, s{S_T0}, v{A0}")
    e(f"s_lshl_b32 s{S_T0}, s{S_WAVE}, 2")
    e(f"s_add_u32 s{S_T0}, s{S_T0}, {SB}")
    e(f"v_lshlrev_b32 v{A0}, 4, v{A2}")
    e(f"v_add_u32 v{V_MLW}, s{S_T0}, v{A0}")
    e(f"s_lshl_b32 s{S_T0}, s{S_WAVE}, 6")
    e(f"s_add_u32 s{S_T0}, s{S_T0}, {SB}")
    e(f"v_lshlrev_b32 v{A0}, 3, v{A2}")
    e(f"v_add_u32 v{V_XW}, s{S_T0}, v{A0}")
    e(f"v_xor_b32 v{V_XR}, s{S_T1}, v{V_XW}")
    wait_flag("L_wq", LDS_FLAG, 4, V_T2, V_T0)
    stamp(3)
    e.label("L_qload")
    for j in range(2):
        for ee in range(2):
            for h in range(2):
                e(f"ds_read_b128 {vr(TMP+j*16+ee*8+h*4,4)}, v{V_QRD} offset:{ee*8*QP_ROW+j*256+h*16}")
    for i in range(16):
        e(f"v_pk_mul_f32 {vr(OA+2*i,2)}, {vr(V_Z,2)}, {vr(V_Z,2)}")
    e(f"v_mov_b32 v{V_MC}, 0xf149f2ca")
    e(f"v_mov_b32 v{V_L}, 0")
    e(f"v_mov_b32 v{XT}, 0xf149f2ca")
    e(f"v_add_u32 v{V_QRD}, {4*QP_ROW}, v{V_QRD}")
    for j in range(2):
        e(f"s_waitcnt lgkmcnt({4-4*j})")
        for i in range(4):
            e(f"v_pk_add_f32 {vr(TMP+j*16+2*i,2)}, {vr(TMP+j*16+2*i,2)}, {vr(TMP+j*16+8+2*i,2)}")
        for i in range(4):
            e(f"v_cvt_pk_bf16_f32 v{QF+j*4+i}, v{TMP+j*16+2*i}, v{TMP+j*16+2*i+1}")
    e(f"s_cmp_ge_u32 s{S_IT}, 100")
    e("s_cbranch_scc1 L_loop")
    stamp(4)

    def adv():
        e(f"s_cmp_lt_u32 s{S_OFF}, s{S_LIM}")
        e(f"s_cselect_b32 s{S_T0}, 2, 1")
        e(f"s_lshl_b32 s{S_T0}, s{S_T0}, 14")
        e(f"s_add_u32 s{S_OFF}, s{S_OFF}, s{S_T0}")
        e(f"s_bitcmp1_b32 s{S_OFF}, 19")
        e(f"s_cselect_b32 s{S_T0}, 0x780000, 0")
        e(f"s_add_u32 s{S_OFF}, s{S_OFF}, s{S_T0}")
    def lreduce():
        e("s_nop 1")
        e(f"v_add_f32_dpp v{V_L}, v{V_L}, v{V_L} row_ror:8 row_mask:0xf bank_mask:0xf")
        e(f"v_mov_b32 v{V_T1}, v{V_L}")
        e("s_nop 1")
        e(f"v_permlane32_swap_b32 v{V_L}, v{V_T1}")
        e(f"v_add_f32 v{V_L}, v{V_L}, v{V_T1}")
        e(f"v_mov_b32 v{V_T1}, v{V_L}")
        e("s_nop 1")
        e(f"v_permlane16_swap_b32 v{V_L}, v{V_T1}")
        e(f"v_add_f32 v{V_L}, v{V_L}, v{V_T1}")
    def merge(acc, dst):
        for i in range(8):
            for ee in range(2):
                e(f"v_add_f32_dpp v{dst+ee*8+i}, v{acc+4*i+ee}, v{acc+4*i+ee} row_ror:8 row_mask:0xf bank_mask:0x3")
                e(f"v_add_f32_dpp v{dst+ee*8+i}, v{acc+4*i+2+ee}, v{acc+4*i+2+ee} row_ror:8 row_mask:0xf bank_mask:0xc")

    def tile(p, wk, wv, kis=None, vis=None, last=False, lds=None):
        kb, vb = (KB[p], VB[p]) if lds is None else (TMP, TMP)
        e(f"s_waitcnt vmcnt({wk})")
        if lds is not None:
            for j in range(2):
                for u in range(4):
                    e(f"ds_read_b128 {vr(TMP+(u*2+j)*4,4)}, v{V_LR} offset:{lds*16384+(u*2+j)*1024}")
        if kis and kis[0] == "early": ld_k(kis[1], f"s{S_OFF}")
        for j in range(2):
            if lds is not None: e(f"s_waitcnt lgkmcnt({4-4*j})")
            for u in range(4):
                cc = "0" if j == 0 else vr(ST+u*4, 4)
                e(f"v_mfma_f32_16x16x32_bf16 {vr(ST+u*4,4)}, {vr(kb+(u*2+j)*4,4)}, {vr(QF+j*4,4)}, {cc}")
        if kis and kis[0] == "late": ld_k(kis[1], f"s{S_OFF}")
        elif lds is not None:
            e(f"s_waitcnt vmcnt({wv})")
            for t in range(8):
                e(f"ds_read_b128 {vr(TMP+t*4,4)}, v{V_LR} offset:{lds*16384+8192+t*1024}")
        else: e("s_nop 4")
        S = [SS+i for i in range(4)]
        for u in range(4):
            a = ST + 4*u
            e(f"v_add_f32_dpp v{S[u]}, v{a+1}, v{a} row_ror:8 row_mask:0xf bank_mask:0x3")
            e(f"v_add_f32_dpp v{S[u]}, v{a+2}, v{a+3} row_ror:8 row_mask:0xf bank_mask:0xc")
        e(f"v_max3_f32 v{V_T0}, v{S[0]}, v{S[1]}, v{XT}")
        e(f"v_max3_f32 v{V_T0}, v{S[2]}, v{S[3]}, v{V_T0}")
        e("s_nop 1")
        e(f"v_max_f32_dpp v{V_T0}, v{V_T0}, v{V_T0} row_ror:8 row_mask:0xf bank_mask:0xf")
        e(f"v_mov_b32 v{V_T1}, v{V_T0}")
        e("s_nop 1")
        e(f"v_permlane32_swap_b32 v{V_T0}, v{V_T1}")
        e(f"v_max_f32 v{V_T0}, v{V_T0}, v{V_T1}")
        e(f"v_mov_b32 v{V_T1}, v{V_T0}")
        e("s_nop 1")
        e(f"v_permlane16_swap_b32 v{V_T0}, v{V_T1}")
        e(f"v_max_f32 v{XT}, v{V_T0}, v{V_T1}")
        e(f"v_mul_f32 v{V_T0}, s{S_C}, v{XT}")
        e(f"v_sub_f32 v{V_AL}, v{V_MC}, v{V_T0}")
        e(f"v_exp_f32 v{V_AL}, v{V_AL}")
        e(f"v_mov_b32 v{V_MC}, v{V_T0}")
        for i in range(4):
            e(f"v_fma_f32 v{S[i]}, v{S[i]}, s{S_C}, -v{V_MC}")
        for i in range(4):
            e(f"v_exp_f32 v{S[i]}, v{S[i]}")
        def rescale():
            for i in range(16):
                e(f"v_pk_mul_f32 {vr(OA+2*i,2)}, {vr(OA+2*i,2)}, {vr(V_AL,2)} op_sel_hi:[1,0]")
        if not last: rescale()
        e(f"v_add_f32 v{V_T0}, v{S[0]}, v{S[1]}")
        e(f"v_add_f32 v{V_T1}, v{S[2]}, v{S[3]}")
        e(f"v_fma_f32 v{V_L}, v{V_L}, v{V_AL}, v{V_T0}")
        e(f"v_add_f32 v{V_L}, v{V_L}, v{V_T1}")
        if last:
            lreduce()
            e(f"ds_write_b64 v{V_XW}, {vr(V_MC,2)} offset:{LDS_XCH-SB}")
            M2, L2 = TMP, TMP+1
            e.label("L_xch")
            e(f"ds_read_b64 {vr(M2,2)}, v{V_XR} offset:{LDS_XCH-SB}")
            e("s_waitcnt lgkmcnt(0)")
            e(f"v_cmp_eq_u32 vcc, -1, v{M2}")
            e("s_cbranch_vccnz L_xch")
            e(f"v_max_f32 v{V_T0}, v{M2}, v{V_MC}")
            e(f"v_sub_f32 v{M2}, v{M2}, v{V_T0}")
            e(f"v_sub_f32 v{V_T1}, v{V_MC}, v{V_T0}")
            e(f"v_exp_f32 v{M2}, v{M2}")
            e(f"v_exp_f32 v{V_T1}, v{V_T1}")
            e(f"v_mul_f32 v{V_T0}, v{M2}, v{L2}")
            e(f"v_fmac_f32 v{V_T0}, v{V_T1}, v{V_L}")
            e(f"v_rcp_f32 v{V_T0}, v{V_T0}")
            e("s_nop 0")
            e(f"v_mul_f32 v{V_T1}, v{V_T1}, v{V_T0}")
            e(f"v_mul_f32 v{V_AL}, v{V_AL}, v{V_T1}")
            for i in range(4):
                e(f"v_mul_f32 v{S[i]}, v{S[i]}, v{V_T1}")
            rescale()
            stamp(6)
        e(f"v_cvt_pk_bf16_f32 v{V_T0}, v{S[0]}, v{S[1]}")
        e(f"v_cvt_pk_bf16_f32 v{V_T1}, v{S[2]}, v{S[3]}")
        e(f"v_cndmask_b32 v{PP}, v{V_T0}, 0, s[{S_MASK}:{S_MASK+1}]")
        e(f"v_cndmask_b32 v{PP+1}, v{V_T1}, 0, s[{S_MASK}:{S_MASK+1}]")
        e(f"v_cndmask_b32 v{PP+2}, 0, v{V_T0}, s[{S_MASK}:{S_MASK+1}]")
        e(f"v_cndmask_b32 v{PP+3}, 0, v{V_T1}, s[{S_MASK}:{S_MASK+1}]")
        if lds is not None: e("s_waitcnt lgkmcnt(0)")
        else: e(f"s_waitcnt vmcnt({wv})")
        if last: stamp(7)
        if vis and vis[0] == "early": ld_v(vis[1], f"s{S_OFF}")
        unit_mma(vb, PP, OA, False, PT)
        if vis and vis[0] == "late": ld_v(vis[1], f"s{S_OFF}")
        if vis: adv()

    kw = "early" if kearly else "late"
    vw = "early" if vearly else "late"
    tile(0, 55, 55, ("late", KB[0]), ("late", VB[0]))
    tile(1, 56, 48)
    tile(0, 40, 32, lds=0)
    tile(0, 24, 16, lds=1)
    e(f"s_sub_u32 s{S_IT}, s{S_IT}, 2")
    e(f"s_cmp_eq_u32 s{S_IT}, 0")
    e("s_cbranch_scc1 L_flush")
    e.label("L_loop")
    tile(0, 8, 8, (kw, KB[1]), (vw, VB[1]))
    e(f"s_cmp_eq_u32 s{S_IT}, 101")
    e("s_cbranch_scc1 L_last")
    tile(1, 8, 8, (kw, KB[0]), (vw, VB[0]))
    e(f"s_sub_u32 s{S_IT}, s{S_IT}, 1")
    e(f"s_cmp_lg_u32 s{S_IT}, 0")
    e("s_cbranch_scc1 L_loop")
    e.label("L_flush")
    stamp(5)
    lreduce()
    e(f"ds_write_b32 v{V_MLW}, v{V_MC} offset:{LDS_ML-SB}")
    e(f"ds_write_b32 v{V_MLW}, v{V_L} offset:{LDS_ML+128-SB}")
    merge(OA, TMP)
    for x_ in range(4):
        e(f"ds_write_b128 v{V_OPW}, {vr(TMP+4*x_,4)} offset:{16*x_}")
    e(f"v_mov_b32 v{V_T0}, 1")
    e("s_mov_b64 exec, 1")
    e("s_waitcnt lgkmcnt(0)")
    e(f"ds_add_u32 v{V_T2}, v{V_T0} offset:{LDS_FLAG+4-SB}")
    e("s_mov_b64 exec, -1")
    e(f"s_mov_b32 s{S_IT}, 116")
    e(f"s_cmp_lt_u32 s{S_WAVE}, 2")
    e("s_cbranch_scc1 L_qload")
    if not dryl: e("s_branch L_wo")
    e.label("L_last")
    tile(1, 8, 0, last=True)
    e("s_nop 0")
    merge(OA, TMP)
    for i in range(8):
        e(f"v_cvt_pk_bf16_f32 v{TMP+16+i}, v{TMP+2*i}, v{TMP+2*i+1}")
    e(f"ds_write_b128 v{V_OBW}, {vr(TMP+16,4)}")
    e(f"ds_write_b128 v{V_OBW}, {vr(TMP+20,4)} offset:16")
    if dryl:
        e(f"s_cmp_ge_u32 s{S_WAVE}, 2")
        e("s_cbranch_scc1 L_wo")
    e("s_waitcnt lgkmcnt(0)")
    stamp(8)
    e("s_barrier")
    if stamps:
        stamp(9); stamp(10); stamp(11)
        e("s_branch L_dump")
    else:
        e("s_endpgm")

    e.label("L_wo")
    e("s_setprio 0")
    V_WO, V_OPR, V_MLR, V_OBC, V_BRD, V_STO, V_PL, V_OO, V_TAG, V_SB, V_IDX = 1, 2, 3, 4, 5, 6, 7, 1, 2, 3, 4
    A0, A1, A2, AN, AG, AZ, AS = 232, 233, 234, 235, 236, 237, 238
    S_PW, S_PO = S_OFF, S_IT
    e(f"v_and_b32 v{AN}, 15, v0")
    e(f"v_lshrrev_b32 v{AG}, 4, v0")
    e(f"v_mov_b32 v{AZ}, 0")
    e(f"v_mov_b32 v{AS}, {SB}")
    e(f"s_sub_u32 s{S_T3}, s{S_WAVE}, 2")
    e(f"v_lshrrev_b32 v{A0}, 5, v0")
    e(f"v_mul_u32_u24 v{A0}, {16*1152}, v{A0}")
    e(f"v_and_b32 v{A1}, 1, v{AG}")
    e(f"v_mul_u32_u24 v{A1}, {4*1152}, v{A1}")
    e(f"v_mul_u32_u24 v{A2}, 12, v{AN}")
    e(f"v_add3_u32 v{A0}, v{A0}, v{A1}, v{A2}")
    e(f"s_mul_i32 s{S_T0}, s{S_T3}, 192")
    e(f"v_add_u32 v{V_WO}, s{S_T0}, v{A0}")
    e(f"s_mul_i32 s{S_T0}, s{S_HKV}, {256*1152}")
    e(f"s_add_u32 s{S_WO}, s40, s{S_T0}")
    e(f"s_addc_u32 s{S_WO+1}, s41, 0")
    e(f"s_mov_b32 s{S_WO+2}, {256*1152}")
    e(f"s_mov_b32 s{S_WO+3}, 0x00020000")
    e(f"s_mul_i32 s{S_T0}, s{S_BP}, {GRP}")
    e(f"s_add_u32 s{S_WS}, s46, s{S_T0}")
    e(f"s_addc_u32 s{S_WS+1}, s47, 0")
    e(f"s_mov_b32 s{S_WS+2}, {GRP}")
    e(f"s_mov_b32 s{S_WS+3}, 0x00020000")
    e(f"s_mov_b32 s{S_OUT}, s42")
    e(f"s_mov_b32 s{S_OUT+1}, s43")
    e(f"s_mov_b32 s{S_OUT+2}, {128*1152}")
    e(f"s_mov_b32 s{S_OUT+3}, 0x00020000")
    e(f"s_mov_b32 s{S_DBG}, s44")
    e(f"s_mov_b32 s{S_DBG+1}, s45")
    e(f"s_mov_b32 s{S_DBG+2}, 256")
    e(f"s_mov_b32 s{S_DBG+3}, 0x00020000")
    e(f"v_bfe_u32 v{A0}, v{AN}, 1, 1")
    e(f"v_lshrrev_b32 v{A1}, 2, v{AN}")
    e(f"v_lshl_add_u32 v{A0}, v{A0}, 2, v{A1}")
    e(f"v_mul_u32_u24 v{A0}, {OB_ROW}, v{A0}")
    e(f"v_lshl_add_u32 v{A0}, v{AG}, 5, v{A0}")
    e(f"v_and_b32 v{A1}, 1, v{AN}")
    e(f"v_lshl_add_u32 v{A0}, v{A1}, 4, v{A0}")
    e(f"v_add_u32 v{V_BRD}, {LDS_OB}, v{A0}")
    e(f"v_mul_u32_u24 v{A0}, {6*4096}, v{AG}")
    e(f"v_lshlrev_b32 v{A1}, 4, v{AN}")
    e(f"s_lshl_b32 s{S_T0}, s{S_T3}, 12")
    e(f"s_lshl_b32 s{S_T1}, s{S_HKV}, 8")
    e(f"s_add_u32 s{S_T1}, s{S_T1}, s{S_T0}")
    e(f"v_add3_u32 v{V_STO}, v{A0}, v{A1}, s{S_T1}")
    e(f"s_lshr_b32 s{S_T1}, s{S_HKV}, 1")
    e(f"s_mul_i32 s{S_T1}, s{S_T1}, {6*4096}")
    e(f"s_add_u32 s{S_T0}, s{S_T0}, s{S_T1}")
    e(f"s_and_b32 s{S_T1}, s{S_HKV}, 1")
    e(f"s_lshl_b32 s{S_T1}, s{S_T1}, 7")
    e(f"s_add_u32 s{S_T0}, s{S_T0}, s{S_T1}")
    e(f"v_lshrrev_b32 v{A0}, 3, v0")
    e(f"v_lshlrev_b32 v{A0}, 8, v{A0}")
    e(f"v_and_b32 v{A1}, 7, v0")
    e(f"v_lshlrev_b32 v{A1}, 4, v{A1}")
    e(f"v_add3_u32 v{V_PL}, v{A0}, v{A1}, s{S_T0}")
    e(f"v_lshrrev_b32 v{A1}, 5, v0")
    e(f"s_and_b32 s{S_T1}, s{S_WAVE}, 3")
    e(f"s_lshl_b32 s{S_T1}, s{S_T1}, 1")
    e(f"v_add_u32 v{A1}, s{S_T1}, v{A1}")
    e(f"v_and_b32 v{A2}, 31, v0")
    e(f"s_cmp_ge_u32 s{S_WAVE}, 4")
    e("s_cbranch_scc1 L_nozero")
    for i in range(4): e(f"v_mov_b32 v{240+i}, 0")
    e(f"v_mul_u32_u24 v{A0}, {OB_ROW}, v{A1}")
    e(f"v_lshl_add_u32 v{A0}, v{A2}, 4, v{A0}")
    e(f"v_add_u32 v{A0}, v{AS}, v{A0}")
    e(f"ds_write_b128 v{A0}, v[240:243] offset:{LDS_OB-SB}")
    e.label("L_nozero")
    e(f"v_mul_u32_u24 v{V_OPR}, {OP_ROW}, v{A1}")
    e(f"v_lshl_add_u32 v{V_OPR}, v{A2}, 4, v{V_OPR}")
    e(f"v_lshl_add_u32 v{V_MLR}, v{A1}, 4, v{AS}")
    e(f"v_and_b32 v{A0}, 3, v{A1}")
    e(f"v_mul_u32_u24 v{A0}, {OB_ROW}, v{A0}")
    e(f"v_lshrrev_b32 v{A1}, 2, v{A1}")
    e(f"v_lshl_add_u32 v{A0}, v{A1}, 8, v{A0}")
    e(f"v_lshl_add_u32 v{A0}, v{A2}, 3, v{A0}")
    e(f"v_add_u32 v{V_OBC}, v{AS}, v{A0}")
    e(f"s_lshl_b32 s{S_T0}, s2, 3")
    e(f"s_add_u32 s{S_T0}, s{S_T0}, s{S_WAVE}")
    e(f"s_cmp_lg_u32 s{S_T0}, 7")
    e("s_cbranch_scc1 L_notag")
    e(f"s_memrealtime s[{S_T1}:{S_T1+1}]")
    e("s_waitcnt lgkmcnt(0)")
    e(f"s_or_b32 s{S_T1}, s{S_T1}, 1")
    e(f"v_mov_b32 v{A1}, s{S_T1}")
    e("s_mov_b64 exec, 1")
    e(f"buffer_store_dword v{A1}, v{AZ}, s[{S_DBG}:{S_DBG+3}], 0 offen sc1")
    e("s_mov_b64 exec, -1")
    e.label("L_notag")
    if wostart:
        wait_flag("L_ws", LDS_FLAG+4, wostart, AS, A0, 8)
    stamp(4)
    for j in range(4):
        for hh in range(2):
            for t in range(8):
                if t % 4 == 0: e(f"s_mov_b32 s{S_T0}, {(64*j+32*hh+(t>>2)*8)*1152}")
                if not nowo: e(f"buffer_load_dwordx3 {vr(BF+4*t,3)}, v{V_WO}, s[{S_WO}:{S_WO+3}], s{S_T0} offen offset:{(t%4)*1152} {wopol}")
                if (t + 1) % wog == 0:
                    e("s_waitcnt vmcnt(0)")
            for i in range(6):
                w_, h = i >> 1, i & 1
                sel = S_HI if h else S_LO
                for r in range(4):
                    tl = (r & 1) * 4 + ((r >> 1) & 1) * 2
                    e(f"v_perm_b32 v{WF+(j*6+i)*8+hh*4+r}, v{BF+(tl+1)*4+w_}, v{BF+tl*4+w_}, s{sel}")
    stamp(5)
    e(f"s_lshl_b32 s{S_T0}, s{S_BP}, 3")
    e(f"s_lshr_b32 s{S_T1}, s{S_HKV}, 1")
    e(f"s_add_u32 s{S_T0}, s{S_T0}, s{S_T1}")
    e(f"s_mul_i32 s{S_T0}, s{S_T0}, 1152")
    e(f"s_mul_i32 s{S_T1}, s{S_T3}, 192")
    e(f"s_add_u32 s{S_T0}, s{S_T0}, s{S_T1}")
    e(f"s_and_b32 s{S_T1}, s{S_HKV}, 1")
    e(f"s_mul_i32 s{S_T1}, s{S_T1}, 96")
    e(f"s_add_u32 s{S_T0}, s{S_T0}, s{S_T1}")
    e(f"v_mul_u32_u24 v{A0}, 12, v{AN}")
    e(f"v_lshl_add_u32 v{A0}, v{AG}, 2, v{A0}")
    e(f"v_add_u32 v{V_OO}, s{S_T0}, v{A0}")
    e(f"s_cmp_lg_u32 s{S_WAVE}, 3")
    e("s_cbranch_scc1 L_nochk")
    e(f"s_mov_b32 s{S_T1}, 0x40000")
    e.label("L_chk")
    e(f"buffer_load_dword v{A0}, v{AZ}, s[{S_DBG}:{S_DBG+3}], 0 offen sc1")
    e("s_waitcnt vmcnt(0)")
    e(f"v_readfirstlane_b32 s{S_T0}, v{A0}")
    e(f"ds_write_b32 v{AS}, v{A0} offset:{LDS_FLAG+8-SB}")
    e(f"s_sub_u32 s{S_T1}, s{S_T1}, 1")
    e("s_cbranch_scc1 L_nochk")
    e(f"s_cmp_lg_u32 s{S_T0}, 0")
    e("s_cbranch_scc1 L_nochk")
    e("s_sleep 8")
    e("s_branch L_chk")
    e.label("L_nochk")
    e(f"s_cmp_lt_u32 s{S_WAVE}, 4")
    e("s_cbranch_scc1 L_comb_d")
    wait_flag("L_wf", LDS_FLAG+4, 4, AS, A0, 8)
    MM, LL, OO, CT = BF, BF+4, BF+8, A0
    e(f"ds_read_b128 {vr(MM,4)}, v{V_MLR} offset:{LDS_ML-SB}")
    e(f"ds_read_b128 {vr(LL,4)}, v{V_MLR} offset:{LDS_ML+128-SB}")
    e(f"v_add_u32 v{A1}, 0x10000, v{V_OPR}")
    for p in range(4):
        e(f"ds_read_b128 {vr(OO+4*p,4)}, v{V_OPR if p < 2 else A1} offset:{(p&1)*32768}")
    e("s_waitcnt lgkmcnt(4)")
    e(f"v_max3_f32 v{CT}, v{MM}, v{MM+1}, v{MM+2}")
    e(f"v_max_f32 v{CT}, v{CT}, v{MM+3}")
    for p in range(4): e(f"v_sub_f32 v{MM+p}, v{MM+p}, v{CT}")
    for p in range(4): e(f"v_exp_f32 v{MM+p}, v{MM+p}")
    e("s_nop 0")
    e(f"v_mul_f32 v{CT}, v{MM}, v{LL}")
    for p in range(1, 4): e(f"v_fmac_f32 v{CT}, v{MM+p}, v{LL+p}")
    e(f"v_rcp_f32 v{CT}, v{CT}")
    e("s_nop 0")
    for p in range(4): e(f"v_mul_f32 v{MM+p}, v{MM+p}, v{CT}")
    e("s_waitcnt lgkmcnt(0)")
    for i in range(4): e(f"v_mul_f32 v{OO+i}, v{OO+i}, v{MM}")
    for p in range(1, 4):
        for i in range(4): e(f"v_fmac_f32 v{OO+i}, v{OO+4*p+i}, v{MM+p}")
    e(f"v_cvt_pk_bf16_f32 v{LL}, v{OO}, v{OO+1}")
    e(f"v_cvt_pk_bf16_f32 v{LL+1}, v{OO+2}, v{OO+3}")
    e(f"ds_write_b64 v{V_OBC}, {vr(LL,2)} offset:{LDS_OB-SB}")
    e.label("L_comb_d")
    AF, G, G0, SEL, DD = 200, 216, 220, 224, 228
    F = AF
    e(f"v_mov_b32 v{V_SB}, {SB}")
    e(f"v_mov_b32 v{A0}, 1")
    e("s_mov_b64 exec, 1")
    e("s_waitcnt lgkmcnt(0)")
    e(f"ds_add_u32 v{V_SB}, v{A0} offset:{LDS_FLAG+12-SB}")
    e("s_mov_b64 exec, -1")
    e(f"v_and_b32 v{A1}, 1, v0")
    e(f"v_mul_u32_u24 v{V_IDX}, 0xaaaa, v{A1}")
    e(f"v_add_u32 v{V_IDX}, 0x4444, v{V_IDX}")
    e(f"v_lshlrev_b32 v{A1}, 4, v{A1}")
    e(f"v_mov_b32 v{A2}, 0x3f80")
    e(f"v_lshlrev_b32 v{A1}, v{A1}, v{A2}")
    e(f"v_and_b32 v{A2}, 14, v0")
    for q in range(3):
        e(f"v_cmp_eq_u32 vcc, {4*q}, v{A2}")
        e(f"v_cndmask_b32 v{SEL+q}, 0, v{A1}, vcc")
    e(f"v_mov_b32 v{SEL+3}, 0")
    e(f"s_mov_b32 s{S_PW}, 0")
    e(f"s_mov_b32 s{S_WS+2}, 0")
    e(f"s_mov_b32 s{S_OUT+2}, 0")
    e(f"s_mov_b32 s{S_CAP}, 0")
    wait_flag("L_w0", LDS_FLAG+12, 6, V_SB, F, 8)
    e(f"ds_read_b32 v{V_TAG}, v{V_SB} offset:{LDS_FLAG+8-SB}")
    for i in range(24): e(f"v_mov_b32 v{PA+i}, 0")
    e("s_waitcnt lgkmcnt(0)")
    e(f"v_mov_b32 v{G+3}, v{V_TAG}")
    e("s_branch L_tail")
    e.label("L_barB")
    e("s_mov_b64 exec, -1")
    e("s_waitcnt vmcnt(0)")
    for i in range(24): e(f"v_mov_b32 v{PA+i}, 0")
    for i in range(4): e(f"v_mov_b32 v{G0+i}, v{G+i}")
    e(f"v_add_u32 v{V_BRD}, {8*OB_ROW}, v{V_BRD}")
    e(f"s_mov_b32 s{S_PW}, {4*6*4096}")
    e(f"s_mov_b32 s{S_WS+2}, {GRP}")
    e(f"s_mov_b32 s{S_OUT+2}, {128*1152}")
    e(f"s_mov_b32 s{S_CAP}, 0x40000")
    if tprio: e(f"s_setprio {tprio}")
    stamp(6)
    e("s_barrier")
    stamp(7)
    e.label("L_tail")
    for j in range(4):
        e(f"ds_read_b128 {vr(AF+4*j,4)}, v{V_BRD} offset:{j*128}")
    if not nostore and not g0late: e(f"buffer_store_dwordx4 {vr(G0,4)}, v{V_STO}, s[{S_WS}:{S_WS+3}], 0 offen {spol}")
    def adds(i):
        e(f"v_pk_add_f32 {vr(PA+4*i,2)}, {vr(PA+4*i,2)}, {vr(PA+4*i+2,2)}")
        e(f"v_add_f32 v{PA+4*i}, v{PA+4*i}, v{PA+4*i+1}")
        if i & 1: e(f"v_cvt_pk_bf16_f32 v{G+(i>>1)}, v{PA+4*i-4}, v{PA+4*i}")
    for i in range(6):
        for j in range(4):
            if i == 0: e(f"s_waitcnt lgkmcnt({3-j})")
            e(f"v_smfmac_f32_16x16x64_bf16 {vr(PA+4*i,4)}, {vr(AF+4*j,4)}, {vr(WF+(j*6+i)*8,8)}, v{V_IDX}")
        if i >= 2: adds(i - 2)
    e("s_nop 0")
    adds(4)
    e("s_nop 1")
    adds(5)
    if not nostore: e(f"buffer_store_dwordx4 {vr(G,4)}, v{V_STO}, s[{S_WS}:{S_WS+3}], s{S_PW} offen {spol}")
    if not nostore and g0late: e(f"buffer_store_dwordx4 {vr(G0,4)}, v{V_STO}, s[{S_WS}:{S_WS+3}], 0 offen {spol}")
    e("s_setprio 0")
    stamp(8)
    e(f"s_mov_b32 s{S_T1}, s{S_CAP}")
    if nopoll: e("s_branch L_pdone")
    e.label("L_poll")
    for x_ in range(2):
        e(f"buffer_load_dwordx4 {vr(F+4*x_,4)}, v{V_PL}, s[{S_WS}:{S_WS+3}], 0 offen offset:{2048*x_} {ppol}")
    e("s_waitcnt vmcnt(0)")
    e(f"v_cmp_ne_u32 vcc, v{F+3}, v{V_TAG}")
    e(f"v_cmp_ne_u32 s[{S_MASK}:{S_MASK+1}], v{F+7}, v{V_TAG}")
    e(f"s_or_b64 exec, vcc, s[{S_MASK}:{S_MASK+1}]")
    e("s_cbranch_scc0 L_pdone")
    e(f"s_sub_u32 s{S_T1}, s{S_T1}, 1")
    e("s_cbranch_scc1 L_pdone")
    e(f"s_bcnt1_i32_b64 s{S_T0}, exec")
    e(f"s_cmp_lt_u32 s{S_T0}, {slp[2]}")
    e("s_cbranch_scc1 L_poll")
    e(f"s_sleep {slp[3]}")
    e(f"s_cmp_lt_u32 s{S_T0}, {slp[0]}")
    e("s_cbranch_scc1 L_poll")
    e(f"s_sleep {slp[1]}")
    e("s_branch L_poll")
    e.label("L_pdone")
    e("s_mov_b64 exec, -1")
    stamp(9)
    e(f"v_mov_b32 v{F+3}, 0")
    e(f"v_mov_b32 v{F+7}, 0")
    e("s_nop 0")
    e(f"v_mfma_f32_16x16x32_bf16 {vr(DD,4)}, {vr(SEL,4)}, {vr(F,4)}, 0")
    e(f"v_mfma_f32_16x16x32_bf16 {vr(DD,4)}, {vr(SEL,4)}, {vr(F+4,4)}, {vr(DD,4)}")
    e("s_mov_b32 vcc_lo, 0x00ff00ff")
    e("s_mov_b32 vcc_hi, 0x000000ff")
    e("s_nop 5")
    for k in range(2):
        e(f"v_add_f32_dpp v{DD+k}, v{DD+k}, v{DD+k} row_ror:8 row_mask:0xf bank_mask:0xf")
    e("s_mov_b64 exec, vcc")
    e(f"v_cvt_pk_bf16_f32 v{DD+2}, v{DD}, v{DD+1}")
    e(f"buffer_store_dword v{DD+2}, v{V_OO}, s[{S_OUT}:{S_OUT+3}], 0 offen")
    e(f"s_cmp_eq_u32 s{S_PW}, 0")
    e("s_cbranch_scc1 L_barB")
    if stamps:
        e("s_mov_b64 exec, -1")
        stamp(10)
        e("s_waitcnt vmcnt(0)")
        stamp(11)
        e.label("L_dump")
        e(f"s_add_u32 s{S_WS}, s46, 0x800000")
        e(f"s_addc_u32 s{S_WS+1}, s47, 0")
        e(f"s_mov_b32 s{S_WS+2}, 0x100000")
        e(f"s_mov_b32 s{S_WS+3}, 0x00020000")
        e(f"s_lshl_b32 s{S_T0}, s2, 3")
        e(f"s_add_u32 s{S_T0}, s{S_T0}, s{S_WAVE}")
        e(f"s_lshl_b32 s{S_T0}, s{S_T0}, 6")
        e("v_mov_b32 v1, 0")
        for i in range(NST):
            e(f"v_mov_b32 v2, s{64+2*i}")
            e(f"buffer_store_dword v2, v1, s[{S_WS}:{S_WS+3}], s{S_T0} offen offset:{4*i}")
        e(f"s_getreg_b32 s{S_T1}, hwreg(HW_REG_XCC_ID)")
        e(f"v_mov_b32 v2, s{S_T1}")
        e(f"buffer_store_dword v2, v1, s[{S_WS}:{S_WS+3}], s{S_T0} offen offset:56")
        e(f"buffer_store_dword v1, v1, s[{S_WS}:{S_WS+3}], s{S_T0} offen offset:52")
    e.label("L_end")
    e("s_endpgm")

    e.raw('.section .rodata,"a"')
    e.raw(f""".p2align 6
.amdhsa_kernel {KN}
  .amdhsa_next_free_vgpr 256
  .amdhsa_next_free_sgpr 96
  .amdhsa_accum_offset 256
  .amdhsa_group_segment_fixed_size 0
  .amdhsa_kernarg_size 64
  .amdhsa_user_sgpr_count 2
  .amdhsa_user_sgpr_kernarg_segment_ptr 1
  .amdhsa_system_sgpr_workgroup_id_x 1
.end_amdhsa_kernel""")
    open(name, "w").write(e.text())
    return name

if __name__ == "__main__":
    S = dict(stamps=True)
    L = [gen("k6.s"), gen("k6_st.s", **S), gen("k6_gl.s", g0late=True, **S), gen("k6_s01.s", spol='sc0 sc1', **S), gen("k6_snt.s", spol='sc1 nt', **S),
         gen("k6_p01.s", ppol='sc0 sc1', **S), gen("k6_pnt.s", ppol='sc1 nt', **S), gen("k6_sl9.s", slp=(40, 16, 9, 4), **S)]
    print(" ".join("work/"+x for x in L))
    import json; print(json.dumps(["work/"+x for x in L]))
```

```python
import sys, math, struct
from gen2 import HEADER, E, vr

KN = "standalone__gqa_block_cached__sampling_kernel"
V_KOFF, V_VOFF, V_QRD, V_OPW, V_MLW, V_OBW, V_XW = 1, 2, 3, 4, 5, 6, 7
V_MC, V_L, V_AL, V_T0, V_T1, V_T2, V_N, V_G = 8, 9, 10, 11, 12, 13, 14, 15
QF, XT, V_XR, V_Z, V_LR, OA = 16, 24, 25, 26, 28, 32
KB, VB = [64, 128], [96, 160]
TMP, ST, PT, PP, SS = 192, 224, 240, 248, 252
XF, XB, QA, WB = 16, 36, 44, 76
WF, BF, PA = 8, 200, 232
S_K, S_V, S_WQ, S_X, S_WO, S_WS = 8, 12, 16, 20, 24, 28
S_OUT, S_DBG = 8, 12
S_WAVE, S_HKV, S_BP = 3, 48, 49
S_LO, S_HI, S_C = 50, 51, 52
S_IT, S_OFF, S_T0, S_T1, S_T2, S_T3 = 53, 54, 55, 56, 57, 58
S_NPRE = 59
S_MASK = 60
S_U, S_LIM = 62, 63
S_CAP = 62
OP_ROW = 528; OB_ROW = 544; QP_ROW = 1040
LDS_ML = 131072
LDS_XCH = LDS_ML + 256
LDS_FLAG = LDS_XCH + 256
LDS_OB = LDS_FLAG + 16
LDS_QP = LDS_OB + 16 * OB_ROW
LDS_TOTAL = LDS_QP + 16 * QP_ROW
NST = 12
GRP = 48 * 4096

def gen(name, pol="nt", wpol="", wopol="", stamps=False, npre=(0,2,3,0,2,3,0,3), Es=(4, 4), kearly=True, vearly=True,
        wog=2, prio=(3, 2), qdepth=3, nwb=4, wostart=2, dry=True, dryl=True, bar1=8, nwarm=1,
        slp=(40, 16, 17, 4), qprio=3, kprio0=1, nostore=False, nopoll=False, nowo=False, tprio=2, g0late=False, spol='sc1', ppol='sc1', opol='', hotend=True, hb=2, cls=None, deep=0, dw=24):
    e = E()
    QT = WB + 32 * nwb
    SB = LDS_ML
    def stamp(i):
        if not stamps: return
        e(f"s_memrealtime s[{64+2*i}:{65+2*i}]")
        e("s_waitcnt lgkmcnt(0)")
    def table(vals):
        t = 0
        for i in range(8): t |= vals[i % len(vals)] << (4 * i)
        return t
    e.raw(HEADER.rstrip("\n"))
    e.raw(f"; @launch grid=(256,1,1) block=(512,1,1) lds={LDS_TOTAL}")
    if stamps: e.raw(f"; NSTAMPS={NST}")
    e.raw('.amdgcn_target "amdgcn-amd-amdhsa--gfx950"')
    e.raw(".text")
    e.raw(f".globl {KN}\n.p2align 8\n.type {KN},@function\n{KN}:")
    if hotend:
        e("s_cmp_lt_u32 s2, 256")
        e("s_cbranch_scc1 L_main")
        e.label("L_end0")
        e("s_endpgm")
        e.label("L_main")
    else:
        e("s_cmp_ge_u32 s2, 256")
        e("s_cbranch_scc1 L_end")
    stamp(0)
    e("s_load_dwordx8 s[32:39], s[0:1], 0")
    e("s_load_dwordx8 s[40:47], s[0:1], 32")
    e("v_lshrrev_b32 v1, 6, v0")
    e("v_and_b32 v0, 63, v0")
    e(f"v_readfirstlane_b32 s{S_WAVE}, v1")
    e(f"v_and_b32 v{V_N}, 15, v0")
    e(f"v_lshrrev_b32 v{V_G}, 4, v0")
    if hb == 0:
        e(f"s_and_b32 s{S_T0}, s2, 7")
        e(f"s_lshl_b32 s{S_HKV}, s{S_T0}, 1")
        e(f"s_bfe_u32 s{S_T0}, s2, 0x10003")
        e(f"s_add_u32 s{S_HKV}, s{S_HKV}, s{S_T0}")
    elif hb == 2:
        e(f"s_lshr_b32 s{S_T0}, s2, 1")
        e(f"s_xor_b32 s{S_T0}, s{S_T0}, s2")
        e(f"s_and_b32 s{S_T0}, s{S_T0}, 4")
        e(f"s_mul_i32 s{S_T0}, s{S_T0}, 3")
        e(f"s_xor_b32 s{S_HKV}, s{S_T0}, s2")
        e(f"s_and_b32 s{S_HKV}, s{S_HKV}, 15")
    else:
        e(f"s_and_b32 s{S_HKV}, s2, 15")
    e(f"s_lshr_b32 s{S_BP}, s2, 4")
    if stamps:
        for i in range(1, NST): e(f"s_mov_b32 s{64+2*i}, s64")
    e(f"s_cmp_lt_u32 s{S_WAVE}, 4")
    e("s_cbranch_scc1 L_kv")

    def consts():
        e(f"s_mov_b32 s{S_LO}, 0x05040100")
        e(f"s_mov_b32 s{S_HI}, 0x07060302")
        e(f"s_mov_b32 s{S_MASK}, 0xff00ff00")
        e(f"s_mov_b32 s{S_MASK+1}, 0xff00ff00")
    def unit_mma(buf, bfrag, acc, first, T0):
        def perms(i):
            w_, h = i >> 1, i & 1
            sel = S_HI if h else S_LO
            T = T0 + (i & 1) * 4
            for u_ in range(4):
                e(f"v_perm_b32 v{T+u_}, v{buf+(2*u_+1)*4+w_}, v{buf+(2*u_)*4+w_}, s{sel}")
        perms(0)
        for i in range(8):
            if i + 1 < 8: perms(i + 1)
            else: e("s_nop 1")
            T = T0 + (i & 1) * 4
            cc = "0" if first else vr(acc+4*i, 4)
            e(f"v_mfma_f32_16x16x32_bf16 {vr(acc+4*i,4)}, {vr(T,4)}, {vr(bfrag,4)}, {cc}")
    def wait_flag(lab, off, val, vz, vt, slp_=1):
        e.label(lab)
        e(f"ds_read_b32 v{vt}, v{vz} offset:{off-SB}")
        e("s_waitcnt lgkmcnt(0)")
        e(f"v_readfirstlane_b32 s{S_T0}, v{vt}")
        e(f"s_cmp_ge_u32 s{S_T0}, {val}")
        e(f"s_cbranch_scc1 {lab}_d")
        e(f"s_sleep {slp_}")
        e(f"s_branch {lab}")
        e.label(lab + "_d")

    V_WOFF, XO, V_QW = 1, 2, 7
    if qprio: e(f"s_setprio {qprio}")
    e(f"v_lshlrev_b32 v{V_T0}, 16, v{V_G}")
    e(f"v_lshl_add_u32 v{V_WOFF}, v{V_N}, 4, v{V_T0}")
    e(f"v_and_b32 v{V_T1}, 7, v{V_N}")
    e(f"v_mul_u32_u24 v{V_T0}, 1152, v{V_T1}")
    e(f"v_lshl_add_u32 v{V_T0}, v{V_G}, 4, v{V_T0}")
    e(f"s_mul_i32 s{S_U}, s{S_BP}, 9")
    e(f"s_lshr_b32 s{S_U}, s{S_U}, 4")
    e(f"v_lshrrev_b32 v{V_T2}, 3, v{V_N}")
    e(f"v_add_u32 v{V_AL}, s{S_U}, v{V_T2}")
    e(f"v_lshlrev_b32 v{V_AL}, 6, v{V_AL}")
    e(f"s_mov_b32 s{S_WQ+3}, 0x00020000")
    e(f"s_mov_b32 s{S_X+3}, 0x00020000")
    e(f"s_and_b32 s{S_T1}, s{S_WAVE}, 1")
    e(f"s_bfe_u32 s{S_T3}, s{S_WAVE}, 0x10001")
    e(f"s_mul_i32 s{S_T2}, s{S_T1}, {288*8192}")
    e(f"s_lshl_b32 s{S_T0}, s{S_HKV}, 9")
    e(f"s_add_u32 s{S_T2}, s{S_T2}, s{S_T0}")
    e(f"s_lshl_b32 s{S_T0}, s{S_T3}, 8")
    e(f"s_add_u32 s{S_T2}, s{S_T2}, s{S_T0}")
    e(f"s_sub_u32 s{S_WQ+2}, {576*8192}, s{S_T2}")
    e(f"s_mul_i32 s{S_IT}, s{S_T1}, 576")
    e(f"s_mul_i32 s{S_T0}, s{S_BP}, {8*1152}")
    e(f"s_add_u32 s{S_IT}, s{S_IT}, s{S_T0}")
    e(f"s_sub_u32 s{S_X+2}, {128*1152}, s{S_IT}")
    for i in range(5):
        e(f"v_add_u32 v{V_MC}, {i*128}, v{V_AL}")
        e(f"v_add_u32 v{V_L}, {i*128-576}, v{V_AL}")
        e(f"v_min_u32 v{V_MC}, v{V_MC}, v{V_L}")
        e(f"v_add_u32 v{XO+i}, v{V_MC}, v{V_T0}")
    e("s_waitcnt lgkmcnt(0)")
    e(f"s_add_u32 s{S_WQ}, s38, s{S_T2}")
    e(f"s_addc_u32 s{S_WQ+1}, s39, 0")
    e(f"s_add_u32 s{S_X}, s32, s{S_IT}")
    e(f"s_addc_u32 s{S_X+1}, s33, 0")
    stamp(1)
    for i in range(5):
        e(f"buffer_load_dwordx4 {vr(XF+4*i,4)}, v{XO+i}, s[{S_X}:{S_X+3}], 0 offen")
    def q_issue(s_):
        if s_ == nwarm: e("s_barrier")
        buf = WB + 32 * (s_ % nwb)
        e(f"s_lshl_b32 s{S_OFF}, s{S_U}, 18")
        for t in range(8):
            e(f"buffer_load_dwordx4 {vr(buf+4*t,4)}, v{V_WOFF}, s[{S_WQ}:{S_WQ+3}], s{S_OFF} offen {wpol}")
            if t < 7: e(f"s_add_u32 s{S_OFF}, s{S_OFF}, 8192")
        if s_ < 8:
            e(f"s_add_u32 s{S_U}, s{S_U}, 1")
            e(f"s_cmp_eq_u32 s{S_U}, 9")
            e(f"s_cselect_b32 s{S_U}, 0, s{S_U}")
        else:
            stamp(2)
        if s_ == bar1: e("s_barrier")
    assert nwarm < qdepth
    for s_ in range(qdepth): q_issue(s_)
    consts()
    e(f"v_mul_u32_u24 v{V_T0}, {QP_ROW}, v{V_T1}")
    e(f"v_lshl_add_u32 v{V_T2}, v{V_G}, 1, v{V_T2}")
    e(f"v_lshl_add_u32 v{V_T0}, v{V_T2}, 6, v{V_T0}")
    e(f"s_mul_i32 s{S_T0}, s{S_T1}, {8*QP_ROW}")
    e(f"s_lshl_b32 s{S_T3}, s{S_T3}, 9")
    e(f"s_add_u32 s{S_T0}, s{S_T0}, s{S_T3}")
    e(f"s_add_u32 s{S_T0}, s{S_T0}, {LDS_QP}")
    e(f"v_add_u32 v{V_QW}, s{S_T0}, v{V_T0}")
    e(f"v_mov_b32 v{V_MC}, {SB}")
    e(f"v_mov_b32 v{V_L}, 1")
    assert qdepth < nwb
    for s_ in range(9):
        nxt = s_ + qdepth
        inflight = min(9, nxt) - s_ - 1
        e(f"s_waitcnt vmcnt({8*inflight})")
        if nxt < 9: q_issue(nxt)
        xb = XB + 4 * (s_ & 1); xf = XF + 4 * (s_ >> 1)
        for r in range(4):
            e(f"v_mov_b32_dpp v{xb+r}, v{xf+r} quad_perm:[0,1,2,3] row_mask:0xf bank_mask:{'0xc' if s_ & 1 else '0x3'}")
            e(f"v_mov_b32_dpp v{xb+r}, v{xf+r} row_ror:8 row_mask:0xf bank_mask:{'0x3' if s_ & 1 else '0xc'}")
        unit_mma(WB + 32 * (s_ % nwb), xb, QA, s_ == 0, QT)
    e("s_nop 0")
    QCC = WB + 32 * (9 % nwb)
    for i in range(8):
        for ee in range(2):
            e(f"v_cndmask_b32 v{QCC+ee*8+i}, v{QA+4*i+ee}, v{QA+4*i+2+ee}, s[{S_MASK}:{S_MASK+1}]")
    for x_ in range(4):
        e(f"ds_write_b128 v{V_QW}, {vr(QCC+4*x_,4)} offset:{16*x_}")
    e("s_mov_b64 exec, 1")
    e("s_waitcnt lgkmcnt(0)")
    e(f"ds_add_u32 v{V_MC}, v{V_L} offset:{LDS_FLAG-SB}")
    e("s_mov_b64 exec, -1")
    stamp(3)
    e("s_branch L_wo")

    e.label("L_kv")
    if kprio0: e(f"s_setprio {kprio0}")
    e(f"v_lshrrev_b32 v{V_T0}, 1, v{V_N}")
    e(f"v_lshlrev_b32 v{V_T0}, 10, v{V_T0}")
    e(f"v_and_b32 v{V_T1}, 1, v{V_N}")
    e(f"v_lshlrev_b32 v{V_T1}, 4, v{V_T1}")
    e(f"v_lshlrev_b32 v{V_T2}, 5, v{V_G}")
    e(f"v_add3_u32 v{V_KOFF}, v{V_T0}, v{V_T1}, v{V_T2}")
    e(f"v_lshlrev_b32 v{V_T0}, 11, v{V_G}")
    e(f"v_lshl_add_u32 v{V_VOFF}, v{V_N}, 4, v{V_T0}")
    e(f"v_mov_b32 v{V_Z}, 0")
    e(f"v_mov_b32 v{V_Z+1}, 0")
    e(f"v_mov_b32 v{V_T0}, -1")
    e(f"v_mov_b32 v{V_T2}, {SB}")
    e(f"v_lshl_add_u32 v{V_T1}, v0, 2, v{V_T2}")
    e(f"ds_write_b64 v{V_T2}, {vr(V_Z,2)} offset:{LDS_FLAG-SB}")
    e(f"ds_write_b64 v{V_T2}, {vr(V_Z,2)} offset:{LDS_FLAG+8-SB}")
    e(f"ds_write_b32 v{V_T1}, v{V_T0} offset:{LDS_XCH-SB}")
    e(f"s_lshl_b32 s{S_T0}, s{S_BP}, 5")
    e(f"s_add_u32 s{S_T0}, s{S_T0}, s{S_HKV}")
    e(f"s_lshl_b32 s{S_T0}, s{S_T0}, 19")
    if cls is None:
        e(f"s_lshl_b32 s{S_T1}, s{S_BP}, 2")
    else:
        tb = sum((cls(j) & 3) << (2*j) for j in range(32))
        e(f"s_lshr_b32 s{S_T1}, s2, 2")
        e(f"s_bitcmp1_b32 s2, 7")
        e(f"s_mov_b32 s{S_IT}, 0x{tb & 0xffffffff:08x}")
        e(f"s_cselect_b32 s{S_IT}, 0x{tb >> 32:08x}, s{S_IT}")
        e(f"s_and_b32 s{S_T1}, s{S_T1}, 30")
        e(f"s_lshr_b32 s{S_T1}, s{S_IT}, s{S_T1}")
        e(f"s_and_b32 s{S_T1}, s{S_T1}, 3")
        e(f"s_lshl_b32 s{S_T1}, s{S_T1}, 2")
    e(f"s_lshr_b32 s{S_NPRE}, 0x{table(npre):08x}, s{S_T1}")
    e(f"s_and_b32 s{S_NPRE}, s{S_NPRE}, 15")
    e(f"s_lshr_b32 s{S_IT}, 0x{table([x//2 for x in Es]):08x}, s{S_T1}")
    e(f"s_and_b32 s{S_IT}, s{S_IT}, 15")
    e(f"s_lshl_b32 s{S_LIM}, s{S_IT}, 16")
    e(f"s_sub_u32 s{S_T1}, 16, s{S_IT}")
    e(f"s_cmp_ge_u32 s{S_WAVE}, 2")
    e(f"s_cselect_b32 s{S_K+2}, s{S_LIM}, 0x880000")
    e(f"s_cselect_b32 s{S_V+2}, s{S_LIM}, 0x880000")
    e(f"s_cselect_b32 s{S_IT}, s{S_IT}, s{S_T1}")
    e(f"s_mov_b32 s{S_K+3}, 0x00020000")
    e(f"s_mov_b32 s{S_V+3}, 0x00020000")
    e(f"s_lshl_b32 s{S_OFF}, s{S_WAVE}, 13")
    e(f"s_lshl_b32 m0, s{S_WAVE}, 15")
    e("s_waitcnt lgkmcnt(0)")
    e(f"s_add_u32 s{S_K}, s34, s{S_T0}")
    e(f"s_addc_u32 s{S_K+1}, s35, 0")
    e(f"s_add_u32 s{S_V}, s36, s{S_T0}")
    e(f"s_addc_u32 s{S_V+1}, s37, 0")
    stamp(1)
    def ld_k(buf, soff):
        for u in range(4):
            for j in range(2):
                e(f"buffer_load_dwordx4 {vr(buf+(u*2+j)*4,4)}, v{V_KOFF}, s[{S_K}:{S_K+3}], {soff} offen offset:{u*256+j*128} {pol}")
    def ld_v(buf, soff):
        for t in range(8):
            e(f"buffer_load_dwordx4 {vr(buf+t*4,4)}, v{V_VOFF}, s[{S_V}:{S_V+3}], {soff} offen offset:{t*256} {pol}")
    def ld_lds():
        for i in range(8):
            e(f"buffer_load_dwordx4 v{V_KOFF}, s[{S_K}:{S_K+3}], s{S_OFF} offen offset:{i*128} {pol} lds")
            e(f"s_add_u32 m0, m0, {896 if i < 7 else 8192-7*896}")
            e("s_nop 0" if i < 7 else "s_waitcnt vmcnt(55)")
        for t in range(8):
            e(f"buffer_load_dwordx4 v{V_VOFF}, s[{S_V}:{S_V+3}], s{S_OFF} offen offset:{t*256} {pol} lds")
            e(f"s_add_u32 m0, m0, {768 if t < 7 else 8192-7*768}")
            if t < 7: e("s_nop 0")
    def gate(g):
        e(f"s_cmp_lg_u32 s{S_NPRE}, {g}")
        e(f"s_cbranch_scc1 L_g{g}")
        e("s_barrier")
        e("s_barrier")
        e.label(f"L_g{g}")
    for g in range(5):
        if g in npre: gate(g)
        if g < 2: ld_k(KB[g], f"s{S_OFF}"); ld_v(VB[g], f"s{S_OFF}")
        elif g < 4: ld_lds()
        if g < 4: e(f"s_add_u32 s{S_OFF}, s{S_OFF}, 0x8000")
    stamp(2)
    e(f"s_setprio {prio[1]}")
    if prio[0] != prio[1]:
        e(f"s_cmp_ge_u32 s{S_WAVE}, 2")
        e("s_cbranch_scc1 L_pr")
        e(f"s_setprio {prio[0]}")
        e.label("L_pr")
    consts()
    c = math.log2(math.e) / math.sqrt(128.0)
    cbits = struct.unpack("<I", struct.pack("<f", c))[0]
    e(f"s_mov_b32 s{S_C}, 0x{cbits:08x}")
    A0, A1, A2, A3 = TMP, TMP+1, TMP+2, TMP+3
    e(f"v_lshrrev_b32 v{A3}, 3, v0")
    e(f"v_and_b32 v{A1}, 3, v{V_N}")
    e(f"v_mul_u32_u24 v{A0}, {QP_ROW}, v{A1}")
    e(f"v_bfe_u32 v{A2}, v{V_N}, 2, 1")
    e(f"v_lshl_add_u32 v{A0}, v{A2}, 9, v{A0}")
    e(f"v_lshl_add_u32 v{A0}, v{A3}, 5, v{A0}")
    e(f"v_add_u32 v{V_QRD}, {LDS_QP}, v{A0}")
    e(f"v_mul_u32_u24 v{A0}, {OB_ROW}, v{A1}")
    e(f"v_lshl_add_u32 v{A0}, v{A2}, 8, v{A0}")
    e(f"v_lshl_add_u32 v{A0}, v{A3}, 5, v{A0}")
    e(f"s_mul_i32 s{S_T0}, s{S_WAVE}, {4*OB_ROW}")
    e(f"s_add_u32 s{S_T3}, s{S_T0}, {LDS_OB + 8*OB_ROW}")
    e(f"s_lshl_b32 s{S_T0}, s{S_WAVE}, 15")
    e(f"s_add_u32 s{S_T1}, s{S_T0}, 16384")
    e(f"s_cmp_ge_u32 s{S_WAVE}, 2")
    e(f"s_cselect_b32 s{S_T3}, s{S_T1}, s{S_T3}")
    e(f"s_cselect_b32 s{S_T1}, 0, 64")
    e(f"v_add_u32 v{V_OBW}, s{S_T3}, v{A0}")
    e(f"v_lshlrev_b32 v{A0}, 4, v0")
    e(f"v_add_u32 v{V_LR}, s{S_T0}, v{A0}")
    e(f"v_and_b32 v{A2}, 7, v{V_N}")
    e(f"v_mul_u32_u24 v{A0}, {OP_ROW}, v{A2}")
    e(f"v_lshl_add_u32 v{A0}, v{A3}, 6, v{A0}")
    e(f"v_add_u32 v{V_OPW}, s{S_T0}, v{A0}")
    e(f"s_lshl_b32 s{S_T0}, s{S_WAVE}, 2")
    e(f"s_add_u32 s{S_T0}, s{S_T0}, {SB}")
    e(f"v_lshlrev_b32 v{A0}, 4, v{A2}")
    e(f"v_add_u32 v{V_MLW}, s{S_T0}, v{A0}")
    e(f"s_lshl_b32 s{S_T0}, s{S_WAVE}, 6")
    e(f"s_add_u32 s{S_T0}, s{S_T0}, {SB}")
    e(f"v_lshlrev_b32 v{A0}, 3, v{A2}")
    e(f"v_add_u32 v{V_XW}, s{S_T0}, v{A0}")
    e(f"v_xor_b32 v{V_XR}, s{S_T1}, v{V_XW}")
    wait_flag("L_wq", LDS_FLAG, 4, V_T2, V_T0)
    stamp(3)
    e.label("L_qload")
    for j in range(2):
        for ee in range(2):
            for h in range(2):
                e(f"ds_read_b128 {vr(TMP+j*16+ee*8+h*4,4)}, v{V_QRD} offset:{ee*8*QP_ROW+j*256+h*16}")
    for i in range(16):
        e(f"v_pk_mul_f32 {vr(OA+2*i,2)}, {vr(V_Z,2)}, {vr(V_Z,2)}")
    e(f"v_mov_b32 v{V_MC}, 0xf149f2ca")
    e(f"v_mov_b32 v{V_L}, 0")
    e(f"v_mov_b32 v{XT}, 0xf149f2ca")
    e(f"v_add_u32 v{V_QRD}, {4*QP_ROW}, v{V_QRD}")
    for j in range(2):
        e(f"s_waitcnt lgkmcnt({4-4*j})")
        for i in range(4):
            e(f"v_pk_add_f32 {vr(TMP+j*16+2*i,2)}, {vr(TMP+j*16+2*i,2)}, {vr(TMP+j*16+8+2*i,2)}")
        for i in range(4):
            e(f"v_cvt_pk_bf16_f32 v{QF+j*4+i}, v{TMP+j*16+2*i}, v{TMP+j*16+2*i+1}")
    e(f"s_cmp_ge_u32 s{S_IT}, 100")
    e("s_cbranch_scc1 L_loop")
    stamp(4)

    def adv():
        e(f"s_cmp_lt_u32 s{S_OFF}, s{S_LIM}")
        e(f"s_cselect_b32 s{S_T0}, 2, 1")
        e(f"s_lshl_b32 s{S_T0}, s{S_T0}, 14")
        e(f"s_add_u32 s{S_OFF}, s{S_OFF}, s{S_T0}")
        e(f"s_bitcmp1_b32 s{S_OFF}, 19")
        e(f"s_cselect_b32 s{S_T0}, 0x780000, 0")
        e(f"s_add_u32 s{S_OFF}, s{S_OFF}, s{S_T0}")
    def lreduce():
        e("s_nop 1")
        e(f"v_add_f32_dpp v{V_L}, v{V_L}, v{V_L} row_ror:8 row_mask:0xf bank_mask:0xf")
        e(f"v_mov_b32 v{V_T1}, v{V_L}")
        e("s_nop 1")
        e(f"v_permlane32_swap_b32 v{V_L}, v{V_T1}")
        e(f"v_add_f32 v{V_L}, v{V_L}, v{V_T1}")
        e(f"v_mov_b32 v{V_T1}, v{V_L}")
        e("s_nop 1")
        e(f"v_permlane16_swap_b32 v{V_L}, v{V_T1}")
        e(f"v_add_f32 v{V_L}, v{V_L}, v{V_T1}")
    def merge(acc, dst):
        for i in range(8):
            for ee in range(2):
                e(f"v_add_f32_dpp v{dst+ee*8+i}, v{acc+4*i+ee}, v{acc+4*i+ee} row_ror:8 row_mask:0xf bank_mask:0x3")
                e(f"v_add_f32_dpp v{dst+ee*8+i}, v{acc+4*i+2+ee}, v{acc+4*i+2+ee} row_ror:8 row_mask:0xf bank_mask:0xc")

    def tile(p, wk, wv, kis=None, vis=None, last=False, lds=None):
        kb, vb = (KB[p], VB[p]) if lds is None else (TMP, TMP)
        e(f"s_waitcnt vmcnt({wk})")
        if lds is not None:
            for j in range(2):
                for u in range(4):
                    e(f"ds_read_b128 {vr(TMP+(u*2+j)*4,4)}, v{V_LR} offset:{lds*16384+(u*2+j)*1024}")
        if kis and kis[0] == "early": ld_k(kis[1], f"s{S_OFF}")
        for j in range(2):
            if lds is not None: e(f"s_waitcnt lgkmcnt({4-4*j})")
            for u in range(4):
                cc = "0" if j == 0 else vr(ST+u*4, 4)
                e(f"v_mfma_f32_16x16x32_bf16 {vr(ST+u*4,4)}, {vr(kb+(u*2+j)*4,4)}, {vr(QF+j*4,4)}, {cc}")
        if kis and kis[0] == "late": ld_k(kis[1], f"s{S_OFF}")
        elif lds is not None:
            e(f"s_waitcnt vmcnt({wv})")
            for t in range(8):
                e(f"ds_read_b128 {vr(TMP+t*4,4)}, v{V_LR} offset:{lds*16384+8192+t*1024}")
        else: e("s_nop 4")
        S = [SS+i for i in range(4)]
        for u in range(4):
            a = ST + 4*u
            e(f"v_add_f32_dpp v{S[u]}, v{a+1}, v{a} row_ror:8 row_mask:0xf bank_mask:0x3")
            e(f"v_add_f32_dpp v{S[u]}, v{a+2}, v{a+3} row_ror:8 row_mask:0xf bank_mask:0xc")
        e(f"v_max3_f32 v{V_T0}, v{S[0]}, v{S[1]}, v{XT}")
        e(f"v_max3_f32 v{V_T0}, v{S[2]}, v{S[3]}, v{V_T0}")
        e("s_nop 1")
        e(f"v_max_f32_dpp v{V_T0}, v{V_T0}, v{V_T0} row_ror:8 row_mask:0xf bank_mask:0xf")
        e(f"v_mov_b32 v{V_T1}, v{V_T0}")
        e("s_nop 1")
        e(f"v_permlane32_swap_b32 v{V_T0}, v{V_T1}")
        e(f"v_max_f32 v{V_T0}, v{V_T0}, v{V_T1}")
        e(f"v_mov_b32 v{V_T1}, v{V_T0}")
        e("s_nop 1")
        e(f"v_permlane16_swap_b32 v{V_T0}, v{V_T1}")
        e(f"v_max_f32 v{XT}, v{V_T0}, v{V_T1}")
        e(f"v_mul_f32 v{V_T0}, s{S_C}, v{XT}")
        e(f"v_sub_f32 v{V_AL}, v{V_MC}, v{V_T0}")
        e(f"v_exp_f32 v{V_AL}, v{V_AL}")
        e(f"v_mov_b32 v{V_MC}, v{V_T0}")
        for i in range(4):
            e(f"v_fma_f32 v{S[i]}, v{S[i]}, s{S_C}, -v{V_MC}")
        for i in range(4):
            e(f"v_exp_f32 v{S[i]}, v{S[i]}")
        def rescale():
            for i in range(16):
                e(f"v_pk_mul_f32 {vr(OA+2*i,2)}, {vr(OA+2*i,2)}, {vr(V_AL,2)} op_sel_hi:[1,0]")
        if not last: rescale()
        e(f"v_add_f32 v{V_T0}, v{S[0]}, v{S[1]}")
        e(f"v_add_f32 v{V_T1}, v{S[2]}, v{S[3]}")
        e(f"v_fma_f32 v{V_L}, v{V_L}, v{V_AL}, v{V_T0}")
        e(f"v_add_f32 v{V_L}, v{V_L}, v{V_T1}")
        if last:
            lreduce()
            e(f"ds_write_b64 v{V_XW}, {vr(V_MC,2)} offset:{LDS_XCH-SB}")
            M2, L2 = TMP, TMP+1
            e.label("L_xch")
            e(f"ds_read_b64 {vr(M2,2)}, v{V_XR} offset:{LDS_XCH-SB}")
            e("s_waitcnt lgkmcnt(0)")
            e(f"v_cmp_eq_u32 vcc, -1, v{M2}")
            e("s_cbranch_vccnz L_xch")
            e(f"v_max_f32 v{V_T0}, v{M2}, v{V_MC}")
            e(f"v_sub_f32 v{M2}, v{M2}, v{V_T0}")
            e(f"v_sub_f32 v{V_T1}, v{V_MC}, v{V_T0}")
            e(f"v_exp_f32 v{M2}, v{M2}")
            e(f"v_exp_f32 v{V_T1}, v{V_T1}")
            e(f"v_mul_f32 v{V_T0}, v{M2}, v{L2}")
            e(f"v_fmac_f32 v{V_T0}, v{V_T1}, v{V_L}")
            e(f"v_rcp_f32 v{V_T0}, v{V_T0}")
            e("s_nop 0")
            e(f"v_mul_f32 v{V_T1}, v{V_T1}, v{V_T0}")
            e(f"v_mul_f32 v{V_AL}, v{V_AL}, v{V_T1}")
            for i in range(4):
                e(f"v_mul_f32 v{S[i]}, v{S[i]}, v{V_T1}")
            rescale()
            stamp(6)
        e(f"v_cvt_pk_bf16_f32 v{V_T0}, v{S[0]}, v{S[1]}")
        e(f"v_cvt_pk_bf16_f32 v{V_T1}, v{S[2]}, v{S[3]}")
        e(f"v_cndmask_b32 v{PP}, v{V_T0}, 0, s[{S_MASK}:{S_MASK+1}]")
        e(f"v_cndmask_b32 v{PP+1}, v{V_T1}, 0, s[{S_MASK}:{S_MASK+1}]")
        e(f"v_cndmask_b32 v{PP+2}, 0, v{V_T0}, s[{S_MASK}:{S_MASK+1}]")
        e(f"v_cndmask_b32 v{PP+3}, 0, v{V_T1}, s[{S_MASK}:{S_MASK+1}]")
        if lds is not None: e("s_waitcnt lgkmcnt(0)")
        else: e(f"s_waitcnt vmcnt({wv})")
        if last: stamp(7)
        if vis and vis[0] == "early": ld_v(vis[1], f"s{S_OFF}")
        unit_mma(vb, PP, OA, False, PT)
        if vis and vis[0] == "late": ld_v(vis[1], f"s{S_OFF}")
        if vis: adv()

    kw = "early" if kearly else "late"
    vw = "early" if vearly else "late"
    tile(0, 55, 55, ("late", KB[0]), ("late", VB[0]))
    if deep == 1:
        tile(1, 55, 55, ("late", KB[1]), ("late", VB[1]))
        tile(0, 56, 48, lds=0)
        tile(0, 40, 32, lds=1)
    else:
        tile(1, 56, 48)
        tile(0, 40, 32, lds=0)
        tile(0, 24, 16, lds=1)
    e(f"s_sub_u32 s{S_IT}, s{S_IT}, 2")
    e(f"s_cmp_eq_u32 s{S_IT}, 0")
    e("s_cbranch_scc1 L_flush")
    e.label("L_loop")
    if deep == 1:
        tile(0, dw, dw, ("late", KB[0]), ("late", VB[0]))
        e(f"s_cmp_eq_u32 s{S_IT}, 101")
        e("s_cbranch_scc1 L_last")
        tile(1, dw, dw, ("late", KB[1]), ("late", VB[1]))
    else:
        if deep:
            e(f"s_cmp_eq_u32 s{S_IT}, {100 + deep}")
            e("s_cbranch_scc1 L_deep")
        tile(0, 8, 8, (kw, KB[1]), (vw, VB[1]))
        if not deep:
            e(f"s_cmp_eq_u32 s{S_IT}, 101")
            e("s_cbranch_scc1 L_last")
        tile(1, 8, 8, (kw, KB[0]), (vw, VB[0]))
    e(f"s_sub_u32 s{S_IT}, s{S_IT}, 1")
    e(f"s_cmp_lg_u32 s{S_IT}, 0")
    e("s_cbranch_scc1 L_loop")
    e.label("L_flush")
    stamp(5)
    lreduce()
    e(f"ds_write_b32 v{V_MLW}, v{V_MC} offset:{LDS_ML-SB}")
    e(f"ds_write_b32 v{V_MLW}, v{V_L} offset:{LDS_ML+128-SB}")
    merge(OA, TMP)
    for x_ in range(4):
        e(f"ds_write_b128 v{V_OPW}, {vr(TMP+4*x_,4)} offset:{16*x_}")
    e(f"v_mov_b32 v{V_T0}, 1")
    e("s_mov_b64 exec, 1")
    e("s_waitcnt lgkmcnt(0)")
    e(f"ds_add_u32 v{V_T2}, v{V_T0} offset:{LDS_FLAG+4-SB}")
    e("s_mov_b64 exec, -1")
    e(f"s_mov_b32 s{S_IT}, 116")
    e(f"s_cmp_lt_u32 s{S_WAVE}, 2")
    e("s_cbranch_scc1 L_qload")
    if not dryl: e("s_branch L_wo")
    if deep > 1:
        e(f"s_mov_b32 s{S_IT}, 102")
        e.label("L_deep")
        ld_k(KB[1], f"s{S_OFF}"); ld_v(VB[1], f"s{S_OFF}"); adv()
        e.label("L_dl")
        tile(0, 24, 24, ("late", KB[0]), ("late", VB[0]))
        e(f"s_cmp_eq_u32 s{S_IT}, 101")
        e("s_cbranch_scc1 L_last")
        tile(1, 24, 24, ("late", KB[1]), ("late", VB[1]))
        e(f"s_sub_u32 s{S_IT}, s{S_IT}, 1")
        e("s_branch L_dl")
    e.label("L_last")
    if deep: tile(1, 24, 16, last=True)
    else: tile(1, 8, 0, last=True)
    e("s_nop 0")
    merge(OA, TMP)
    for i in range(8):
        e(f"v_cvt_pk_bf16_f32 v{TMP+16+i}, v{TMP+2*i}, v{TMP+2*i+1}")
    e(f"ds_write_b128 v{V_OBW}, {vr(TMP+16,4)}")
    e(f"ds_write_b128 v{V_OBW}, {vr(TMP+20,4)} offset:16")
    if dryl:
        e(f"s_cmp_ge_u32 s{S_WAVE}, 2")
        e("s_cbranch_scc1 L_wo")
    e("s_waitcnt lgkmcnt(0)")
    stamp(8)
    e("s_barrier")
    if stamps:
        stamp(9); stamp(10); stamp(11)
        e("s_branch L_dump")
    else:
        e("s_branch L_end0" if hotend else "s_endpgm")

    e.label("L_wo")
    e("s_setprio 0")
    V_WO, V_OPR, V_MLR, V_OBC, V_BRD, V_STO, V_PL, V_OO, V_TAG, V_SB, V_IDX = 1, 2, 3, 4, 5, 6, 7, 1, 2, 3, 4
    A0, A1, A2, AN, AG, AZ, AS = 232, 233, 234, 235, 236, 237, 238
    S_PW, S_PO = S_OFF, S_IT
    e(f"v_and_b32 v{AN}, 15, v0")
    e(f"v_lshrrev_b32 v{AG}, 4, v0")
    e(f"v_mov_b32 v{AZ}, 0")
    e(f"v_mov_b32 v{AS}, {SB}")
    e(f"s_sub_u32 s{S_T3}, s{S_WAVE}, 2")
    e(f"v_lshrrev_b32 v{A0}, 5, v0")
    e(f"v_mul_u32_u24 v{A0}, {16*1152}, v{A0}")
    e(f"v_and_b32 v{A1}, 1, v{AG}")
    e(f"v_mul_u32_u24 v{A1}, {4*1152}, v{A1}")
    e(f"v_mul_u32_u24 v{A2}, 12, v{AN}")
    e(f"v_add3_u32 v{A0}, v{A0}, v{A1}, v{A2}")
    e(f"s_mul_i32 s{S_T0}, s{S_T3}, 192")
    e(f"v_add_u32 v{V_WO}, s{S_T0}, v{A0}")
    e(f"s_mul_i32 s{S_T0}, s{S_HKV}, {256*1152}")
    e(f"s_add_u32 s{S_WO}, s40, s{S_T0}")
    e(f"s_addc_u32 s{S_WO+1}, s41, 0")
    e(f"s_mov_b32 s{S_WO+2}, {256*1152}")
    e(f"s_mov_b32 s{S_WO+3}, 0x00020000")
    e(f"s_mul_i32 s{S_T0}, s{S_BP}, {GRP}")
    e(f"s_add_u32 s{S_WS}, s46, s{S_T0}")
    e(f"s_addc_u32 s{S_WS+1}, s47, 0")
    e(f"s_mov_b32 s{S_WS+2}, {GRP}")
    e(f"s_mov_b32 s{S_WS+3}, 0x00020000")
    e(f"s_mov_b32 s{S_OUT}, s42")
    e(f"s_mov_b32 s{S_OUT+1}, s43")
    e(f"s_mov_b32 s{S_OUT+2}, {128*1152}")
    e(f"s_mov_b32 s{S_OUT+3}, 0x00020000")
    e(f"s_mov_b32 s{S_DBG}, s44")
    e(f"s_mov_b32 s{S_DBG+1}, s45")
    e(f"s_mov_b32 s{S_DBG+2}, 256")
    e(f"s_mov_b32 s{S_DBG+3}, 0x00020000")
    e(f"v_bfe_u32 v{A0}, v{AN}, 1, 1")
    e(f"v_lshrrev_b32 v{A1}, 2, v{AN}")
    e(f"v_lshl_add_u32 v{A0}, v{A0}, 2, v{A1}")
    e(f"v_mul_u32_u24 v{A0}, {OB_ROW}, v{A0}")
    e(f"v_lshl_add_u32 v{A0}, v{AG}, 5, v{A0}")
    e(f"v_and_b32 v{A1}, 1, v{AN}")
    e(f"v_lshl_add_u32 v{A0}, v{A1}, 4, v{A0}")
    e(f"v_add_u32 v{V_BRD}, {LDS_OB}, v{A0}")
    e(f"v_mul_u32_u24 v{A0}, {6*4096}, v{AG}")
    e(f"v_lshlrev_b32 v{A1}, 4, v{AN}")
    e(f"s_lshl_b32 s{S_T0}, s{S_T3}, 12")
    e(f"s_lshl_b32 s{S_T1}, s{S_HKV}, 8")
    e(f"s_add_u32 s{S_T1}, s{S_T1}, s{S_T0}")
    e(f"v_add3_u32 v{V_STO}, v{A0}, v{A1}, s{S_T1}")
    e(f"s_lshr_b32 s{S_T1}, s{S_HKV}, 1")
    e(f"s_mul_i32 s{S_T1}, s{S_T1}, {6*4096}")
    e(f"s_add_u32 s{S_T0}, s{S_T0}, s{S_T1}")
    e(f"s_and_b32 s{S_T1}, s{S_HKV}, 1")
    e(f"s_lshl_b32 s{S_T1}, s{S_T1}, 7")
    e(f"s_add_u32 s{S_T0}, s{S_T0}, s{S_T1}")
    e(f"v_lshrrev_b32 v{A0}, 3, v0")
    e(f"v_lshlrev_b32 v{A0}, 8, v{A0}")
    e(f"v_and_b32 v{A1}, 7, v0")
    e(f"v_lshlrev_b32 v{A1}, 4, v{A1}")
    e(f"v_add3_u32 v{V_PL}, v{A0}, v{A1}, s{S_T0}")
    e(f"v_lshrrev_b32 v{A1}, 5, v0")
    e(f"s_and_b32 s{S_T1}, s{S_WAVE}, 3")
    e(f"s_lshl_b32 s{S_T1}, s{S_T1}, 1")
    e(f"v_add_u32 v{A1}, s{S_T1}, v{A1}")
    e(f"v_and_b32 v{A2}, 31, v0")
    e(f"s_cmp_ge_u32 s{S_WAVE}, 4")
    e("s_cbranch_scc1 L_nozero")
    for i in range(4): e(f"v_mov_b32 v{240+i}, 0")
    e(f"v_mul_u32_u24 v{A0}, {OB_ROW}, v{A1}")
    e(f"v_lshl_add_u32 v{A0}, v{A2}, 4, v{A0}")
    e(f"v_add_u32 v{A0}, v{AS}, v{A0}")
    e(f"ds_write_b128 v{A0}, v[240:243] offset:{LDS_OB-SB}")
    e.label("L_nozero")
    e(f"v_mul_u32_u24 v{V_OPR}, {OP_ROW}, v{A1}")
    e(f"v_lshl_add_u32 v{V_OPR}, v{A2}, 4, v{V_OPR}")
    e(f"v_lshl_add_u32 v{V_MLR}, v{A1}, 4, v{AS}")
    e(f"v_and_b32 v{A0}, 3, v{A1}")
    e(f"v_mul_u32_u24 v{A0}, {OB_ROW}, v{A0}")
    e(f"v_lshrrev_b32 v{A1}, 2, v{A1}")
    e(f"v_lshl_add_u32 v{A0}, v{A1}, 8, v{A0}")
    e(f"v_lshl_add_u32 v{A0}, v{A2}, 3, v{A0}")
    e(f"v_add_u32 v{V_OBC}, v{AS}, v{A0}")
    e(f"s_lshl_b32 s{S_T0}, s2, 3")
    e(f"s_add_u32 s{S_T0}, s{S_T0}, s{S_WAVE}")
    e(f"s_cmp_lg_u32 s{S_T0}, 7")
    e("s_cbranch_scc1 L_notag")
    e(f"s_memrealtime s[{S_T1}:{S_T1+1}]")
    e("s_waitcnt lgkmcnt(0)")
    e(f"s_or_b32 s{S_T1}, s{S_T1}, 1")
    e(f"v_mov_b32 v{A1}, s{S_T1}")
    e("s_mov_b64 exec, 1")
    e(f"buffer_store_dword v{A1}, v{AZ}, s[{S_DBG}:{S_DBG+3}], 0 offen sc1")
    e("s_mov_b64 exec, -1")
    e.label("L_notag")
    if wostart:
        wait_flag("L_ws", LDS_FLAG+4, wostart, AS, A0, 8)
    stamp(4)
    for j in range(4):
        for hh in range(2):
            for t in range(8):
                if t % 4 == 0: e(f"s_mov_b32 s{S_T0}, {(64*j+32*hh+(t>>2)*8)*1152}")
                if not nowo: e(f"buffer_load_dwordx3 {vr(BF+4*t,3)}, v{V_WO}, s[{S_WO}:{S_WO+3}], s{S_T0} offen offset:{(t%4)*1152} {wopol}")
                if (t + 1) % wog == 0:
                    e("s_waitcnt vmcnt(0)")
            for i in range(6):
                w_, h = i >> 1, i & 1
                sel = S_HI if h else S_LO
                for r in range(4):
                    tl = (r & 1) * 4 + ((r >> 1) & 1) * 2
                    e(f"v_perm_b32 v{WF+(j*6+i)*8+hh*4+r}, v{BF+(tl+1)*4+w_}, v{BF+tl*4+w_}, s{sel}")
    stamp(5)
    e(f"s_lshl_b32 s{S_T0}, s{S_BP}, 3")
    e(f"s_lshr_b32 s{S_T1}, s{S_HKV}, 1")
    e(f"s_add_u32 s{S_T0}, s{S_T0}, s{S_T1}")
    e(f"s_mul_i32 s{S_T0}, s{S_T0}, 1152")
    e(f"s_mul_i32 s{S_T1}, s{S_T3}, 192")
    e(f"s_add_u32 s{S_T0}, s{S_T0}, s{S_T1}")
    e(f"s_and_b32 s{S_T1}, s{S_HKV}, 1")
    e(f"s_mul_i32 s{S_T1}, s{S_T1}, 96")
    e(f"s_add_u32 s{S_T0}, s{S_T0}, s{S_T1}")
    e(f"v_mul_u32_u24 v{A0}, 12, v{AN}")
    e(f"v_lshl_add_u32 v{A0}, v{AG}, 2, v{A0}")
    e(f"v_add_u32 v{V_OO}, s{S_T0}, v{A0}")
    e(f"s_cmp_lg_u32 s{S_WAVE}, 3")
    e("s_cbranch_scc1 L_nochk")
    e(f"s_mov_b32 s{S_T1}, 0x40000")
    e.label("L_chk")
    e(f"buffer_load_dword v{A0}, v{AZ}, s[{S_DBG}:{S_DBG+3}], 0 offen sc1")
    e("s_waitcnt vmcnt(0)")
    e(f"v_readfirstlane_b32 s{S_T0}, v{A0}")
    e(f"ds_write_b32 v{AS}, v{A0} offset:{LDS_FLAG+8-SB}")
    e(f"s_sub_u32 s{S_T1}, s{S_T1}, 1")
    e("s_cbranch_scc1 L_nochk")
    e(f"s_cmp_lg_u32 s{S_T0}, 0")
    e("s_cbranch_scc1 L_nochk")
    e("s_sleep 8")
    e("s_branch L_chk")
    e.label("L_nochk")
    e(f"s_cmp_lt_u32 s{S_WAVE}, 4")
    e("s_cbranch_scc1 L_comb_d")
    wait_flag("L_wf", LDS_FLAG+4, 4, AS, A0, 8)
    MM, LL, OO, CT = BF, BF+4, BF+8, A0
    e(f"ds_read_b128 {vr(MM,4)}, v{V_MLR} offset:{LDS_ML-SB}")
    e(f"ds_read_b128 {vr(LL,4)}, v{V_MLR} offset:{LDS_ML+128-SB}")
    e(f"v_add_u32 v{A1}, 0x10000, v{V_OPR}")
    for p in range(4):
        e(f"ds_read_b128 {vr(OO+4*p,4)}, v{V_OPR if p < 2 else A1} offset:{(p&1)*32768}")
    e("s_waitcnt lgkmcnt(4)")
    e(f"v_max3_f32 v{CT}, v{MM}, v{MM+1}, v{MM+2}")
    e(f"v_max_f32 v{CT}, v{CT}, v{MM+3}")
    for p in range(4): e(f"v_sub_f32 v{MM+p}, v{MM+p}, v{CT}")
    for p in range(4): e(f"v_exp_f32 v{MM+p}, v{MM+p}")
    e("s_nop 0")
    e(f"v_mul_f32 v{CT}, v{MM}, v{LL}")
    for p in range(1, 4): e(f"v_fmac_f32 v{CT}, v{MM+p}, v{LL+p}")
    e(f"v_rcp_f32 v{CT}, v{CT}")
    e("s_nop 0")
    for p in range(4): e(f"v_mul_f32 v{MM+p}, v{MM+p}, v{CT}")
    e("s_waitcnt lgkmcnt(0)")
    for i in range(4): e(f"v_mul_f32 v{OO+i}, v{OO+i}, v{MM}")
    for p in range(1, 4):
        for i in range(4): e(f"v_fmac_f32 v{OO+i}, v{OO+4*p+i}, v{MM+p}")
    e(f"v_cvt_pk_bf16_f32 v{LL}, v{OO}, v{OO+1}")
    e(f"v_cvt_pk_bf16_f32 v{LL+1}, v{OO+2}, v{OO+3}")
    e(f"ds_write_b64 v{V_OBC}, {vr(LL,2)} offset:{LDS_OB-SB}")
    e.label("L_comb_d")
    AF, G, G0, SEL, DD = 200, 216, 220, 224, 228
    F = AF
    e(f"v_mov_b32 v{V_SB}, {SB}")
    e(f"v_mov_b32 v{A0}, 1")
    e("s_mov_b64 exec, 1")
    e("s_waitcnt lgkmcnt(0)")
    e(f"ds_add_u32 v{V_SB}, v{A0} offset:{LDS_FLAG+12-SB}")
    e("s_mov_b64 exec, -1")
    e(f"v_and_b32 v{A1}, 1, v0")
    e(f"v_mul_u32_u24 v{V_IDX}, 0xaaaa, v{A1}")
    e(f"v_add_u32 v{V_IDX}, 0x4444, v{V_IDX}")
    e(f"v_lshlrev_b32 v{A1}, 4, v{A1}")
    e(f"v_mov_b32 v{A2}, 0x3f80")
    e(f"v_lshlrev_b32 v{A1}, v{A1}, v{A2}")
    e(f"v_and_b32 v{A2}, 14, v0")
    for q in range(3):
        e(f"v_cmp_eq_u32 vcc, {4*q}, v{A2}")
        e(f"v_cndmask_b32 v{SEL+q}, 0, v{A1}, vcc")
    e(f"v_mov_b32 v{SEL+3}, 0")
    e(f"s_mov_b32 s{S_PW}, 0")
    e(f"s_mov_b32 s{S_WS+2}, 0")
    e(f"s_mov_b32 s{S_OUT+2}, 0")
    e(f"s_mov_b32 s{S_CAP}, 0")
    wait_flag("L_w0", LDS_FLAG+12, 6, V_SB, F, 8)
    e(f"ds_read_b32 v{V_TAG}, v{V_SB} offset:{LDS_FLAG+8-SB}")
    for i in range(24): e(f"v_mov_b32 v{PA+i}, 0")
    e("s_waitcnt lgkmcnt(0)")
    e(f"v_mov_b32 v{G+3}, v{V_TAG}")
    e("s_branch L_tail")
    e.label("L_barB")
    e("s_mov_b64 exec, -1")
    e("s_waitcnt vmcnt(0)")
    for i in range(24): e(f"v_mov_b32 v{PA+i}, 0")
    for i in range(4): e(f"v_mov_b32 v{G0+i}, v{G+i}")
    e(f"v_add_u32 v{V_BRD}, {8*OB_ROW}, v{V_BRD}")
    e(f"s_mov_b32 s{S_PW}, {4*6*4096}")
    e(f"s_mov_b32 s{S_WS+2}, {GRP}")
    e(f"s_mov_b32 s{S_OUT+2}, {128*1152}")
    e(f"s_mov_b32 s{S_CAP}, 0x40000")
    if tprio: e(f"s_setprio {tprio}")
    stamp(6)
    e("s_barrier")
    stamp(7)
    e.label("L_tail")
    for j in range(4):
        e(f"ds_read_b128 {vr(AF+4*j,4)}, v{V_BRD} offset:{j*128}")
    if not nostore and not g0late: e(f"buffer_store_dwordx4 {vr(G0,4)}, v{V_STO}, s[{S_WS}:{S_WS+3}], 0 offen {spol}")
    def adds(i):
        e(f"v_pk_add_f32 {vr(PA+4*i,2)}, {vr(PA+4*i,2)}, {vr(PA+4*i+2,2)}")
        e(f"v_add_f32 v{PA+4*i}, v{PA+4*i}, v{PA+4*i+1}")
        if i & 1: e(f"v_cvt_pk_bf16_f32 v{G+(i>>1)}, v{PA+4*i-4}, v{PA+4*i}")
    for i in range(6):
        for j in range(4):
            if i == 0: e(f"s_waitcnt lgkmcnt({3-j})")
            e(f"v_smfmac_f32_16x16x64_bf16 {vr(PA+4*i,4)}, {vr(AF+4*j,4)}, {vr(WF+(j*6+i)*8,8)}, v{V_IDX}")
        if i >= 2: adds(i - 2)
    e("s_nop 0")
    adds(4)
    e("s_nop 1")
    adds(5)
    if not nostore: e(f"buffer_store_dwordx4 {vr(G,4)}, v{V_STO}, s[{S_WS}:{S_WS+3}], s{S_PW} offen {spol}")
    if not nostore and g0late: e(f"buffer_store_dwordx4 {vr(G0,4)}, v{V_STO}, s[{S_WS}:{S_WS+3}], 0 offen {spol}")
    e("s_setprio 0")
    stamp(8)
    e(f"s_mov_b32 s{S_T1}, s{S_CAP}")
    if nopoll: e("s_branch L_pdone")
    e.label("L_poll")
    for x_ in range(2):
        e(f"buffer_load_dwordx4 {vr(F+4*x_,4)}, v{V_PL}, s[{S_WS}:{S_WS+3}], 0 offen offset:{2048*x_} {ppol}")
    e("s_waitcnt vmcnt(0)")
    e(f"v_cmp_ne_u32 vcc, v{F+3}, v{V_TAG}")
    e(f"v_cmp_ne_u32 s[{S_MASK}:{S_MASK+1}], v{F+7}, v{V_TAG}")
    e(f"s_or_b64 exec, vcc, s[{S_MASK}:{S_MASK+1}]")
    e("s_cbranch_scc0 L_pdone")
    e(f"s_sub_u32 s{S_T1}, s{S_T1}, 1")
    e("s_cbranch_scc1 L_pdone")
    e(f"s_bcnt1_i32_b64 s{S_T0}, exec")
    e(f"s_cmp_lt_u32 s{S_T0}, {slp[2]}")
    e("s_cbranch_scc1 L_poll")
    e(f"s_sleep {slp[3]}")
    e(f"s_cmp_lt_u32 s{S_T0}, {slp[0]}")
    e("s_cbranch_scc1 L_poll")
    e(f"s_sleep {slp[1]}")
    e("s_branch L_poll")
    e.label("L_pdone")
    e("s_mov_b64 exec, -1")
    stamp(9)
    e(f"v_mov_b32 v{F+3}, 0")
    e(f"v_mov_b32 v{F+7}, 0")
    e("s_nop 0")
    e(f"v_mfma_f32_16x16x32_bf16 {vr(DD,4)}, {vr(SEL,4)}, {vr(F,4)}, 0")
    e(f"v_mfma_f32_16x16x32_bf16 {vr(DD,4)}, {vr(SEL,4)}, {vr(F+4,4)}, {vr(DD,4)}")
    e("s_mov_b32 vcc_lo, 0x00ff00ff")
    e("s_mov_b32 vcc_hi, 0x000000ff")
    e("s_nop 5")
    for k in range(2):
        e(f"v_add_f32_dpp v{DD+k}, v{DD+k}, v{DD+k} row_ror:8 row_mask:0xf bank_mask:0xf")
    e("s_mov_b64 exec, vcc")
    e(f"v_cvt_pk_bf16_f32 v{DD+2}, v{DD}, v{DD+1}")
    e(f"buffer_store_dword v{DD+2}, v{V_OO}, s[{S_OUT}:{S_OUT+3}], 0 offen {opol}")
    e(f"s_cmp_eq_u32 s{S_PW}, 0")
    e("s_cbranch_scc1 L_barB")
    if stamps:
        e("s_mov_b64 exec, -1")
        stamp(10)
        e("s_waitcnt vmcnt(0)")
        stamp(11)
        e.label("L_dump")
        e(f"s_add_u32 s{S_WS}, s46, 0x800000")
        e(f"s_addc_u32 s{S_WS+1}, s47, 0")
        e(f"s_mov_b32 s{S_WS+2}, 0x100000")
        e(f"s_mov_b32 s{S_WS+3}, 0x00020000")
        e(f"s_lshl_b32 s{S_T0}, s2, 3")
        e(f"s_add_u32 s{S_T0}, s{S_T0}, s{S_WAVE}")
        e(f"s_lshl_b32 s{S_T0}, s{S_T0}, 6")
        e("v_mov_b32 v1, 0")
        for i in range(NST):
            e(f"v_mov_b32 v2, s{64+2*i}")
            e(f"buffer_store_dword v2, v1, s[{S_WS}:{S_WS+3}], s{S_T0} offen offset:{4*i}")
        e(f"s_getreg_b32 s{S_T1}, hwreg(HW_REG_XCC_ID)")
        e(f"v_mov_b32 v2, s{S_T1}")
        e(f"buffer_store_dword v2, v1, s[{S_WS}:{S_WS+3}], s{S_T0} offen offset:56")
        e(f"buffer_store_dword v1, v1, s[{S_WS}:{S_WS+3}], s{S_T0} offen offset:52")
    e.label("L_end")
    e("s_endpgm")

    e.raw('.section .rodata,"a"')
    e.raw(f""".p2align 6
.amdhsa_kernel {KN}
  .amdhsa_next_free_vgpr 256
  .amdhsa_next_free_sgpr 96
  .amdhsa_accum_offset 256
  .amdhsa_group_segment_fixed_size 0
  .amdhsa_kernarg_size 64
  .amdhsa_user_sgpr_count 2
  .amdhsa_user_sgpr_kernarg_segment_ptr 1
  .amdhsa_system_sgpr_workgroup_id_x 1
.end_amdhsa_kernel""")
    open(name, "w").write(e.text())
    return name

if __name__ == "__main__":
    S = dict(stamps=True)
    par = lambda v: bin(v).count("1") & 1
    L = [gen("k6.s"), gen("k6c.s", npre=(0,2,3,3), cls=lambda j: (j >> 4)*2 + par(j & 15)), gen("k6h3.s", hb=3), gen("k6h0.s", hb=0)]
    print(" ".join("work/"+x for x in L[1:]))
    import json; print(json.dumps(["work/bench.py", "cdna_kernels/cdna_launch.py", "cdna_kernels/cdna_unwritten_srd_check.py"] + ["work/"+x for x in L[1:]]))
```

```python
import sys, math, struct
from gen2 import HEADER, E, vr

KN = "standalone__gqa_block_cached__sampling_kernel"
V_KOFF, V_VOFF, V_QRD, V_OPW, V_MLW, V_OBW, V_XW = 1, 2, 3, 4, 5, 6, 7
V_MC, V_L, V_AL, V_T0, V_T1, V_T2, V_N, V_G = 8, 9, 10, 11, 12, 13, 14, 15
QF, XT, V_XR, V_Z, V_LR, OA = 16, 24, 25, 26, 28, 32
KB, VB = [64, 128], [96, 160]
TMP, ST, PT, PP, SS = 192, 224, 240, 248, 252
XF, XB, QA, WB = 16, 36, 44, 76
WF, BF, PA = 8, 200, 232
S_K, S_V, S_WQ, S_X, S_WO, S_WS = 8, 12, 16, 20, 24, 28
S_OUT, S_DBG = 8, 12
S_WAVE, S_HKV, S_BP = 3, 48, 49
S_LO, S_HI, S_C = 50, 51, 52
S_IT, S_OFF, S_T0, S_T1, S_T2, S_T3 = 53, 54, 55, 56, 57, 58
S_NPRE = 59
S_MASK = 60
S_U, S_LIM = 62, 63
S_CAP = 62
OP_ROW = 528; OB_ROW = 544; QP_ROW = 1040
LDS_ML = 131072
LDS_XCH = LDS_ML + 256
LDS_FLAG = LDS_XCH + 256
LDS_OB = LDS_FLAG + 16
LDS_QP = LDS_OB + 16 * OB_ROW
LDS_TOTAL = LDS_QP + 16 * QP_ROW
NST = 12
GRP = 48 * 4096

def gen(name, pol="nt", wpol="", wopol="", stamps=False, npre=(0,2,3,0,2,3,0,3), Es=(4, 4), kearly=True, vearly=True,
        wog=2, prio=(3, 2), qdepth=3, nwb=4, wostart=2, dry=True, dryl=True, bar1=8, nwarm=1,
        slp=(40, 16, 17, 4), qprio=3, kprio0=1, nostore=False, nopoll=False, nowo=False, tprio=2, g0late=False, spol='sc1', ppol='sc1', opol='', hotend=True, hb=2, cls=None, deep=0, dw=24, nq=9, qdelay=0, wpat=None):
    e = E()
    QT = WB + 32 * nwb
    SB = LDS_ML
    def stamp(i):
        if not stamps: return
        e(f"s_memrealtime s[{64+2*i}:{65+2*i}]")
        e("s_waitcnt lgkmcnt(0)")
    def table(vals):
        t = 0
        for i in range(8): t |= vals[i % len(vals)] << (4 * i)
        return t
    e.raw(HEADER.rstrip("\n"))
    e.raw(f"; @launch grid=(256,1,1) block=(512,1,1) lds={LDS_TOTAL}")
    if stamps: e.raw(f"; NSTAMPS={NST}")
    e.raw('.amdgcn_target "amdgcn-amd-amdhsa--gfx950"')
    e.raw(".text")
    e.raw(f".globl {KN}\n.p2align 8\n.type {KN},@function\n{KN}:")
    if hotend:
        e("s_cmp_lt_u32 s2, 256")
        e("s_cbranch_scc1 L_main")
        e.label("L_end0")
        e("s_endpgm")
        e.label("L_main")
    else:
        e("s_cmp_ge_u32 s2, 256")
        e("s_cbranch_scc1 L_end")
    stamp(0)
    e("s_load_dwordx8 s[32:39], s[0:1], 0")
    e("s_load_dwordx8 s[40:47], s[0:1], 32")
    e("v_lshrrev_b32 v1, 6, v0")
    e("v_and_b32 v0, 63, v0")
    e(f"v_readfirstlane_b32 s{S_WAVE}, v1")
    e(f"v_and_b32 v{V_N}, 15, v0")
    e(f"v_lshrrev_b32 v{V_G}, 4, v0")
    if hb == 0:
        e(f"s_and_b32 s{S_T0}, s2, 7")
        e(f"s_lshl_b32 s{S_HKV}, s{S_T0}, 1")
        e(f"s_bfe_u32 s{S_T0}, s2, 0x10003")
        e(f"s_add_u32 s{S_HKV}, s{S_HKV}, s{S_T0}")
    elif hb == 2:
        e(f"s_lshr_b32 s{S_T0}, s2, 1")
        e(f"s_xor_b32 s{S_T0}, s{S_T0}, s2")
        e(f"s_and_b32 s{S_T0}, s{S_T0}, 4")
        e(f"s_mul_i32 s{S_T0}, s{S_T0}, 3")
        e(f"s_xor_b32 s{S_HKV}, s{S_T0}, s2")
        e(f"s_and_b32 s{S_HKV}, s{S_HKV}, 15")
    else:
        e(f"s_and_b32 s{S_HKV}, s2, 15")
    e(f"s_lshr_b32 s{S_BP}, s2, 4")
    if stamps:
        for i in range(1, NST): e(f"s_mov_b32 s{64+2*i}, s64")
    e(f"s_cmp_lt_u32 s{S_WAVE}, 4")
    e("s_cbranch_scc1 L_kv")

    def consts():
        e(f"s_mov_b32 s{S_LO}, 0x05040100")
        e(f"s_mov_b32 s{S_HI}, 0x07060302")
        e(f"s_mov_b32 s{S_MASK}, 0xff00ff00")
        e(f"s_mov_b32 s{S_MASK+1}, 0xff00ff00")
    def unit_mma(buf, bfrag, acc, first, T0):
        def perms(i):
            w_, h = i >> 1, i & 1
            sel = S_HI if h else S_LO
            T = T0 + (i & 1) * 4
            for u_ in range(4):
                e(f"v_perm_b32 v{T+u_}, v{buf+(2*u_+1)*4+w_}, v{buf+(2*u_)*4+w_}, s{sel}")
        perms(0)
        for i in range(8):
            if i + 1 < 8: perms(i + 1)
            else: e("s_nop 1")
            T = T0 + (i & 1) * 4
            cc = "0" if first else vr(acc+4*i, 4)
            e(f"v_mfma_f32_16x16x32_bf16 {vr(acc+4*i,4)}, {vr(T,4)}, {vr(bfrag,4)}, {cc}")
    def wait_flag(lab, off, val, vz, vt, slp_=1):
        e.label(lab)
        e(f"ds_read_b32 v{vt}, v{vz} offset:{off-SB}")
        e("s_waitcnt lgkmcnt(0)")
        e(f"v_readfirstlane_b32 s{S_T0}, v{vt}")
        e(f"s_cmp_ge_u32 s{S_T0}, {val}")
        e(f"s_cbranch_scc1 {lab}_d")
        e(f"s_sleep {slp_}")
        e(f"s_branch {lab}")
        e.label(lab + "_d")

    V_WOFF, XO, V_QW = 1, 2, 7
    if qprio: e(f"s_setprio {qprio}")
    e(f"v_lshlrev_b32 v{V_T0}, 16, v{V_G}")
    e(f"v_lshl_add_u32 v{V_WOFF}, v{V_N}, 4, v{V_T0}")
    e(f"v_and_b32 v{V_T1}, 7, v{V_N}")
    e(f"v_mul_u32_u24 v{V_T0}, 1152, v{V_T1}")
    e(f"v_lshl_add_u32 v{V_T0}, v{V_G}, 4, v{V_T0}")
    e(f"s_mul_i32 s{S_U}, s{S_BP}, 9")
    e(f"s_lshr_b32 s{S_U}, s{S_U}, 4")
    e(f"v_lshrrev_b32 v{V_T2}, 3, v{V_N}")
    e(f"v_add_u32 v{V_AL}, s{S_U}, v{V_T2}")
    e(f"v_lshlrev_b32 v{V_AL}, 6, v{V_AL}")
    e(f"s_mov_b32 s{S_WQ+3}, 0x00020000")
    e(f"s_mov_b32 s{S_X+3}, 0x00020000")
    e(f"s_and_b32 s{S_T1}, s{S_WAVE}, 1")
    e(f"s_bfe_u32 s{S_T3}, s{S_WAVE}, 0x10001")
    e(f"s_mul_i32 s{S_T2}, s{S_T1}, {288*8192}")
    e(f"s_lshl_b32 s{S_T0}, s{S_HKV}, 9")
    e(f"s_add_u32 s{S_T2}, s{S_T2}, s{S_T0}")
    e(f"s_lshl_b32 s{S_T0}, s{S_T3}, 8")
    e(f"s_add_u32 s{S_T2}, s{S_T2}, s{S_T0}")
    e(f"s_sub_u32 s{S_WQ+2}, {576*8192}, s{S_T2}")
    e(f"s_mul_i32 s{S_IT}, s{S_T1}, 576")
    e(f"s_mul_i32 s{S_T0}, s{S_BP}, {8*1152}")
    e(f"s_add_u32 s{S_IT}, s{S_IT}, s{S_T0}")
    e(f"s_sub_u32 s{S_X+2}, {128*1152}, s{S_IT}")
    for i in range(5):
        e(f"v_add_u32 v{V_MC}, {i*128}, v{V_AL}")
        e(f"v_add_u32 v{V_L}, {i*128-576}, v{V_AL}")
        e(f"v_min_u32 v{V_MC}, v{V_MC}, v{V_L}")
        e(f"v_add_u32 v{XO+i}, v{V_MC}, v{V_T0}")
    e("s_waitcnt lgkmcnt(0)")
    e(f"s_add_u32 s{S_WQ}, s38, s{S_T2}")
    e(f"s_addc_u32 s{S_WQ+1}, s39, 0")
    e(f"s_add_u32 s{S_X}, s32, s{S_IT}")
    e(f"s_addc_u32 s{S_X+1}, s33, 0")
    stamp(1)
    for i in range(5):
        e(f"buffer_load_dwordx4 {vr(XF+4*i,4)}, v{XO+i}, s[{S_X}:{S_X+3}], 0 offen")
    def q_issue(s_):
        if s_ == nwarm: e("s_barrier")
        buf = WB + 32 * (s_ % nwb)
        e(f"s_lshl_b32 s{S_OFF}, s{S_U}, 18")
        for t in range(8):
            e(f"buffer_load_dwordx4 {vr(buf+4*t,4)}, v{V_WOFF}, s[{S_WQ}:{S_WQ+3}], s{S_OFF} offen {wpol}")
            if t < 7: e(f"s_add_u32 s{S_OFF}, s{S_OFF}, 8192")
        if s_ < nq - 1:
            e(f"s_add_u32 s{S_U}, s{S_U}, 1")
            e(f"s_cmp_eq_u32 s{S_U}, 9")
            e(f"s_cselect_b32 s{S_U}, 0, s{S_U}")
        else:
            stamp(2)
        if s_ == min(bar1, nq - 1): e("s_barrier")
    assert nwarm < qdepth
    for s_ in range(qdepth): q_issue(s_)
    consts()
    e(f"v_mul_u32_u24 v{V_T0}, {QP_ROW}, v{V_T1}")
    e(f"v_lshl_add_u32 v{V_T2}, v{V_G}, 1, v{V_T2}")
    e(f"v_lshl_add_u32 v{V_T0}, v{V_T2}, 6, v{V_T0}")
    e(f"s_mul_i32 s{S_T0}, s{S_T1}, {8*QP_ROW}")
    e(f"s_lshl_b32 s{S_T3}, s{S_T3}, 9")
    e(f"s_add_u32 s{S_T0}, s{S_T0}, s{S_T3}")
    e(f"s_add_u32 s{S_T0}, s{S_T0}, {LDS_QP}")
    e(f"v_add_u32 v{V_QW}, s{S_T0}, v{V_T0}")
    e(f"v_mov_b32 v{V_MC}, {SB}")
    e(f"v_mov_b32 v{V_L}, 1")
    assert qdepth < nwb
    for s_ in range(nq):
        nxt = s_ + qdepth
        inflight = min(nq, nxt) - s_ - 1
        e(f"s_waitcnt vmcnt({8*inflight})")
        if nxt < nq: q_issue(nxt)
        xb = XB + 4 * (s_ & 1); xf = XF + 4 * (s_ >> 1)
        for r in range(4):
            e(f"v_mov_b32_dpp v{xb+r}, v{xf+r} quad_perm:[0,1,2,3] row_mask:0xf bank_mask:{'0xc' if s_ & 1 else '0x3'}")
            e(f"v_mov_b32_dpp v{xb+r}, v{xf+r} row_ror:8 row_mask:0xf bank_mask:{'0x3' if s_ & 1 else '0xc'}")
        unit_mma(WB + 32 * (s_ % nwb), xb, QA, s_ == 0, QT)
    e("s_nop 0")
    QCC = WB + 32 * (9 % nwb)
    for i in range(8):
        for ee in range(2):
            e(f"v_cndmask_b32 v{QCC+ee*8+i}, v{QA+4*i+ee}, v{QA+4*i+2+ee}, s[{S_MASK}:{S_MASK+1}]")
    for x_ in range(4):
        e(f"ds_write_b128 v{V_QW}, {vr(QCC+4*x_,4)} offset:{16*x_}")
    for i in range(qdelay):
        e(f"buffer_load_dwordx4 {vr(XF,4)}, v{XO}, s[{S_X}:{S_X+3}], 0 offen sc1")
        e("s_waitcnt vmcnt(0)")
    e("s_mov_b64 exec, 1")
    e("s_waitcnt lgkmcnt(0)")
    e(f"ds_add_u32 v{V_MC}, v{V_L} offset:{LDS_FLAG-SB}")
    e("s_mov_b64 exec, -1")
    stamp(3)
    e("s_branch L_wo")

    e.label("L_kv")
    if kprio0: e(f"s_setprio {kprio0}")
    e(f"v_lshrrev_b32 v{V_T0}, 1, v{V_N}")
    e(f"v_lshlrev_b32 v{V_T0}, 10, v{V_T0}")
    e(f"v_and_b32 v{V_T1}, 1, v{V_N}")
    e(f"v_lshlrev_b32 v{V_T1}, 4, v{V_T1}")
    e(f"v_lshlrev_b32 v{V_T2}, 5, v{V_G}")
    e(f"v_add3_u32 v{V_KOFF}, v{V_T0}, v{V_T1}, v{V_T2}")
    e(f"v_lshlrev_b32 v{V_T0}, 11, v{V_G}")
    e(f"v_lshl_add_u32 v{V_VOFF}, v{V_N}, 4, v{V_T0}")
    e(f"v_mov_b32 v{V_Z}, 0")
    e(f"v_mov_b32 v{V_Z+1}, 0")
    e(f"v_mov_b32 v{V_T0}, -1")
    e(f"v_mov_b32 v{V_T2}, {SB}")
    e(f"v_lshl_add_u32 v{V_T1}, v0, 2, v{V_T2}")
    e(f"ds_write_b64 v{V_T2}, {vr(V_Z,2)} offset:{LDS_FLAG-SB}")
    e(f"ds_write_b64 v{V_T2}, {vr(V_Z,2)} offset:{LDS_FLAG+8-SB}")
    e(f"ds_write_b32 v{V_T1}, v{V_T0} offset:{LDS_XCH-SB}")
    e(f"s_lshl_b32 s{S_T0}, s{S_BP}, 5")
    e(f"s_add_u32 s{S_T0}, s{S_T0}, s{S_HKV}")
    e(f"s_lshl_b32 s{S_T0}, s{S_T0}, 19")
    if cls is None:
        e(f"s_lshl_b32 s{S_T1}, s{S_BP}, 2")
    else:
        tb = sum((cls(j) & 3) << (2*j) for j in range(32))
        e(f"s_lshr_b32 s{S_T1}, s2, 2")
        e(f"s_bitcmp1_b32 s2, 7")
        e(f"s_mov_b32 s{S_IT}, 0x{tb & 0xffffffff:08x}")
        e(f"s_cselect_b32 s{S_IT}, 0x{tb >> 32:08x}, s{S_IT}")
        e(f"s_and_b32 s{S_T1}, s{S_T1}, 30")
        e(f"s_lshr_b32 s{S_T1}, s{S_IT}, s{S_T1}")
        e(f"s_and_b32 s{S_T1}, s{S_T1}, 3")
        e(f"s_lshl_b32 s{S_T1}, s{S_T1}, 2")
    e(f"s_lshr_b32 s{S_NPRE}, 0x{table(npre):08x}, s{S_T1}")
    e(f"s_and_b32 s{S_NPRE}, s{S_NPRE}, 15")
    e(f"s_lshr_b32 s{S_IT}, 0x{table([x//2 for x in Es]):08x}, s{S_T1}")
    e(f"s_and_b32 s{S_IT}, s{S_IT}, 15")
    e(f"s_lshl_b32 s{S_LIM}, s{S_IT}, 16")
    e(f"s_sub_u32 s{S_T1}, 16, s{S_IT}")
    e(f"s_cmp_ge_u32 s{S_WAVE}, 2")
    e(f"s_cselect_b32 s{S_K+2}, s{S_LIM}, 0x880000")
    e(f"s_cselect_b32 s{S_V+2}, s{S_LIM}, 0x880000")
    e(f"s_cselect_b32 s{S_IT}, s{S_IT}, s{S_T1}")
    e(f"s_mov_b32 s{S_K+3}, 0x00020000")
    e(f"s_mov_b32 s{S_V+3}, 0x00020000")
    e(f"s_lshl_b32 s{S_OFF}, s{S_WAVE}, 13")
    e(f"s_lshl_b32 m0, s{S_WAVE}, 15")
    e("s_waitcnt lgkmcnt(0)")
    e(f"s_add_u32 s{S_K}, s34, s{S_T0}")
    e(f"s_addc_u32 s{S_K+1}, s35, 0")
    e(f"s_add_u32 s{S_V}, s36, s{S_T0}")
    e(f"s_addc_u32 s{S_V+1}, s37, 0")
    stamp(1)
    def ld_k(buf, soff):
        for u in range(4):
            for j in range(2):
                e(f"buffer_load_dwordx4 {vr(buf+(u*2+j)*4,4)}, v{V_KOFF}, s[{S_K}:{S_K+3}], {soff} offen offset:{u*256+j*128} {pol}")
    def ld_v(buf, soff):
        for t in range(8):
            e(f"buffer_load_dwordx4 {vr(buf+t*4,4)}, v{V_VOFF}, s[{S_V}:{S_V+3}], {soff} offen offset:{t*256} {pol}")
    def ld_lds():
        for i in range(8):
            e(f"buffer_load_dwordx4 v{V_KOFF}, s[{S_K}:{S_K+3}], s{S_OFF} offen offset:{i*128} {pol} lds")
            e(f"s_add_u32 m0, m0, {896 if i < 7 else 8192-7*896}")
            e("s_nop 0" if i < 7 else "s_waitcnt vmcnt(55)")
        for t in range(8):
            e(f"buffer_load_dwordx4 v{V_VOFF}, s[{S_V}:{S_V+3}], s{S_OFF} offen offset:{t*256} {pol} lds")
            e(f"s_add_u32 m0, m0, {768 if t < 7 else 8192-7*768}")
            if t < 7: e("s_nop 0")
    def gate(g):
        e(f"s_cmp_lg_u32 s{S_NPRE}, {g}")
        e(f"s_cbranch_scc1 L_g{g}")
        e("s_barrier")
        e("s_barrier")
        e.label(f"L_g{g}")
    for g in range(5):
        if g in npre: gate(g)
        if g < 2: ld_k(KB[g], f"s{S_OFF}"); ld_v(VB[g], f"s{S_OFF}")
        elif g < 4: ld_lds()
        if g < 4: e(f"s_add_u32 s{S_OFF}, s{S_OFF}, 0x8000")
    stamp(2)
    e(f"s_setprio {prio[1]}")
    if prio[0] != prio[1]:
        e(f"s_cmp_ge_u32 s{S_WAVE}, 2")
        e("s_cbranch_scc1 L_pr")
        e(f"s_setprio {prio[0]}")
        e.label("L_pr")
    consts()
    c = math.log2(math.e) / math.sqrt(128.0)
    cbits = struct.unpack("<I", struct.pack("<f", c))[0]
    e(f"s_mov_b32 s{S_C}, 0x{cbits:08x}")
    A0, A1, A2, A3 = TMP, TMP+1, TMP+2, TMP+3
    e(f"v_lshrrev_b32 v{A3}, 3, v0")
    e(f"v_and_b32 v{A1}, 3, v{V_N}")
    e(f"v_mul_u32_u24 v{A0}, {QP_ROW}, v{A1}")
    e(f"v_bfe_u32 v{A2}, v{V_N}, 2, 1")
    e(f"v_lshl_add_u32 v{A0}, v{A2}, 9, v{A0}")
    e(f"v_lshl_add_u32 v{A0}, v{A3}, 5, v{A0}")
    e(f"v_add_u32 v{V_QRD}, {LDS_QP}, v{A0}")
    e(f"v_mul_u32_u24 v{A0}, {OB_ROW}, v{A1}")
    e(f"v_lshl_add_u32 v{A0}, v{A2}, 8, v{A0}")
    e(f"v_lshl_add_u32 v{A0}, v{A3}, 5, v{A0}")
    e(f"s_mul_i32 s{S_T0}, s{S_WAVE}, {4*OB_ROW}")
    e(f"s_add_u32 s{S_T3}, s{S_T0}, {LDS_OB + 8*OB_ROW}")
    e(f"s_lshl_b32 s{S_T0}, s{S_WAVE}, 15")
    e(f"s_add_u32 s{S_T1}, s{S_T0}, 16384")
    e(f"s_cmp_ge_u32 s{S_WAVE}, 2")
    e(f"s_cselect_b32 s{S_T3}, s{S_T1}, s{S_T3}")
    e(f"s_cselect_b32 s{S_T1}, 0, 64")
    e(f"v_add_u32 v{V_OBW}, s{S_T3}, v{A0}")
    e(f"v_lshlrev_b32 v{A0}, 4, v0")
    e(f"v_add_u32 v{V_LR}, s{S_T0}, v{A0}")
    e(f"v_and_b32 v{A2}, 7, v{V_N}")
    e(f"v_mul_u32_u24 v{A0}, {OP_ROW}, v{A2}")
    e(f"v_lshl_add_u32 v{A0}, v{A3}, 6, v{A0}")
    e(f"v_add_u32 v{V_OPW}, s{S_T0}, v{A0}")
    e(f"s_lshl_b32 s{S_T0}, s{S_WAVE}, 2")
    e(f"s_add_u32 s{S_T0}, s{S_T0}, {SB}")
    e(f"v_lshlrev_b32 v{A0}, 4, v{A2}")
    e(f"v_add_u32 v{V_MLW}, s{S_T0}, v{A0}")
    e(f"s_lshl_b32 s{S_T0}, s{S_WAVE}, 6")
    e(f"s_add_u32 s{S_T0}, s{S_T0}, {SB}")
    e(f"v_lshlrev_b32 v{A0}, 3, v{A2}")
    e(f"v_add_u32 v{V_XW}, s{S_T0}, v{A0}")
    e(f"v_xor_b32 v{V_XR}, s{S_T1}, v{V_XW}")
    wait_flag("L_wq", LDS_FLAG, 4, V_T2, V_T0)
    stamp(3)
    e.label("L_qload")
    for j in range(2):
        for ee in range(2):
            for h in range(2):
                e(f"ds_read_b128 {vr(TMP+j*16+ee*8+h*4,4)}, v{V_QRD} offset:{ee*8*QP_ROW+j*256+h*16}")
    for i in range(16):
        e(f"v_pk_mul_f32 {vr(OA+2*i,2)}, {vr(V_Z,2)}, {vr(V_Z,2)}")
    e(f"v_mov_b32 v{V_MC}, 0xf149f2ca")
    e(f"v_mov_b32 v{V_L}, 0")
    e(f"v_mov_b32 v{XT}, 0xf149f2ca")
    e(f"v_add_u32 v{V_QRD}, {4*QP_ROW}, v{V_QRD}")
    for j in range(2):
        e(f"s_waitcnt lgkmcnt({4-4*j})")
        for i in range(4):
            e(f"v_pk_add_f32 {vr(TMP+j*16+2*i,2)}, {vr(TMP+j*16+2*i,2)}, {vr(TMP+j*16+8+2*i,2)}")
        for i in range(4):
            e(f"v_cvt_pk_bf16_f32 v{QF+j*4+i}, v{TMP+j*16+2*i}, v{TMP+j*16+2*i+1}")
    e(f"s_cmp_ge_u32 s{S_IT}, 100")
    e("s_cbranch_scc1 L_loop")
    stamp(4)

    def adv():
        e(f"s_cmp_lt_u32 s{S_OFF}, s{S_LIM}")
        e(f"s_cselect_b32 s{S_T0}, 2, 1")
        e(f"s_lshl_b32 s{S_T0}, s{S_T0}, 14")
        e(f"s_add_u32 s{S_OFF}, s{S_OFF}, s{S_T0}")
        e(f"s_bitcmp1_b32 s{S_OFF}, 19")
        e(f"s_cselect_b32 s{S_T0}, 0x780000, 0")
        e(f"s_add_u32 s{S_OFF}, s{S_OFF}, s{S_T0}")
    def lreduce():
        e("s_nop 1")
        e(f"v_add_f32_dpp v{V_L}, v{V_L}, v{V_L} row_ror:8 row_mask:0xf bank_mask:0xf")
        e(f"v_mov_b32 v{V_T1}, v{V_L}")
        e("s_nop 1")
        e(f"v_permlane32_swap_b32 v{V_L}, v{V_T1}")
        e(f"v_add_f32 v{V_L}, v{V_L}, v{V_T1}")
        e(f"v_mov_b32 v{V_T1}, v{V_L}")
        e("s_nop 1")
        e(f"v_permlane16_swap_b32 v{V_L}, v{V_T1}")
        e(f"v_add_f32 v{V_L}, v{V_L}, v{V_T1}")
    def merge(acc, dst):
        for i in range(8):
            for ee in range(2):
                e(f"v_add_f32_dpp v{dst+ee*8+i}, v{acc+4*i+ee}, v{acc+4*i+ee} row_ror:8 row_mask:0xf bank_mask:0x3")
                e(f"v_add_f32_dpp v{dst+ee*8+i}, v{acc+4*i+2+ee}, v{acc+4*i+2+ee} row_ror:8 row_mask:0xf bank_mask:0xc")

    def tile(p, wk, wv, kis=None, vis=None, last=False, lds=None):
        kb, vb = (KB[p], VB[p]) if lds is None else (TMP, TMP)
        e(f"s_waitcnt vmcnt({wk})")
        if lds is not None:
            for j in range(2):
                for u in range(4):
                    e(f"ds_read_b128 {vr(TMP+(u*2+j)*4,4)}, v{V_LR} offset:{lds*16384+(u*2+j)*1024}")
        if kis and kis[0] == "early": ld_k(kis[1], f"s{S_OFF}")
        for j in range(2):
            if lds is not None: e(f"s_waitcnt lgkmcnt({4-4*j})")
            for u in range(4):
                cc = "0" if j == 0 else vr(ST+u*4, 4)
                e(f"v_mfma_f32_16x16x32_bf16 {vr(ST+u*4,4)}, {vr(kb+(u*2+j)*4,4)}, {vr(QF+j*4,4)}, {cc}")
        if kis and kis[0] == "late": ld_k(kis[1], f"s{S_OFF}")
        elif lds is not None:
            e(f"s_waitcnt vmcnt({wv})")
            for t in range(8):
                e(f"ds_read_b128 {vr(TMP+t*4,4)}, v{V_LR} offset:{lds*16384+8192+t*1024}")
        else: e("s_nop 4")
        S = [SS+i for i in range(4)]
        for u in range(4):
            a = ST + 4*u
            e(f"v_add_f32_dpp v{S[u]}, v{a+1}, v{a} row_ror:8 row_mask:0xf bank_mask:0x3")
            e(f"v_add_f32_dpp v{S[u]}, v{a+2}, v{a+3} row_ror:8 row_mask:0xf bank_mask:0xc")
        e(f"v_max3_f32 v{V_T0}, v{S[0]}, v{S[1]}, v{XT}")
        e(f"v_max3_f32 v{V_T0}, v{S[2]}, v{S[3]}, v{V_T0}")
        e("s_nop 1")
        e(f"v_max_f32_dpp v{V_T0}, v{V_T0}, v{V_T0} row_ror:8 row_mask:0xf bank_mask:0xf")
        e(f"v_mov_b32 v{V_T1}, v{V_T0}")
        e("s_nop 1")
        e(f"v_permlane32_swap_b32 v{V_T0}, v{V_T1}")
        e(f"v_max_f32 v{V_T0}, v{V_T0}, v{V_T1}")
        e(f"v_mov_b32 v{V_T1}, v{V_T0}")
        e("s_nop 1")
        e(f"v_permlane16_swap_b32 v{V_T0}, v{V_T1}")
        e(f"v_max_f32 v{XT}, v{V_T0}, v{V_T1}")
        e(f"v_mul_f32 v{V_T0}, s{S_C}, v{XT}")
        e(f"v_sub_f32 v{V_AL}, v{V_MC}, v{V_T0}")
        e(f"v_exp_f32 v{V_AL}, v{V_AL}")
        e(f"v_mov_b32 v{V_MC}, v{V_T0}")
        for i in range(4):
            e(f"v_fma_f32 v{S[i]}, v{S[i]}, s{S_C}, -v{V_MC}")
        for i in range(4):
            e(f"v_exp_f32 v{S[i]}, v{S[i]}")
        def rescale():
            for i in range(16):
                e(f"v_pk_mul_f32 {vr(OA+2*i,2)}, {vr(OA+2*i,2)}, {vr(V_AL,2)} op_sel_hi:[1,0]")
        if not last: rescale()
        e(f"v_add_f32 v{V_T0}, v{S[0]}, v{S[1]}")
        e(f"v_add_f32 v{V_T1}, v{S[2]}, v{S[3]}")
        e(f"v_fma_f32 v{V_L}, v{V_L}, v{V_AL}, v{V_T0}")
        e(f"v_add_f32 v{V_L}, v{V_L}, v{V_T1}")
        if last:
            lreduce()
            e(f"ds_write_b64 v{V_XW}, {vr(V_MC,2)} offset:{LDS_XCH-SB}")
            M2, L2 = TMP, TMP+1
            e.label("L_xch")
            e(f"ds_read_b64 {vr(M2,2)}, v{V_XR} offset:{LDS_XCH-SB}")
            e("s_waitcnt lgkmcnt(0)")
            e(f"v_cmp_eq_u32 vcc, -1, v{M2}")
            e("s_cbranch_vccnz L_xch")
            e(f"v_max_f32 v{V_T0}, v{M2}, v{V_MC}")
            e(f"v_sub_f32 v{M2}, v{M2}, v{V_T0}")
            e(f"v_sub_f32 v{V_T1}, v{V_MC}, v{V_T0}")
            e(f"v_exp_f32 v{M2}, v{M2}")
            e(f"v_exp_f32 v{V_T1}, v{V_T1}")
            e(f"v_mul_f32 v{V_T0}, v{M2}, v{L2}")
            e(f"v_fmac_f32 v{V_T0}, v{V_T1}, v{V_L}")
            e(f"v_rcp_f32 v{V_T0}, v{V_T0}")
            e("s_nop 0")
            e(f"v_mul_f32 v{V_T1}, v{V_T1}, v{V_T0}")
            e(f"v_mul_f32 v{V_AL}, v{V_AL}, v{V_T1}")
            for i in range(4):
                e(f"v_mul_f32 v{S[i]}, v{S[i]}, v{V_T1}")
            rescale()
            stamp(6)
        e(f"v_cvt_pk_bf16_f32 v{V_T0}, v{S[0]}, v{S[1]}")
        e(f"v_cvt_pk_bf16_f32 v{V_T1}, v{S[2]}, v{S[3]}")
        e(f"v_cndmask_b32 v{PP}, v{V_T0}, 0, s[{S_MASK}:{S_MASK+1}]")
        e(f"v_cndmask_b32 v{PP+1}, v{V_T1}, 0, s[{S_MASK}:{S_MASK+1}]")
        e(f"v_cndmask_b32 v{PP+2}, 0, v{V_T0}, s[{S_MASK}:{S_MASK+1}]")
        e(f"v_cndmask_b32 v{PP+3}, 0, v{V_T1}, s[{S_MASK}:{S_MASK+1}]")
        if lds is not None: e("s_waitcnt lgkmcnt(0)")
        else: e(f"s_waitcnt vmcnt({wv})")
        if last: stamp(7)
        if vis and vis[0] == "early": ld_v(vis[1], f"s{S_OFF}")
        unit_mma(vb, PP, OA, False, PT)
        if vis and vis[0] == "late": ld_v(vis[1], f"s{S_OFF}")
        if vis: adv()

    kw = "early" if kearly else "late"
    vw = "early" if vearly else "late"
    tile(0, 55, 55, ("late", KB[0]), ("late", VB[0]))
    if deep == 1:
        tile(1, 55, 55, ("late", KB[1]), ("late", VB[1]))
        tile(0, 56, 48, lds=0)
        tile(0, 40, 32, lds=1)
    else:
        tile(1, 56, 48)
        tile(0, 40, 32, lds=0)
        tile(0, 24, 16, lds=1)
    e(f"s_sub_u32 s{S_IT}, s{S_IT}, 2")
    e(f"s_cmp_eq_u32 s{S_IT}, 0")
    e("s_cbranch_scc1 L_flush")
    e.label("L_loop")
    if deep == 1:
        tile(0, dw, dw, ("late", KB[0]), ("late", VB[0]))
        e(f"s_cmp_eq_u32 s{S_IT}, 101")
        e("s_cbranch_scc1 L_last")
        tile(1, dw, dw, ("late", KB[1]), ("late", VB[1]))
    else:
        if deep:
            e(f"s_cmp_eq_u32 s{S_IT}, {100 + deep}")
            e("s_cbranch_scc1 L_deep")
        tile(0, 8, 8, (kw, KB[1]), (vw, VB[1]))
        if not deep:
            e(f"s_cmp_eq_u32 s{S_IT}, 101")
            e("s_cbranch_scc1 L_last")
        tile(1, 8, 8, (kw, KB[0]), (vw, VB[0]))
    e(f"s_sub_u32 s{S_IT}, s{S_IT}, 1")
    e(f"s_cmp_lg_u32 s{S_IT}, 0")
    e("s_cbranch_scc1 L_loop")
    e.label("L_flush")
    stamp(5)
    lreduce()
    e(f"ds_write_b32 v{V_MLW}, v{V_MC} offset:{LDS_ML-SB}")
    e(f"ds_write_b32 v{V_MLW}, v{V_L} offset:{LDS_ML+128-SB}")
    merge(OA, TMP)
    for x_ in range(4):
        e(f"ds_write_b128 v{V_OPW}, {vr(TMP+4*x_,4)} offset:{16*x_}")
    e(f"v_mov_b32 v{V_T0}, 1")
    e("s_mov_b64 exec, 1")
    e("s_waitcnt lgkmcnt(0)")
    e(f"ds_add_u32 v{V_T2}, v{V_T0} offset:{LDS_FLAG+4-SB}")
    e("s_mov_b64 exec, -1")
    e(f"s_mov_b32 s{S_IT}, 116")
    e(f"s_cmp_lt_u32 s{S_WAVE}, 2")
    e("s_cbranch_scc1 L_qload")
    if not dryl: e("s_branch L_wo")
    if deep > 1:
        e(f"s_mov_b32 s{S_IT}, 102")
        e.label("L_deep")
        ld_k(KB[1], f"s{S_OFF}"); ld_v(VB[1], f"s{S_OFF}"); adv()
        e.label("L_dl")
        tile(0, 24, 24, ("late", KB[0]), ("late", VB[0]))
        e(f"s_cmp_eq_u32 s{S_IT}, 101")
        e("s_cbranch_scc1 L_last")
        tile(1, 24, 24, ("late", KB[1]), ("late", VB[1]))
        e(f"s_sub_u32 s{S_IT}, s{S_IT}, 1")
        e("s_branch L_dl")
    e.label("L_last")
    if deep: tile(1, 24, 16, last=True)
    else: tile(1, 8, 0, last=True)
    e("s_nop 0")
    merge(OA, TMP)
    for i in range(8):
        e(f"v_cvt_pk_bf16_f32 v{TMP+16+i}, v{TMP+2*i}, v{TMP+2*i+1}")
    e(f"ds_write_b128 v{V_OBW}, {vr(TMP+16,4)}")
    e(f"ds_write_b128 v{V_OBW}, {vr(TMP+20,4)} offset:16")
    if dryl:
        e(f"s_cmp_ge_u32 s{S_WAVE}, 2")
        e("s_cbranch_scc1 L_wo")
    e("s_waitcnt lgkmcnt(0)")
    stamp(8)
    e("s_barrier")
    if stamps:
        stamp(9); stamp(10); stamp(11)
        e("s_branch L_dump")
    else:
        e("s_branch L_end0" if hotend else "s_endpgm")

    e.label("L_wo")
    e("s_setprio 0")
    V_WO, V_OPR, V_MLR, V_OBC, V_BRD, V_STO, V_PL, V_OO, V_TAG, V_SB, V_IDX = 1, 2, 3, 4, 5, 6, 7, 1, 2, 3, 4
    A0, A1, A2, AN, AG, AZ, AS = 232, 233, 234, 235, 236, 237, 238
    S_PW, S_PO = S_OFF, S_IT
    e(f"v_and_b32 v{AN}, 15, v0")
    e(f"v_lshrrev_b32 v{AG}, 4, v0")
    e(f"v_mov_b32 v{AZ}, 0")
    e(f"v_mov_b32 v{AS}, {SB}")
    e(f"s_sub_u32 s{S_T3}, s{S_WAVE}, 2")
    e(f"v_lshrrev_b32 v{A0}, 5, v0")
    e(f"v_mul_u32_u24 v{A0}, {16*1152}, v{A0}")
    e(f"v_and_b32 v{A1}, 1, v{AG}")
    e(f"v_mul_u32_u24 v{A1}, {4*1152}, v{A1}")
    e(f"v_mul_u32_u24 v{A2}, 12, v{AN}")
    e(f"v_add3_u32 v{A0}, v{A0}, v{A1}, v{A2}")
    e(f"s_mul_i32 s{S_T0}, s{S_T3}, 192")
    e(f"v_add_u32 v{V_WO}, s{S_T0}, v{A0}")
    e(f"s_mul_i32 s{S_T0}, s{S_HKV}, {256*1152}")
    e(f"s_add_u32 s{S_WO}, s40, s{S_T0}")
    e(f"s_addc_u32 s{S_WO+1}, s41, 0")
    e(f"s_mov_b32 s{S_WO+2}, {256*1152}")
    e(f"s_mov_b32 s{S_WO+3}, 0x00020000")
    e(f"s_mul_i32 s{S_T0}, s{S_BP}, {GRP}")
    e(f"s_add_u32 s{S_WS}, s46, s{S_T0}")
    e(f"s_addc_u32 s{S_WS+1}, s47, 0")
    e(f"s_mov_b32 s{S_WS+2}, {GRP}")
    e(f"s_mov_b32 s{S_WS+3}, 0x00020000")
    e(f"s_mov_b32 s{S_OUT}, s42")
    e(f"s_mov_b32 s{S_OUT+1}, s43")
    e(f"s_mov_b32 s{S_OUT+2}, {128*1152}")
    e(f"s_mov_b32 s{S_OUT+3}, 0x00020000")
    e(f"s_mov_b32 s{S_DBG}, s44")
    e(f"s_mov_b32 s{S_DBG+1}, s45")
    e(f"s_mov_b32 s{S_DBG+2}, 256")
    e(f"s_mov_b32 s{S_DBG+3}, 0x00020000")
    e(f"v_bfe_u32 v{A0}, v{AN}, 1, 1")
    e(f"v_lshrrev_b32 v{A1}, 2, v{AN}")
    e(f"v_lshl_add_u32 v{A0}, v{A0}, 2, v{A1}")
    e(f"v_mul_u32_u24 v{A0}, {OB_ROW}, v{A0}")
    e(f"v_lshl_add_u32 v{A0}, v{AG}, 5, v{A0}")
    e(f"v_and_b32 v{A1}, 1, v{AN}")
    e(f"v_lshl_add_u32 v{A0}, v{A1}, 4, v{A0}")
    e(f"v_add_u32 v{V_BRD}, {LDS_OB}, v{A0}")
    e(f"v_mul_u32_u24 v{A0}, {6*4096}, v{AG}")
    e(f"v_lshlrev_b32 v{A1}, 4, v{AN}")
    e(f"s_lshl_b32 s{S_T0}, s{S_T3}, 12")
    e(f"s_lshl_b32 s{S_T1}, s{S_HKV}, 8")
    e(f"s_add_u32 s{S_T1}, s{S_T1}, s{S_T0}")
    e(f"v_add3_u32 v{V_STO}, v{A0}, v{A1}, s{S_T1}")
    e(f"s_lshr_b32 s{S_T1}, s{S_HKV}, 1")
    e(f"s_mul_i32 s{S_T1}, s{S_T1}, {6*4096}")
    e(f"s_add_u32 s{S_T0}, s{S_T0}, s{S_T1}")
    e(f"s_and_b32 s{S_T1}, s{S_HKV}, 1")
    e(f"s_lshl_b32 s{S_T1}, s{S_T1}, 7")
    e(f"s_add_u32 s{S_T0}, s{S_T0}, s{S_T1}")
    e(f"v_lshrrev_b32 v{A0}, 3, v0")
    e(f"v_lshlrev_b32 v{A0}, 8, v{A0}")
    e(f"v_and_b32 v{A1}, 7, v0")
    e(f"v_lshlrev_b32 v{A1}, 4, v{A1}")
    e(f"v_add3_u32 v{V_PL}, v{A0}, v{A1}, s{S_T0}")
    e(f"v_lshrrev_b32 v{A1}, 5, v0")
    e(f"s_and_b32 s{S_T1}, s{S_WAVE}, 3")
    e(f"s_lshl_b32 s{S_T1}, s{S_T1}, 1")
    e(f"v_add_u32 v{A1}, s{S_T1}, v{A1}")
    e(f"v_and_b32 v{A2}, 31, v0")
    e(f"s_cmp_ge_u32 s{S_WAVE}, 4")
    e("s_cbranch_scc1 L_nozero")
    for i in range(4): e(f"v_mov_b32 v{240+i}, 0")
    e(f"v_mul_u32_u24 v{A0}, {OB_ROW}, v{A1}")
    e(f"v_lshl_add_u32 v{A0}, v{A2}, 4, v{A0}")
    e(f"v_add_u32 v{A0}, v{AS}, v{A0}")
    e(f"ds_write_b128 v{A0}, v[240:243] offset:{LDS_OB-SB}")
    e.label("L_nozero")
    e(f"v_mul_u32_u24 v{V_OPR}, {OP_ROW}, v{A1}")
    e(f"v_lshl_add_u32 v{V_OPR}, v{A2}, 4, v{V_OPR}")
    e(f"v_lshl_add_u32 v{V_MLR}, v{A1}, 4, v{AS}")
    e(f"v_and_b32 v{A0}, 3, v{A1}")
    e(f"v_mul_u32_u24 v{A0}, {OB_ROW}, v{A0}")
    e(f"v_lshrrev_b32 v{A1}, 2, v{A1}")
    e(f"v_lshl_add_u32 v{A0}, v{A1}, 8, v{A0}")
    e(f"v_lshl_add_u32 v{A0}, v{A2}, 3, v{A0}")
    e(f"v_add_u32 v{V_OBC}, v{AS}, v{A0}")
    e(f"s_lshl_b32 s{S_T0}, s2, 3")
    e(f"s_add_u32 s{S_T0}, s{S_T0}, s{S_WAVE}")
    e(f"s_cmp_lg_u32 s{S_T0}, 7")
    e("s_cbranch_scc1 L_notag")
    e(f"s_memrealtime s[{S_T1}:{S_T1+1}]")
    e("s_waitcnt lgkmcnt(0)")
    e(f"s_or_b32 s{S_T1}, s{S_T1}, 1")
    e(f"v_mov_b32 v{A1}, s{S_T1}")
    e("s_mov_b64 exec, 1")
    e(f"buffer_store_dword v{A1}, v{AZ}, s[{S_DBG}:{S_DBG+3}], 0 offen sc1")
    e("s_mov_b64 exec, -1")
    e.label("L_notag")
    if wostart:
        wait_flag("L_ws", LDS_FLAG+4, wostart, AS, A0, 8)
    stamp(4)
    for j in range(4):
        for hh in range(2):
            for t in range(8):
                if t % 4 == 0: e(f"s_mov_b32 s{S_T0}, {(64*j+32*hh+(t>>2)*8)*1152}")
                if not nowo: e(f"buffer_load_dwordx3 {vr(BF+4*t,3)}, v{V_WO}, s[{S_WO}:{S_WO+3}], s{S_T0} offen offset:{(t%4)*1152} {wopol}")
                if (t in wpat) if wpat else ((t + 1) % wog == 0):
                    e("s_waitcnt vmcnt(0)")
            for i in range(6):
                w_, h = i >> 1, i & 1
                sel = S_HI if h else S_LO
                for r in range(4):
                    tl = (r & 1) * 4 + ((r >> 1) & 1) * 2
                    e(f"v_perm_b32 v{WF+(j*6+i)*8+hh*4+r}, v{BF+(tl+1)*4+w_}, v{BF+tl*4+w_}, s{sel}")
    stamp(5)
    e(f"s_lshl_b32 s{S_T0}, s{S_BP}, 3")
    e(f"s_lshr_b32 s{S_T1}, s{S_HKV}, 1")
    e(f"s_add_u32 s{S_T0}, s{S_T0}, s{S_T1}")
    e(f"s_mul_i32 s{S_T0}, s{S_T0}, 1152")
    e(f"s_mul_i32 s{S_T1}, s{S_T3}, 192")
    e(f"s_add_u32 s{S_T0}, s{S_T0}, s{S_T1}")
    e(f"s_and_b32 s{S_T1}, s{S_HKV}, 1")
    e(f"s_mul_i32 s{S_T1}, s{S_T1}, 96")
    e(f"s_add_u32 s{S_T0}, s{S_T0}, s{S_T1}")
    e(f"v_mul_u32_u24 v{A0}, 12, v{AN}")
    e(f"v_lshl_add_u32 v{A0}, v{AG}, 2, v{A0}")
    e(f"v_add_u32 v{V_OO}, s{S_T0}, v{A0}")
    e(f"s_cmp_lg_u32 s{S_WAVE}, 3")
    e("s_cbranch_scc1 L_nochk")
    e(f"s_mov_b32 s{S_T1}, 0x40000")
    e.label("L_chk")
    e(f"buffer_load_dword v{A0}, v{AZ}, s[{S_DBG}:{S_DBG+3}], 0 offen sc1")
    e("s_waitcnt vmcnt(0)")
    e(f"v_readfirstlane_b32 s{S_T0}, v{A0}")
    e(f"ds_write_b32 v{AS}, v{A0} offset:{LDS_FLAG+8-SB}")
    e(f"s_sub_u32 s{S_T1}, s{S_T1}, 1")
    e("s_cbranch_scc1 L_nochk")
    e(f"s_cmp_lg_u32 s{S_T0}, 0")
    e("s_cbranch_scc1 L_nochk")
    e("s_sleep 8")
    e("s_branch L_chk")
    e.label("L_nochk")
    e(f"s_cmp_lt_u32 s{S_WAVE}, 4")
    e("s_cbranch_scc1 L_comb_d")
    wait_flag("L_wf", LDS_FLAG+4, 4, AS, A0, 8)
    MM, LL, OO, CT = BF, BF+4, BF+8, A0
    e(f"ds_read_b128 {vr(MM,4)}, v{V_MLR} offset:{LDS_ML-SB}")
    e(f"ds_read_b128 {vr(LL,4)}, v{V_MLR} offset:{LDS_ML+128-SB}")
    e(f"v_add_u32 v{A1}, 0x10000, v{V_OPR}")
    for p in range(4):
        e(f"ds_read_b128 {vr(OO+4*p,4)}, v{V_OPR if p < 2 else A1} offset:{(p&1)*32768}")
    e("s_waitcnt lgkmcnt(4)")
    e(f"v_max3_f32 v{CT}, v{MM}, v{MM+1}, v{MM+2}")
    e(f"v_max_f32 v{CT}, v{CT}, v{MM+3}")
    for p in range(4): e(f"v_sub_f32 v{MM+p}, v{MM+p}, v{CT}")
    for p in range(4): e(f"v_exp_f32 v{MM+p}, v{MM+p}")
    e("s_nop 0")
    e(f"v_mul_f32 v{CT}, v{MM}, v{LL}")
    for p in range(1, 4): e(f"v_fmac_f32 v{CT}, v{MM+p}, v{LL+p}")
    e(f"v_rcp_f32 v{CT}, v{CT}")
    e("s_nop 0")
    for p in range(4): e(f"v_mul_f32 v{MM+p}, v{MM+p}, v{CT}")
    e("s_waitcnt lgkmcnt(0)")
    for i in range(4): e(f"v_mul_f32 v{OO+i}, v{OO+i}, v{MM}")
    for p in range(1, 4):
        for i in range(4): e(f"v_fmac_f32 v{OO+i}, v{OO+4*p+i}, v{MM+p}")
    e(f"v_cvt_pk_bf16_f32 v{LL}, v{OO}, v{OO+1}")
    e(f"v_cvt_pk_bf16_f32 v{LL+1}, v{OO+2}, v{OO+3}")
    e(f"ds_write_b64 v{V_OBC}, {vr(LL,2)} offset:{LDS_OB-SB}")
    e.label("L_comb_d")
    AF, G, G0, SEL, DD = 200, 216, 220, 224, 228
    F = AF
    e(f"v_mov_b32 v{V_SB}, {SB}")
    e(f"v_mov_b32 v{A0}, 1")
    e("s_mov_b64 exec, 1")
    e("s_waitcnt lgkmcnt(0)")
    e(f"ds_add_u32 v{V_SB}, v{A0} offset:{LDS_FLAG+12-SB}")
    e("s_mov_b64 exec, -1")
    e(f"v_and_b32 v{A1}, 1, v0")
    e(f"v_mul_u32_u24 v{V_IDX}, 0xaaaa, v{A1}")
    e(f"v_add_u32 v{V_IDX}, 0x4444, v{V_IDX}")
    e(f"v_lshlrev_b32 v{A1}, 4, v{A1}")
    e(f"v_mov_b32 v{A2}, 0x3f80")
    e(f"v_lshlrev_b32 v{A1}, v{A1}, v{A2}")
    e(f"v_and_b32 v{A2}, 14, v0")
    for q in range(3):
        e(f"v_cmp_eq_u32 vcc, {4*q}, v{A2}")
        e(f"v_cndmask_b32 v{SEL+q}, 0, v{A1}, vcc")
    e(f"v_mov_b32 v{SEL+3}, 0")
    e(f"s_mov_b32 s{S_PW}, 0")
    e(f"s_mov_b32 s{S_WS+2}, 0")
    e(f"s_mov_b32 s{S_OUT+2}, 0")
    e(f"s_mov_b32 s{S_CAP}, 0")
    wait_flag("L_w0", LDS_FLAG+12, 6, V_SB, F, 8)
    e(f"ds_read_b32 v{V_TAG}, v{V_SB} offset:{LDS_FLAG+8-SB}")
    for i in range(24): e(f"v_mov_b32 v{PA+i}, 0")
    e("s_waitcnt lgkmcnt(0)")
    e(f"v_mov_b32 v{G+3}, v{V_TAG}")
    e("s_branch L_tail")
    e.label("L_barB")
    e("s_mov_b64 exec, -1")
    e("s_waitcnt vmcnt(0)")
    for i in range(24): e(f"v_mov_b32 v{PA+i}, 0")
    for i in range(4): e(f"v_mov_b32 v{G0+i}, v{G+i}")
    e(f"v_add_u32 v{V_BRD}, {8*OB_ROW}, v{V_BRD}")
    e(f"s_mov_b32 s{S_PW}, {4*6*4096}")
    e(f"s_mov_b32 s{S_WS+2}, {GRP}")
    e(f"s_mov_b32 s{S_OUT+2}, {128*1152}")
    e(f"s_mov_b32 s{S_CAP}, 0x40000")
    if tprio: e(f"s_setprio {tprio}")
    stamp(6)
    e("s_barrier")
    stamp(7)
    e.label("L_tail")
    for j in range(4):
        e(f"ds_read_b128 {vr(AF+4*j,4)}, v{V_BRD} offset:{j*128}")
    if not nostore and not g0late: e(f"buffer_store_dwordx4 {vr(G0,4)}, v{V_STO}, s[{S_WS}:{S_WS+3}], 0 offen {spol}")
    def adds(i):
        e(f"v_pk_add_f32 {vr(PA+4*i,2)}, {vr(PA+4*i,2)}, {vr(PA+4*i+2,2)}")
        e(f"v_add_f32 v{PA+4*i}, v{PA+4*i}, v{PA+4*i+1}")
        if i & 1: e(f"v_cvt_pk_bf16_f32 v{G+(i>>1)}, v{PA+4*i-4}, v{PA+4*i}")
    for i in range(6):
        for j in range(4):
            if i == 0: e(f"s_waitcnt lgkmcnt({3-j})")
            e(f"v_smfmac_f32_16x16x64_bf16 {vr(PA+4*i,4)}, {vr(AF+4*j,4)}, {vr(WF+(j*6+i)*8,8)}, v{V_IDX}")
        if i >= 2: adds(i - 2)
    e("s_nop 0")
    adds(4)
    e("s_nop 1")
    adds(5)
    if not nostore: e(f"buffer_store_dwordx4 {vr(G,4)}, v{V_STO}, s[{S_WS}:{S_WS+3}], s{S_PW} offen {spol}")
    if not nostore and g0late: e(f"buffer_store_dwordx4 {vr(G0,4)}, v{V_STO}, s[{S_WS}:{S_WS+3}], 0 offen {spol}")
    e("s_setprio 0")
    stamp(8)
    e(f"s_mov_b32 s{S_T1}, s{S_CAP}")
    if nopoll: e("s_branch L_pdone")
    e.label("L_poll")
    for x_ in range(2):
        e(f"buffer_load_dwordx4 {vr(F+4*x_,4)}, v{V_PL}, s[{S_WS}:{S_WS+3}], 0 offen offset:{2048*x_} {ppol}")
    e("s_waitcnt vmcnt(0)")
    e(f"v_cmp_ne_u32 vcc, v{F+3}, v{V_TAG}")
    e(f"v_cmp_ne_u32 s[{S_MASK}:{S_MASK+1}], v{F+7}, v{V_TAG}")
    e(f"s_or_b64 exec, vcc, s[{S_MASK}:{S_MASK+1}]")
    e("s_cbranch_scc0 L_pdone")
    e(f"s_sub_u32 s{S_T1}, s{S_T1}, 1")
    e("s_cbranch_scc1 L_pdone")
    e(f"s_bcnt1_i32_b64 s{S_T0}, exec")
    e(f"s_cmp_lt_u32 s{S_T0}, {slp[2]}")
    e("s_cbranch_scc1 L_poll")
    e(f"s_sleep {slp[3]}")
    e(f"s_cmp_lt_u32 s{S_T0}, {slp[0]}")
    e("s_cbranch_scc1 L_poll")
    e(f"s_sleep {slp[1]}")
    e("s_branch L_poll")
    e.label("L_pdone")
    e("s_mov_b64 exec, -1")
    stamp(9)
    e(f"v_mov_b32 v{F+3}, 0")
    e(f"v_mov_b32 v{F+7}, 0")
    e("s_nop 0")
    e(f"v_mfma_f32_16x16x32_bf16 {vr(DD,4)}, {vr(SEL,4)}, {vr(F,4)}, 0")
    e(f"v_mfma_f32_16x16x32_bf16 {vr(DD,4)}, {vr(SEL,4)}, {vr(F+4,4)}, {vr(DD,4)}")
    e("s_mov_b32 vcc_lo, 0x00ff00ff")
    e("s_mov_b32 vcc_hi, 0x000000ff")
    e("s_nop 5")
    for k in range(2):
        e(f"v_add_f32_dpp v{DD+k}, v{DD+k}, v{DD+k} row_ror:8 row_mask:0xf bank_mask:0xf")
    e("s_mov_b64 exec, vcc")
    e(f"v_cvt_pk_bf16_f32 v{DD+2}, v{DD}, v{DD+1}")
    e(f"buffer_store_dword v{DD+2}, v{V_OO}, s[{S_OUT}:{S_OUT+3}], 0 offen {opol}")
    e(f"s_cmp_eq_u32 s{S_PW}, 0")
    e("s_cbranch_scc1 L_barB")
    if stamps:
        e("s_mov_b64 exec, -1")
        stamp(10)
        e("s_waitcnt vmcnt(0)")
        stamp(11)
        e.label("L_dump")
        e(f"s_add_u32 s{S_WS}, s46, 0x800000")
        e(f"s_addc_u32 s{S_WS+1}, s47, 0")
        e(f"s_mov_b32 s{S_WS+2}, 0x100000")
        e(f"s_mov_b32 s{S_WS+3}, 0x00020000")
        e(f"s_lshl_b32 s{S_T0}, s2, 3")
        e(f"s_add_u32 s{S_T0}, s{S_T0}, s{S_WAVE}")
        e(f"s_lshl_b32 s{S_T0}, s{S_T0}, 6")
        e("v_mov_b32 v1, 0")
        for i in range(NST):
            e(f"v_mov_b32 v2, s{64+2*i}")
            e(f"buffer_store_dword v2, v1, s[{S_WS}:{S_WS+3}], s{S_T0} offen offset:{4*i}")
        e(f"s_getreg_b32 s{S_T1}, hwreg(HW_REG_XCC_ID)")
        e(f"v_mov_b32 v2, s{S_T1}")
        e(f"buffer_store_dword v2, v1, s[{S_WS}:{S_WS+3}], s{S_T0} offen offset:56")
        e(f"buffer_store_dword v1, v1, s[{S_WS}:{S_WS+3}], s{S_T0} offen offset:52")
    e.label("L_end")
    e("s_endpgm")

    e.raw('.section .rodata,"a"')
    e.raw(f""".p2align 6
.amdhsa_kernel {KN}
  .amdhsa_next_free_vgpr 256
  .amdhsa_next_free_sgpr 96
  .amdhsa_accum_offset 256
  .amdhsa_group_segment_fixed_size 0
  .amdhsa_kernarg_size 64
  .amdhsa_user_sgpr_count 2
  .amdhsa_user_sgpr_kernarg_segment_ptr 1
  .amdhsa_system_sgpr_workgroup_id_x 1
.end_amdhsa_kernel""")
    open(name, "w").write(e.text())
    return name

if __name__ == "__main__":
    S = dict(stamps=True)
    L = [gen("k6.s"), gen("k6_st.s", **S), gen("k6_q0.s", nq=3, qdelay=2, npre=(0,), **S), gen("k6_q1.s", nq=3, qdelay=2, npre=(1,), **S), gen("k6_q01.s", nq=3, qdelay=2, npre=(0,1), **S),
         gen("k6_q0d3.s", nq=3, qdelay=3, npre=(0,), **S), gen("k6_q0n0.s", nq=3, qdelay=2, npre=(0,), nwarm=2, **S),
         gen("k6_w112.s", wpat=(0,1,3,4,5,7), **S), gen("k6_w122.s", wpat=(0,2,4,5,7), **S)]
    print(" ".join("work/"+x for x in L[1:]))
    import json; print(json.dumps(["work/bench.py", "cdna_kernels/cdna_launch.py", "cdna_kernels/cdna_unwritten_srd_check.py"] + ["work/"+x for x in L[1:]]))
```

```python
import sys, math, struct
from gen2 import HEADER, E, vr

KN = "standalone__gqa_block_cached__sampling_kernel"
V_KOFF, V_VOFF, V_QRD, V_SA, V_MLW, V_OBW, V_MLR = 1, 2, 3, 4, 5, 6, 7
V_MC, V_L, V_AL, V_T0, V_T1, V_T2, V_N, V_G = 8, 9, 10, 11, 12, 13, 14, 15
QF, XT, V_FL, V_Z, V_LR, V_H, V_LN, OA = 16, 24, 25, 26, 28, 29, 30, 32
QF1, SH = 32, 40
BUF = [64, 96, 128, 160]
TMP, ST, PT, PP, SS = 192, 224, 240, 248, 252
XF, XB, QA, WB = 16, 36, 44, 76
WF, BF, PA = 8, 200, 232
S_K, S_V, S_WQ, S_X, S_WO, S_WS = 8, 12, 16, 20, 24, 28
S_OUT, S_DBG = 8, 12
S_WAVE, S_HKV, S_BP = 3, 48, 49
S_LO, S_HI, S_C = 50, 51, 52
S_IT, S_OFF, S_T0, S_T1, S_T2, S_T3 = 53, 54, 55, 56, 57, 58
S_NPRE = 59
S_MASK = 60
S_U, S_CAP = 62, 62
S_THR, S_Q, S_PH = 7, 6, 5
OB_ROW = 544; QP_ROW = 1040
LDS_ML = 131072
LDS_FLAG = LDS_ML + 512
LDS_OB = LDS_FLAG + 32
LDS_QP = LDS_OB + 16 * OB_ROW
LDS_H = LDS_QP + 16 * QP_ROW
LDS_LINE = LDS_H + 248
LDS_TOTAL = LDS_H + 256
NST = 12
GD = 48 * 4096
GRP = GD + 4096
NEG = "0xf149f2ca"
def f32(x): return "0x%08x" % struct.unpack("<I", struct.pack("<f", x))[0]

def gen(name, pol="nt", wpol="", wopol="", stamps=False, npre=(0,4,6,0,4,6,0,6),
        wog=2, prio=(3, 2), qdepth=3, nwb=4, wostart=2, bar1=8, nwarm=1,
        slp=(40, 16, 17, 4), qprio=3, kprio0=1, tprio=2, spol='sc1', ppol='sc1', opol='', hb=2, nq=9,
        pace=None, cks=None, g0early=False, pdelay=0, pp=None, warm=None, hint=None, lite=False, hwarm=False, hd=0, meter=None, sched=None, cmode=0, wob=None, pbo=False):
    e = E()
    QT = WB + 32 * nwb
    SB = LDS_ML
    def stamp(i):
        if not stamps: return
        e(f"s_memrealtime s[{64+2*i}:{65+2*i}]")
        e("s_waitcnt lgkmcnt(0)")
    def table(vals):
        t = 0
        for i in range(8): t |= vals[i % len(vals)] << (4 * i)
        return t
    e.raw(HEADER.rstrip("\n"))
    e.raw(f"; @launch grid=(256,1,1) block=(512,1,1) lds={LDS_TOTAL}")
    if stamps: e.raw(f"; NSTAMPS={NST}")
    e.raw('.amdgcn_target "amdgcn-amd-amdhsa--gfx950"')
    e.raw(".text")
    e.raw(f".globl {KN}\n.p2align 8\n.type {KN},@function\n{KN}:")
    e("s_cmp_lt_u32 s2, 256")
    e("s_cbranch_scc1 L_main")
    e.label("L_end0")
    e("s_endpgm")
    e.label("L_main")
    stamp(0)
    e("s_load_dwordx8 s[32:39], s[0:1], 0")
    e("s_load_dwordx8 s[40:47], s[0:1], 32")
    e("v_lshrrev_b32 v1, 6, v0")
    e("v_and_b32 v0, 63, v0")
    e(f"v_readfirstlane_b32 s{S_WAVE}, v1")
    e(f"v_and_b32 v{V_N}, 15, v0")
    e(f"v_lshrrev_b32 v{V_G}, 4, v0")
    if hb == 0:
        e(f"s_and_b32 s{S_T0}, s2, 7")
        e(f"s_lshl_b32 s{S_HKV}, s{S_T0}, 1")
        e(f"s_bfe_u32 s{S_T0}, s2, 0x10003")
        e(f"s_add_u32 s{S_HKV}, s{S_HKV}, s{S_T0}")
    elif hb == 2:
        e(f"s_lshr_b32 s{S_T0}, s2, 1")
        e(f"s_xor_b32 s{S_T0}, s{S_T0}, s2")
        e(f"s_and_b32 s{S_T0}, s{S_T0}, 4")
        e(f"s_mul_i32 s{S_T0}, s{S_T0}, 3")
        e(f"s_xor_b32 s{S_HKV}, s{S_T0}, s2")
        e(f"s_and_b32 s{S_HKV}, s{S_HKV}, 15")
    else:
        e(f"s_and_b32 s{S_HKV}, s2, 15")
    e(f"s_lshr_b32 s{S_BP}, s2, 4")
    if stamps:
        for i in range(1, NST): e(f"s_mov_b32 s{64+2*i}, s64")
    e(f"s_cmp_lt_u32 s{S_WAVE}, 4")
    e("s_cbranch_scc1 L_kv")

    def consts():
        e(f"s_mov_b32 s{S_LO}, 0x05040100")
        e(f"s_mov_b32 s{S_HI}, 0x07060302")
        e(f"s_mov_b32 s{S_MASK}, 0xff00ff00")
        e(f"s_mov_b32 s{S_MASK+1}, 0xff00ff00")
    def unit_mma(buf, bfrag, acc, first, T0):
        def perms(i):
            w_, h = i >> 1, i & 1
            sel = S_HI if h else S_LO
            T = T0 + (i & 1) * 4
            for u_ in range(4):
                e(f"v_perm_b32 v{T+u_}, v{buf+(2*u_+1)*4+w_}, v{buf+(2*u_)*4+w_}, s{sel}")
        perms(0)
        for i in range(8):
            if i + 1 < 8: perms(i + 1)
            else: e("s_nop 1")
            T = T0 + (i & 1) * 4
            cc = "0" if first else vr(acc+4*i, 4)
            e(f"v_mfma_f32_16x16x32_bf16 {vr(acc+4*i,4)}, {vr(T,4)}, {vr(bfrag,4)}, {cc}")
    def wait_flag(lab, off, val, vz, vt, slp_=1, hook=None):
        e.label(lab)
        if hook: hook()
        e(f"ds_read_b32 v{vt}, v{vz} offset:{off-SB}")
        e("s_waitcnt lgkmcnt(0)")
        e(f"v_readfirstlane_b32 s{S_T0}, v{vt}")
        e(f"s_cmp_ge_u32 s{S_T0}, {val}")
        e(f"s_cbranch_scc1 {lab}_d")
        e(f"s_sleep {slp_}")
        e(f"s_branch {lab}")
        e.label(lab + "_d")

    V_WOFF, XO, V_QW = 1, 2, 7
    if qprio: e(f"s_setprio {qprio}")
    e(f"v_lshlrev_b32 v{V_T0}, 16, v{V_G}")
    e(f"v_lshl_add_u32 v{V_WOFF}, v{V_N}, 4, v{V_T0}")
    e(f"v_and_b32 v{V_T1}, 7, v{V_N}")
    e(f"v_mul_u32_u24 v{V_T0}, 1152, v{V_T1}")
    e(f"v_lshl_add_u32 v{V_T0}, v{V_G}, 4, v{V_T0}")
    e(f"s_mul_i32 s{S_U}, s{S_BP}, 9")
    e(f"s_lshr_b32 s{S_U}, s{S_U}, 4")
    e(f"v_lshrrev_b32 v{V_T2}, 3, v{V_N}")
    e(f"v_add_u32 v{V_AL}, s{S_U}, v{V_T2}")
    e(f"v_lshlrev_b32 v{V_AL}, 6, v{V_AL}")
    e(f"s_mov_b32 s{S_WQ+3}, 0x00020000")
    e(f"s_mov_b32 s{S_X+3}, 0x00020000")
    e(f"s_and_b32 s{S_T1}, s{S_WAVE}, 1")
    e(f"s_bfe_u32 s{S_T3}, s{S_WAVE}, 0x10001")
    e(f"s_mul_i32 s{S_T2}, s{S_T1}, {288*8192}")
    e(f"s_lshl_b32 s{S_T0}, s{S_HKV}, 9")
    e(f"s_add_u32 s{S_T2}, s{S_T2}, s{S_T0}")
    e(f"s_lshl_b32 s{S_T0}, s{S_T3}, 8")
    e(f"s_add_u32 s{S_T2}, s{S_T2}, s{S_T0}")
    e(f"s_sub_u32 s{S_WQ+2}, {576*8192}, s{S_T2}")
    e(f"s_mul_i32 s{S_IT}, s{S_T1}, 576")
    e(f"s_mul_i32 s{S_T0}, s{S_BP}, {8*1152}")
    e(f"s_add_u32 s{S_IT}, s{S_IT}, s{S_T0}")
    e(f"s_sub_u32 s{S_X+2}, {128*1152}, s{S_IT}")
    for i in range(5):
        e(f"v_add_u32 v{V_MC}, {i*128}, v{V_AL}")
        e(f"v_add_u32 v{V_L}, {i*128-576}, v{V_AL}")
        e(f"v_min_u32 v{V_MC}, v{V_MC}, v{V_L}")
        e(f"v_add_u32 v{XO+i}, v{V_MC}, v{V_T0}")
    e("s_waitcnt lgkmcnt(0)")
    e(f"s_add_u32 s{S_WQ}, s38, s{S_T2}")
    e(f"s_addc_u32 s{S_WQ+1}, s39, 0")
    e(f"s_add_u32 s{S_X}, s32, s{S_IT}")
    e(f"s_addc_u32 s{S_X+1}, s33, 0")
    stamp(1)
    for i in range(5):
        e(f"buffer_load_dwordx4 {vr(XF+4*i,4)}, v{XO+i}, s[{S_X}:{S_X+3}], 0 offen")
    def q_setup():
        consts()
        e(f"v_mul_u32_u24 v{V_T0}, {QP_ROW}, v{V_T1}")
        e(f"v_lshl_add_u32 v{V_T2}, v{V_G}, 1, v{V_T2}")
        e(f"v_lshl_add_u32 v{V_T0}, v{V_T2}, 6, v{V_T0}")
        e(f"s_mul_i32 s{S_T0}, s{S_T1}, {8*QP_ROW}")
        e(f"s_lshl_b32 s{S_T3}, s{S_T3}, 9")
        e(f"s_add_u32 s{S_T0}, s{S_T0}, s{S_T3}")
        e(f"s_add_u32 s{S_T0}, s{S_T0}, {LDS_QP}")
        e(f"v_add_u32 v{V_QW}, s{S_T0}, v{V_T0}")
        e(f"v_mov_b32 v{V_MC}, {SB}")
        e(f"v_mov_b32 v{V_L}, 1")
    def q_comp(s_):
        xb = XB + 4 * (s_ & 1); xf = XF + 4 * (s_ >> 1)
        for r in range(4):
            e(f"v_mov_b32_dpp v{xb+r}, v{xf+r} quad_perm:[0,1,2,3] row_mask:0xf bank_mask:{'0xc' if s_ & 1 else '0x3'}")
            e(f"v_mov_b32_dpp v{xb+r}, v{xf+r} row_ror:8 row_mask:0xf bank_mask:{'0x3' if s_ & 1 else '0xc'}")
        unit_mma(WB + 32 * (s_ % nwb), xb, QA, s_ == 0, QT)
    if meter:
        qg, qlw = meter['qg'], meter['qlw']
        done = 0
        for i in range(0, 72, qg):
            if i > 0: e(f"s_waitcnt vmcnt({qlw})")
            landed = max(0, i - qlw) if i > 0 else 0
            for t in range(i, i + qg):
                s_, tt = t >> 3, t & 7
                assert s_ - done < nwb
                if tt == 0: e(f"s_lshl_b32 s{S_OFF}, s{S_U}, 18")
                e(f"buffer_load_dwordx4 {vr(WB+32*(s_%nwb)+4*tt,4)}, v{V_WOFF}, s[{S_WQ}:{S_WQ+3}], s{S_OFF} offen {wpol}")
                if tt < 7: e(f"s_add_u32 s{S_OFF}, s{S_OFF}, 8192")
                elif s_ < 8:
                    e(f"s_add_u32 s{S_U}, s{S_U}, 1")
                    e(f"s_cmp_eq_u32 s{S_U}, 9")
                    e(f"s_cselect_b32 s{S_U}, 0, s{S_U}")
            if i == 0:
                q_setup()
                e("s_barrier")
            if landed >= 8 * (done + 1):
                q_comp(done); done += 1
        stamp(2)
        while done < 9:
            e(f"s_waitcnt vmcnt({72 - 8*(done+1)})")
            q_comp(done); done += 1
    else:
        def q_issue(s_):
            if s_ == nwarm: e("s_barrier")
            buf = WB + 32 * (s_ % nwb)
            e(f"s_lshl_b32 s{S_OFF}, s{S_U}, 18")
            for t in range(8):
                e(f"buffer_load_dwordx4 {vr(buf+4*t,4)}, v{V_WOFF}, s[{S_WQ}:{S_WQ+3}], s{S_OFF} offen {wpol}")
                if t < 7: e(f"s_add_u32 s{S_OFF}, s{S_OFF}, 8192")
            if s_ < nq - 1:
                e(f"s_add_u32 s{S_U}, s{S_U}, 1")
                e(f"s_cmp_eq_u32 s{S_U}, 9")
                e(f"s_cselect_b32 s{S_U}, 0, s{S_U}")
            else:
                stamp(2)
            if s_ == min(bar1, nq - 1): e("s_barrier")
        assert nwarm < qdepth
        for s_ in range(qdepth): q_issue(s_)
        consts()
        e(f"v_mul_u32_u24 v{V_T0}, {QP_ROW}, v{V_T1}")
        e(f"v_lshl_add_u32 v{V_T2}, v{V_G}, 1, v{V_T2}")
        e(f"v_lshl_add_u32 v{V_T0}, v{V_T2}, 6, v{V_T0}")
        e(f"s_mul_i32 s{S_T0}, s{S_T1}, {8*QP_ROW}")
        e(f"s_lshl_b32 s{S_T3}, s{S_T3}, 9")
        e(f"s_add_u32 s{S_T0}, s{S_T0}, s{S_T3}")
        e(f"s_add_u32 s{S_T0}, s{S_T0}, {LDS_QP}")
        e(f"v_add_u32 v{V_QW}, s{S_T0}, v{V_T0}")
        e(f"v_mov_b32 v{V_MC}, {SB}")
        e(f"v_mov_b32 v{V_L}, 1")
        assert qdepth < nwb
        for s_ in range(nq):
            nxt = s_ + qdepth
            inflight = min(nq, nxt) - s_ - 1
            e(f"s_waitcnt vmcnt({8*inflight})")
            if nxt < nq: q_issue(nxt)
            xb = XB + 4 * (s_ & 1); xf = XF + 4 * (s_ >> 1)
            for r in range(4):
                e(f"v_mov_b32_dpp v{xb+r}, v{xf+r} quad_perm:[0,1,2,3] row_mask:0xf bank_mask:{'0xc' if s_ & 1 else '0x3'}")
                e(f"v_mov_b32_dpp v{xb+r}, v{xf+r} row_ror:8 row_mask:0xf bank_mask:{'0x3' if s_ & 1 else '0xc'}")
            unit_mma(WB + 32 * (s_ % nwb), xb, QA, s_ == 0, QT)
    e("s_nop 0")
    QCC = WB + 32 * (9 % nwb)
    for i in range(8):
        for ee in range(2):
            e(f"v_cndmask_b32 v{QCC+ee*8+i}, v{QA+4*i+ee}, v{QA+4*i+2+ee}, s[{S_MASK}:{S_MASK+1}]")
    for x_ in range(4):
        e(f"ds_write_b128 v{V_QW}, {vr(QCC+4*x_,4)} offset:{16*x_}")
    e("s_mov_b64 exec, 1")
    e("s_waitcnt lgkmcnt(0)")
    e(f"ds_add_u32 v{V_MC}, v{V_L} offset:{LDS_FLAG-SB}")
    e("s_mov_b64 exec, -1")
    stamp(3)
    e("s_branch L_wo")

    e.label("L_kv")
    if kprio0: e(f"s_setprio {kprio0}")
    e(f"v_lshrrev_b32 v{V_T0}, 1, v{V_N}")
    e(f"v_lshlrev_b32 v{V_T0}, 10, v{V_T0}")
    e(f"v_and_b32 v{V_T1}, 1, v{V_N}")
    e(f"v_lshlrev_b32 v{V_T1}, 4, v{V_T1}")
    e(f"v_lshlrev_b32 v{V_T2}, 5, v{V_G}")
    e(f"v_add3_u32 v{V_KOFF}, v{V_T0}, v{V_T1}, v{V_T2}")
    e(f"v_mov_b32 v{V_Z}, 0")
    e(f"v_mov_b32 v{V_Z+1}, 0")
    e(f"v_mov_b32 v{V_T2}, {SB}")
    e(f"v_lshl_add_u32 v{V_T1}, v0, 2, v{V_T2}")
    for i in range(3): e(f"ds_write_b64 v{V_T2}, {vr(V_Z,2)} offset:{LDS_FLAG+8*i-SB}")
    if pace: e(f"ds_write_b32 v{V_T1}, v{V_Z} offset:{LDS_H-SB}")
    e(f"s_lshl_b32 s{S_T0}, s{S_BP}, 5")
    e(f"s_add_u32 s{S_T0}, s{S_T0}, s{S_HKV}")
    e(f"s_lshl_b32 s{S_T0}, s{S_T0}, 19")
    if len(npre) == 4: e(f"s_and_b32 s{S_T1}, s{S_BP}, 12")
    elif cmode == 0: e(f"s_lshl_b32 s{S_T1}, s{S_BP}, 2")
    else:
        e(f"s_bfe_u32 s{S_T1}, s2, {0x10000 + cmode - 1}")
        e(f"s_lshl_b32 s{S_T1}, s{S_T1}, 4")
        e(f"s_and_b32 s{S_NPRE}, s{S_BP}, 12")
        e(f"s_or_b32 s{S_T1}, s{S_T1}, s{S_NPRE}")
    e(f"s_lshr_b32 s{S_NPRE}, 0x{table(npre):08x}, s{S_T1}")
    e(f"s_and_b32 s{S_NPRE}, s{S_NPRE}, 15")
    e(f"s_mov_b32 s{S_K+2}, 0x880000")
    e(f"s_mov_b32 s{S_K+3}, 0x00020000")
    e(f"s_lshl_b32 s{S_OFF}, s{S_WAVE}, 13")
    e(f"s_lshl_b32 s{S_T2}, s{S_WAVE}, 16")
    e(f"s_lshl_b32 s{S_T3}, s{S_WAVE}, 14")
    e(f"s_or_b32 s{S_T2}, s{S_T2}, s{S_T3}")
    e(f"s_and_b32 s{S_T2}, s{S_T2}, 0x18000")
    e(f"s_add_u32 m0, s{S_T2}, 8192")
    e("s_waitcnt lgkmcnt(0)")
    e(f"s_add_u32 s{S_K}, s34, s{S_T0}")
    e(f"s_addc_u32 s{S_K+1}, s35, 0")
    stamp(1)
    def ld_k(buf):
        for u in range(4):
            for j in range(2):
                e(f"buffer_load_dwordx4 {vr(buf+(u*2+j)*4,4)}, v{V_KOFF}, s[{S_K}:{S_K+3}], s{S_OFF} offen offset:{u*256+j*128} {pol}")
    def ld_v(buf):
        for t in range(8):
            e(f"buffer_load_dwordx4 {vr(buf+t*4,4)}, v{V_VOFF}, s[{S_V}:{S_V+3}], s{S_OFF} offen offset:{t*256} {pol}")
    def ld_lds(lastw):
        for i in range(8):
            e(f"buffer_load_dwordx4 v{V_KOFF}, s[{S_K}:{S_K+3}], s{S_OFF} offen offset:{i*128} {pol} lds")
            e(f"s_add_u32 m0, m0, {896 if i < 7 else 8192-7*896}")
            if i < 7: e("s_nop 0")
        if lastw: e("s_waitcnt vmcnt(55)")
    def gate(g):
        e(f"s_cmp_lg_u32 s{S_NPRE}, {g}")
        e(f"s_cbranch_scc1 L_g{g}")
        e("s_barrier")
        e("s_barrier")
        e.label(f"L_g{g}")
    def k_setup(sfx=""):
        e(f"s_add_u32 s{S_V}, s36, s{S_T0}")
        e(f"s_addc_u32 s{S_V+1}, s37, 0")
        e(f"s_mov_b32 s{S_V+2}, 0x880000")
        e(f"s_mov_b32 s{S_V+3}, 0x00020000")
        e(f"s_setprio {prio[1]}")
        if prio[0] != prio[1]:
            e(f"s_cmp_ge_u32 s{S_WAVE}, 2")
            e(f"s_cbranch_scc1 L_pr{sfx}")
            e(f"s_setprio {prio[0]}")
            e.label(f"L_pr{sfx}")
        consts()
        e(f"s_mov_b32 s{S_THR}, 0")
        if pace:
            e(f"s_mov_b32 s{S_Q}, {-pace['b'] * 2}")
            e(f"s_mov_b32 s27, 0")
        e(f"s_mov_b32 s{S_C}, {f32(math.log2(math.e) / math.sqrt(128.0))}")
        A0, A1, A2, A3 = TMP, TMP+1, TMP+2, TMP+3
        e(f"v_lshlrev_b32 v{A0}, 11, v{V_G}")
        e(f"v_lshl_add_u32 v{V_VOFF}, v{V_N}, 4, v{A0}")
        e(f"v_lshrrev_b32 v{A3}, 3, v0")
        e(f"v_and_b32 v{A1}, 3, v{V_N}")
        e(f"v_mul_u32_u24 v{A0}, {QP_ROW}, v{A1}")
        e(f"v_bfe_u32 v{A2}, v{V_N}, 2, 1")
        e(f"v_lshl_add_u32 v{A0}, v{A2}, 9, v{A0}")
        e(f"v_lshl_add_u32 v{A0}, v{A3}, 5, v{A0}")
        e(f"v_add_u32 v{V_QRD}, {LDS_QP}, v{A0}")
        e(f"v_mul_u32_u24 v{A0}, {OB_ROW}, v{A1}")
        e(f"v_lshl_add_u32 v{A0}, v{A2}, 8, v{A0}")
        e(f"v_lshl_add_u32 v{A0}, v{A3}, 5, v{A0}")
        e(f"s_mul_i32 s{S_T0}, s{S_WAVE}, {4*OB_ROW}")
        e(f"s_add_u32 s{S_T3}, s{S_T0}, {LDS_OB}")
        e(f"v_add_u32 v{V_OBW}, s{S_T3}, v{A0}")
        e(f"v_lshlrev_b32 v{A0}, 4, v0")
        e(f"v_add_u32 v{V_LR}, s{S_T2}, v{A0}")
        e(f"v_add_u32 v{V_SA}, 8192, v{V_LR}")
        e(f"v_and_b32 v{A2}, 7, v{V_N}")
        e(f"v_lshl_add_u32 v{V_MLR}, v{A2}, 5, v{V_T2}")
        e(f"s_lshl_b32 s{S_T0}, s{S_WAVE}, 3")
        e(f"v_add_u32 v{V_MLW}, s{S_T0}, v{V_MLR}")
        e(f"v_mov_b32 v{V_FL}, {SB}")
        if pace:
            e(f"s_lshl_b32 s{S_T0}, s{S_WAVE}, 2")
            e(f"v_add_u32 v{V_H}, s{S_T0}, v{V_T2}")
        e(f"v_mov_b32 v{V_MC}, {NEG}")
        e(f"v_mov_b32 v{V_L}, 0")
        e(f"v_mov_b32 v{XT}, {NEG}")
    def qload(dst, b):
        for j in range(2):
            for ee in range(2):
                for h in range(2):
                    e(f"ds_read_b128 {vr(TMP+j*16+ee*8+h*4,4)}, v{V_QRD} offset:{b*4*QP_ROW+ee*8*QP_ROW+j*256+h*16}")
        for j in range(2):
            e(f"s_waitcnt lgkmcnt({4-4*j})")
            for i in range(4):
                e(f"v_pk_add_f32 {vr(TMP+j*16+2*i,2)}, {vr(TMP+j*16+2*i,2)}, {vr(TMP+j*16+8+2*i,2)}")
            for i in range(4):
                e(f"v_cvt_pk_bf16_f32 v{dst+j*4+i}, v{TMP+j*16+2*i}, v{TMP+j*16+2*i+1}")

    def adv():
        e(f"s_add_u32 s{S_OFF}, s{S_OFF}, 0x4000")
        e(f"s_bitcmp1_b32 s{S_OFF}, 19")
        e(f"s_cselect_b32 s{S_T0}, 0x880000, 0")
        e(f"s_xor_b32 s{S_OFF}, s{S_OFF}, s{S_T0}")
    def xreduce(r, op):
        e("s_nop 1")
        e(f"{op}_dpp v{r}, v{r}, v{r} row_ror:8 row_mask:0xf bank_mask:0xf")
        for sw in ("v_permlane32_swap_b32", "v_permlane16_swap_b32"):
            e(f"v_mov_b32 v{V_T1}, v{r}")
            e("s_nop 1")
            e(f"{sw} v{r}, v{V_T1}")
            e(f"{op} v{r}, v{r}, v{V_T1}")
    def merge(acc, dst):
        for i in range(8):
            for ee in range(2):
                e(f"v_add_f32_dpp v{dst+ee*8+i}, v{acc+4*i+ee}, v{acc+4*i+ee} row_ror:8 row_mask:0xf bank_mask:0x3")
                e(f"v_add_f32_dpp v{dst+ee*8+i}, v{acc+4*i+2+ee}, v{acc+4*i+2+ee} row_ror:8 row_mask:0xf bank_mask:0xc")
    def thp(lab):
        e(f"s_cmp_eq_u32 s{S_THR}, 0")
        e(f"s_cbranch_scc1 {lab}")
        e(f"s_sub_u32 s{S_THR}, s{S_THR}, 1")
        e("s_waitcnt vmcnt(0)")
        e.label(lab)
    def probe():
        e("s_memrealtime s[20:21]")
        e(f"ds_read_b64 {vr(V_LN,2)}, v{V_T2} offset:{LDS_LINE-SB}")
    def decide(rec):
        e("s_waitcnt lgkmcnt(0)")
        e(f"v_readfirstlane_b32 s{S_T0}, v{V_LN}")
        e(f"v_readfirstlane_b32 s{S_T1}, v{V_LN+1}")
        if rec:
            e(f"v_or_b32_e64 v{V_LN}, 1, s20")
            e("s_mov_b64 exec, 1")
            e(f"ds_write_b32 v{V_H}, v{V_LN} offset:{LDS_H-SB}")
            e("s_mov_b64 exec, -1")
            e(f"v_add_u32 v{V_H}, 8, v{V_H}")
        e(f"s_mul_i32 s{S_T2}, s{S_T1}, s{S_Q}")
        e(f"s_ashr_i32 s{S_T2}, s{S_T2}, 5")
        e(f"s_add_u32 s{S_T0}, s{S_T0}, s{S_T2}")
        e(f"s_sub_u32 s{S_T0}, s{S_T0}, s20")
        e(f"s_ashr_i32 s{S_T0}, s{S_T0}, {pace['sh']}")
        e(f"s_max_i32 s{S_T0}, s{S_T0}, 0")
        e(f"s_min_i32 s{S_T0}, s{S_T0}, {pace['nmax']}")
        e(f"s_cmp_lg_u32 s{S_T1}, 0")
        e(f"s_cselect_b32 s{S_THR}, s{S_T0}, 0")
        e(f"s_add_u32 s{S_Q}, s{S_Q}, 1")
        if stamps: e(f"s_add_u32 s27, s27, s{S_THR}")
    def ckpts(base, first=False):
        if not cks: return
        for i_, ck in enumerate(cks):
            if ck // 100 != base: continue
            if first:
                if ck == 12: stamp(2 + i_)
                continue
            e(f"s_cmp_lg_u32 s{S_IT}, {ck % 100}")
            e(f"s_cbranch_scc1 L_ck{i_}")
            stamp(2 + i_)
            e.label(f"L_ck{i_}")

    def kcomp(kb, S, lds=None, mid=None, wr=None):
        for j in range(2):
            if lds == 'pre' and j == 0: e("s_waitcnt lgkmcnt(0)")
            if lds == 'now': e(f"s_waitcnt lgkmcnt({4-4*j})")
            for u in range(4):
                cc = "0" if j == 0 else vr(ST+u*4, 4)
                e(f"v_mfma_f32_16x16x32_bf16 {vr(ST+u*4,4)}, {vr(kb+(u*2+j)*4,4)}, {vr(QF+j*4,4)}, {cc}")
        if mid: mid()
        else: e("s_nop 4")
        for u in range(4):
            a = ST + 4*u
            e(f"v_add_f32_dpp v{S+u}, v{a+1}, v{a} row_ror:8 row_mask:0xf bank_mask:0x3")
            e(f"v_add_f32_dpp v{S+u}, v{a+2}, v{a+3} row_ror:8 row_mask:0xf bank_mask:0xc")
        if wr is not None: e(f"ds_write_b128 v{wr[0]}, {vr(S,4)} offset:{wr[1]}")
        e(f"v_max3_f32 v{V_T0}, v{S}, v{S+1}, v{XT}")
        e(f"v_max3_f32 v{XT}, v{S+2}, v{S+3}, v{V_T0}")
        e(f"v_mul_f32 v{V_T0}, s{S_C}, v{XT}")
        e(f"v_sub_f32 v{V_AL}, v{V_MC}, v{V_T0}")
        e(f"v_exp_f32 v{V_AL}, v{V_AL}")
        e(f"v_mov_b32 v{V_MC}, v{V_T0}")
        for i in range(4): e(f"v_fma_f32 v{PT+i}, v{S+i}, s{S_C}, -v{V_T0}")
        for i in range(4): e(f"v_exp_f32 v{PT+i}, v{PT+i}")
        e(f"v_fma_f32 v{V_L}, v{V_L}, v{V_AL}, v{PT}")
        e(f"v_add_f32 v{V_T0}, v{PT+1}, v{PT+2}")
        e(f"v_add_f32 v{V_L}, v{V_L}, v{PT+3}")
        e(f"v_add_f32 v{V_L}, v{V_L}, v{V_T0}")

    XB_ = OA
    DEST0 = [0, 1, 2, 3, 'X', 'L', 'L', 'L']
    class St: pass
    def fresh():
        st = St(); st.iss = {'S': [], 'E': []}; st.known = {'S': 0, 'E': 0}; st.loc = {}; st.nl = 0; st.nr = 0; st.pre = None; st.n = 0
        return st
    def guard(st, ty):
        if 8 * (len(st.iss[ty]) - st.known[ty]) + 8 > 63: e("s_waitcnt vmcnt(55)")
    def issue(st, j, d):
        guard(st, 'S')
        if d == 'L':
            st.nl += 1; assert st.nl <= 3
            st.loc[j] = ('L', st.nl * 8192); ld_lds(False)
        else:
            st.loc[j] = ('R', XB_ if d == 'X' else BUF[d]); ld_k(st.loc[j][1])
        e(f"s_add_u32 s{S_OFF}, s{S_OFF}, 0x8000")
        for ty in 'SE': st.iss[ty].append(j)
    def refill(st, c, w=None):
        assert len(st.iss['E']) == 8
        st.n += 1
        e(f"s_cmp_ge_u32 s{S_WAVE}, 2")
        e(f"s_cbranch_scc1 L_ni{c}_{st.n}")
        if w is not None:
            e(f"s_waitcnt vmcnt({w})")
            st.known['S'] = max(st.known['S'], len(st.iss['S']) - w // 8)
        guard(st, 'S')
        ld_k(BUF[st.nr]); adv()
        e.label(f"L_ni{c}_{st.n}")
        st.iss['S'].append(f"R{st.nr}"); st.nr += 1
    def wait(st, c, j):
        n = {}
        for ty in 'SE':
            k = st.iss[ty].index(j) + 1
            n[ty] = None if st.known[ty] >= k else 8 * (len(st.iss[ty]) - k)
            st.known[ty] = max(st.known[ty], k)
        if n['E'] is not None and n['E'] != n['S']:
            st.n += 1
            e(f"s_cmp_lt_u32 s{S_WAVE}, 2")
            e(f"s_cbranch_scc1 L_pw{c}_{st.n}")
            e(f"s_waitcnt vmcnt({n['E']})")
            e.label(f"L_pw{c}_{st.n}")
        if n['S'] is not None: e(f"s_waitcnt vmcnt({min(n['S'], 63)})")
    def lread(off):
        for jj in range(2):
            for u in range(4):
                e(f"ds_read_b128 {vr(TMP+(u*2+jj)*4,4)}, v{V_LR} offset:{off+(u*2+jj)*1024}")
    def run(st, c, toks):
        for t in toks:
            if t[0] == 'I': issue(st, int(t[1]), t[2] if t[2] in 'XL' else int(t[2]))
            elif t[0] == 'R': refill(st, c, int(t[1:]) if len(t) > 1 else None)
            elif t[0] == 'W': wait(st, c, int(t[1]))
            elif t[0] == 'Q':
                stamp(2)
                wait_flag(f"L_wq{c}", LDS_FLAG, 4, V_T2, V_T0)
                stamp(3)
                qload(QF, 0)
            elif t[0] == 'P':
                j = int(t[1]); wait(st, c, j); lread(st.loc[j][1]); st.pre = j
            elif t[0] == 'C':
                j = int(t[1]); wait(st, c, j)
                mid = None
                if len(t) > 2:
                    def mid(): run(st, c, t[3:].split('+')); e("s_nop 2")
                if st.loc[j][0] == 'R': kcomp(st.loc[j][1], SS, mid=mid, wr=(V_LR, j*1024))
                else:
                    if st.pre != j: lread(st.loc[j][1])
                    kcomp(TMP, SS, lds='pre' if st.pre == j else 'now', mid=mid, wr=(V_LR, j*1024))
    SCH = {
        0: "I00 I11 Q W0 I22 C0 W1 I33 C1 W2 I40 C2 W3 I51 C3 W4 I62 C4 W5 I73 C5 W6 R C6 W7 R C7",
        2: "I22 I33 Q C0:I40 C1:I51 C2:I62 C3:I73 C4:R C5:R C6 C7",
        4: "I4X I5L Q C2:I62 C0 C3:I73 C1 C4 P5 R C5 W6 R C6 C7",
        5: "I5L I6L Q C3:I73 C0 C1 C2:R C4 P5 R C5 C6 C7",
        6: "I6L I7L Q P5 C0:R C1:R C5 C2 P6 C3 C6 R8 P7 C4 C7 R8",
        7: "I7L Q P5 C0:R C1:R C5 P6 C2 C6 R8 P7 C3 C7 R8 C4",
        8: "Q P5 C0:R C1:R C5 P6 C2:R C6 P7 C3:R C7 C4",
    }
    if sched: SCH.update(sched)
    classes = sorted(set(npre))
    st0 = fresh()
    import copy
    states = {}
    for j in range(classes[-1] + 1):
        if j in classes:
            states[j] = copy.deepcopy(st0)
            if j != classes[-1]:
                e(f"s_cmp_eq_u32 s{S_NPRE}, {j}")
                e(f"s_cbranch_scc1 L_path{j}")
        if j < classes[-1]: issue(st0, j, DEST0[j])
    for c in reversed(classes):
        st = states[c]
        e.label(f"L_path{c}")
        e("s_barrier")
        k_setup(str(c))
        e("s_barrier")
        run(st, c, SCH[c].split())
        assert st.nr in (2, 4) and len(st.iss['E']) == 8
        e(f"s_mov_b32 s{S_IT}, {12 + (0x100 if st.nr == 4 else 0)}")
        if c != classes[0]: e("s_branch L_pdn")
    e.label("L_pdn")
    e(f"s_cmp_ge_u32 s{S_WAVE}, 2")
    e("s_cbranch_scc1 L_kfin")
    wait_flag("L_wp", LDS_FLAG+4, 2, V_T2, V_T0)
    e(f"s_cmp_eq_u32 s{S_IT}, 12")
    e("s_cbranch_scc1 L_kloop")
    e(f"s_mov_b32 s{S_IT}, 12")
    ckpts(0, True)
    for p in range(2):
        e(f"s_waitcnt vmcnt({24-8*p})")
        if pace and p & 1: probe()
        kcomp(BUF[p], SS, wr=(V_SA, (p & 1)*32768))
        if pace and p & 1: decide(True)
    e("s_branch L_kp2")
    e.label("L_kb1")
    qload(QF, 1)
    e.label("L_kloop")
    ckpts(0)
    for p in range(4):
        if p == 2: e.label("L_kp2")
        e("s_waitcnt vmcnt(8)")
        if pace: thp(f"L_tk{p}")
        if pace and p & 1: probe()
        if p >= 2:
            e(f"s_cmp_eq_u32 s{S_IT}, 1")
            e(f"s_cbranch_scc1 L_kv{p}")
        ld_k(BUF[(p+2) & 3])
        if p >= 2: e.label(f"L_kr{p}")
        kcomp(BUF[p], SS, mid=lambda: (adv(), e("s_nop 0")), wr=(V_SA, (p & 1)*32768 + (p >> 1)*1024))
        if pace and p & 1: decide(p == 1)
    e(f"v_add_u32 v{V_SA}, 2048, v{V_SA}")
    e(f"s_sub_u32 s{S_IT}, s{S_IT}, 1")
    e(f"s_and_b32 s{S_T0}, s{S_IT}, 7")
    e("s_cbranch_scc1 L_kloop")
    e.label("L_kfin")
    e(f"v_mov_b32 v{V_T0}, v{V_MC}")
    xreduce(V_MC, "v_max_f32")
    e(f"v_sub_f32 v{V_T0}, v{V_T0}, v{V_MC}")
    e(f"v_exp_f32 v{V_T0}, v{V_T0}")
    e("s_nop 0")
    e(f"v_mul_f32 v{V_L}, v{V_L}, v{V_T0}")
    xreduce(V_L, "v_add_f32")
    e(f"ds_write_b64 v{V_MLW}, {vr(V_MC,2)} offset:{LDS_ML-SB}")
    e(f"v_mov_b32 v{V_T0}, 1")
    e(f"v_add_u32 v{V_MLW}, 256, v{V_MLW}")
    e(f"v_mov_b32 v{V_MC}, {NEG}")
    e(f"v_mov_b32 v{V_L}, 0")
    e(f"v_mov_b32 v{XT}, {NEG}")
    e(f"s_cmp_lt_u32 s{S_WAVE}, 2")
    e("s_cbranch_scc1 L_kf1")
    e(f"ds_write_b64 v{V_MLW}, {vr(V_MC,2)} offset:{LDS_ML-SB}")
    e.label("L_kf1")
    e("s_mov_b64 exec, 1")
    e("s_waitcnt lgkmcnt(0)")
    e(f"ds_add_u32 v{V_FL}, v{V_T0} offset:{LDS_FLAG+4-SB}")
    e("s_mov_b64 exec, -1")
    e(f"v_add_u32 v{V_FL}, 12, v{V_FL}")
    e(f"s_cmp_ge_u32 s{S_WAVE}, 2")
    e("s_cbranch_scc1 L_wo")
    e(f"s_cmp_lg_u32 s{S_IT}, 0")
    e("s_cbranch_scc1 L_kb1")
    stamp(5)
    e(f"v_mov_b32 v{V_SA}, v{V_LR}")
    e(f"v_mov_b32 v{V_FL}, {SB}")
    e(f"s_mov_b32 s{S_IT}, 16")
    e(f"s_mov_b32 s{S_PH}, 4")
    V_HO, V_HD = QF, QF + 1
    S_H0 = 32
    if hint:
        e(f"s_mul_i32 s{S_T0}, s{S_BP}, {GRP}")
        e(f"s_add_u32 s{S_WS}, s46, s{S_T0}")
        e(f"s_addc_u32 s{S_WS+1}, s47, 0")
        e(f"s_mov_b32 s{S_WS+2}, 0")
        e(f"s_mov_b32 s{S_WS+3}, 0x00020000")
        e(f"s_lshl_b32 s{S_T0}, s{S_HKV}, 1")
        e(f"s_add_u32 s{S_T0}, s{S_T0}, s{S_WAVE}")
        e(f"s_lshl_b32 s{S_T0}, s{S_T0}, 7")
        e(f"s_add_u32 s{S_T0}, s{S_T0}, {GD}")
        e(f"v_lshlrev_b32 v{V_HO}, 2, v0")
        e(f"v_add_u32 v{V_HO}, s{S_T0}, v{V_HO}")
        e(f"s_memrealtime s[{S_H0}:{S_H0+1}]")
        e(f"s_mov_b32 s{S_H0+2}, {hint[1]}")
        e(f"s_cmp_lt_u32 s{S_HKV}, 8")
        e(f"s_cselect_b32 s{S_H0+2}, {hint[0]}, s{S_H0+2}")
        e(f"s_mov_b32 s{S_CAP}, 0x40000")
    e.label("L_vstart")
    e.label("L_wk")
    e(f"ds_read_b32 v{V_T0}, v{V_FL} offset:{LDS_FLAG+4-SB}")
    e("s_waitcnt lgkmcnt(0)")
    e(f"v_readfirstlane_b32 s{S_T0}, v{V_T0}")
    e(f"s_cmp_lt_u32 s{S_T0}, s{S_PH}")
    e("s_cbranch_scc1 L_wk")
    e(f"ds_read_b128 {vr(TMP,4)}, v{V_MLR} offset:{LDS_ML-SB}")
    e(f"ds_read_b128 {vr(TMP+4,4)}, v{V_MLR} offset:{LDS_ML+16-SB}")
    e(f"ds_read_b128 {vr(SS,4)}, v{V_SA}")
    for i in range(16):
        e(f"v_pk_mul_f32 {vr(OA+2*i,2)}, {vr(V_Z,2)}, {vr(V_Z,2)}")
    e(f"v_add_u32 v{V_FL}, 12, v{V_FL}")
    e(f"v_add_u32 v{V_MLR}, 256, v{V_MLR}")
    e(f"s_mov_b32 s{S_PH}, 2")
    e("s_waitcnt lgkmcnt(1)")
    e(f"v_max3_f32 v{V_MC}, v{TMP}, v{TMP+2}, v{TMP+4}")
    e(f"v_max_f32 v{V_MC}, v{V_MC}, v{TMP+6}")
    for p in range(4): e(f"v_sub_f32 v{TMP+2*p}, v{TMP+2*p}, v{V_MC}")
    for p in range(4): e(f"v_exp_f32 v{TMP+2*p}, v{TMP+2*p}")
    e(f"v_mul_f32 v{V_L}, v{TMP}, v{TMP+1}")
    for p in range(1, 4): e(f"v_fmac_f32 v{V_L}, v{TMP+2*p}, v{TMP+2*p+1}")
    e(f"v_log_f32 v{V_L}, v{V_L}")
    e("s_nop 0")
    e(f"v_add_f32 v{V_MC}, v{V_MC}, v{V_L}")
    e.label("L_vloop")
    ckpts(1)
    for p in range(4):
        e("s_waitcnt lgkmcnt(0)")
        for i in range(4): e(f"v_fma_f32 v{SS+i}, v{SS+i}, s{S_C}, -v{V_MC}")
        for i in range(4): e(f"v_exp_f32 v{SS+i}, v{SS+i}")
        if p == 3: e(f"v_add_u32 v{V_SA}, 2048, v{V_SA}")
        else: e("s_nop 0")
        e(f"v_cvt_pk_bf16_f32 v{V_T0}, v{SS}, v{SS+1}")
        e(f"v_cvt_pk_bf16_f32 v{V_T1}, v{SS+2}, v{SS+3}")
        e(f"v_cndmask_b32 v{PP}, v{V_T0}, 0, s[{S_MASK}:{S_MASK+1}]")
        e(f"v_cndmask_b32 v{PP+1}, v{V_T1}, 0, s[{S_MASK}:{S_MASK+1}]")
        e(f"v_cndmask_b32 v{PP+2}, 0, v{V_T0}, s[{S_MASK}:{S_MASK+1}]")
        e(f"v_cndmask_b32 v{PP+3}, 0, v{V_T1}, s[{S_MASK}:{S_MASK+1}]")
        q_ = (p + 1) & 3
        e(f"ds_read_b128 {vr(SS,4)}, v{V_SA} offset:{(q_ & 1)*32768 + (q_ >> 1)*1024}")
        if p >= 2:
            e(f"s_cmp_eq_u32 s{S_IT}, 1")
            e(f"s_cbranch_scc1 L_vl{p}")
        e("s_waitcnt vmcnt(8)")
        if pace: thp(f"L_tv{p}")
        if pace and p & 1: probe()
        ld_v(BUF[(p+2) & 3])
        adv()
        if p >= 2:
            e(f"s_branch L_vc{p}")
            e.label(f"L_vl{p}")
            if p == 3 and not lite: stamp(6)
            e(f"s_waitcnt vmcnt({8 if p == 2 else 0})")
            if p == 3 and not lite: stamp(7)
            if p == 3 and (hint or (lite and stamps)): e("s_memrealtime s[20:21]")
            e.label(f"L_vc{p}")
        unit_mma(BUF[p], PP, OA, False, PT)
        if p == 1 and pace: decide(True)
    e(f"s_sub_u32 s{S_IT}, s{S_IT}, 1")
    e(f"s_and_b32 s{S_T0}, s{S_IT}, 7")
    e("s_cbranch_scc0 L_vfin")
    if pace: decide(False)
    e("s_branch L_vloop")
    e.label("L_vfin")
    if hint:
        e("s_waitcnt lgkmcnt(0)")
        e(f"v_mov_b32 v{V_HD}, s20")
        e("s_mov_b32 exec_hi, 0")
        e(f"buffer_store_dword v{V_HD}, v{V_HO}, s[{S_WS}:{S_WS+3}], 0 offen sc1")
        e("s_mov_b32 exec_hi, -1")
    merge(OA, TMP)
    for i in range(8):
        e(f"v_cvt_pk_bf16_f32 v{TMP+16+i}, v{TMP+2*i}, v{TMP+2*i+1}")
    e(f"ds_write_b128 v{V_OBW}, {vr(TMP+16,4)}")
    e(f"ds_write_b128 v{V_OBW}, {vr(TMP+20,4)} offset:16")
    e(f"s_cmp_lg_u32 s{S_IT}, 0")
    e("s_waitcnt lgkmcnt(0)")
    e("s_cbranch_scc1 L_vnext")
    if not lite: stamp(8)
    e("s_barrier")
    if stamps and lite: e(f"s_mov_b32 s{64+14}, s20")
    if hint:
        e("s_setprio 0")
        e(f"s_cmp_eq_u32 s{S_WAVE}, 0")
        e("s_cbranch_scc1 L_hp")
        e("s_barrier")
    e.label("L_sfin")
    if stamps:
        stamp(9); stamp(10); stamp(11)
        e("s_branch L_dump")
    else:
        e("s_endpgm")
    e.label("L_vnext")
    e(f"v_mov_b32 v{V_T0}, 1")
    e("s_mov_b64 exec, 1")
    e(f"ds_add_u32 v{V_T2}, v{V_T0} offset:{LDS_FLAG+12-SB}")
    e("s_mov_b64 exec, -1")
    e(f"v_add_u32 v{V_OBW}, {8*OB_ROW}, v{V_OBW}")
    if hint: e(f"s_mov_b32 s{S_WS+2}, {GRP}")
    if pace: decide(False)
    e("s_branch L_vstart")
    for p in (2, 3):
        e.label(f"L_kv{p}")
        ld_v(BUF[(p+2) & 3])
        e(f"s_branch L_kr{p}")

    e.label("L_wo")
    e("s_setprio 0")
    V_WO, V_BRD, V_STO, V_PL, V_OO, V_TAG, V_SB, V_IDX = 1, 5, 6, 7, 1, 2, 3, 4
    A0, A1, A2, AN, AG, AZ, AS = 232, 233, 234, 235, 236, 237, 238
    S_PW = S_OFF
    e(f"v_and_b32 v{AN}, 15, v0")
    e(f"v_lshrrev_b32 v{AG}, 4, v0")
    e(f"v_mov_b32 v{AZ}, 0")
    e(f"v_mov_b32 v{AS}, {SB}")
    e(f"s_sub_u32 s{S_T3}, s{S_WAVE}, 2")
    e(f"v_lshrrev_b32 v{A0}, 5, v0")
    e(f"v_mul_u32_u24 v{A0}, {16*1152}, v{A0}")
    e(f"v_and_b32 v{A1}, 1, v{AG}")
    e(f"v_mul_u32_u24 v{A1}, {4*1152}, v{A1}")
    e(f"v_mul_u32_u24 v{A2}, 12, v{AN}")
    e(f"v_add3_u32 v{A0}, v{A0}, v{A1}, v{A2}")
    e(f"s_mul_i32 s{S_T0}, s{S_T3}, 192")
    e(f"v_add_u32 v{V_WO}, s{S_T0}, v{A0}")
    e(f"s_mul_i32 s{S_T0}, s{S_HKV}, {256*1152}")
    e(f"s_add_u32 s{S_WO}, s40, s{S_T0}")
    e(f"s_addc_u32 s{S_WO+1}, s41, 0")
    e(f"s_mov_b32 s{S_WO+2}, {256*1152}")
    e(f"s_mov_b32 s{S_WO+3}, 0x00020000")
    e(f"s_mul_i32 s{S_T0}, s{S_BP}, {GRP}")
    e(f"s_add_u32 s{S_WS}, s46, s{S_T0}")
    e(f"s_addc_u32 s{S_WS+1}, s47, 0")
    e(f"s_mov_b32 s{S_WS+2}, {GRP}")
    e(f"s_mov_b32 s{S_WS+3}, 0x00020000")
    e(f"s_mov_b32 s{S_OUT}, s42")
    e(f"s_mov_b32 s{S_OUT+1}, s43")
    e(f"s_mov_b32 s{S_OUT+2}, {128*1152}")
    e(f"s_mov_b32 s{S_OUT+3}, 0x00020000")
    e(f"s_mov_b32 s{S_DBG}, s44")
    e(f"s_mov_b32 s{S_DBG+1}, s45")
    e(f"s_mov_b32 s{S_DBG+2}, 256")
    e(f"s_mov_b32 s{S_DBG+3}, 0x00020000")
    e(f"v_bfe_u32 v{A0}, v{AN}, 1, 1")
    e(f"v_lshrrev_b32 v{A1}, 2, v{AN}")
    e(f"v_lshl_add_u32 v{A0}, v{A0}, 2, v{A1}")
    e(f"v_mul_u32_u24 v{A0}, {OB_ROW}, v{A0}")
    e(f"v_lshl_add_u32 v{A0}, v{AG}, 5, v{A0}")
    e(f"v_and_b32 v{A1}, 1, v{AN}")
    e(f"v_lshl_add_u32 v{A0}, v{A1}, 4, v{A0}")
    e(f"v_add_u32 v{V_BRD}, {LDS_OB}, v{A0}")
    e(f"v_mul_u32_u24 v{A0}, {6*4096}, v{AG}")
    e(f"v_lshlrev_b32 v{A1}, 4, v{AN}")
    e(f"s_lshl_b32 s{S_T0}, s{S_T3}, 12")
    e(f"s_lshl_b32 s{S_T1}, s{S_HKV}, 8")
    e(f"s_add_u32 s{S_T1}, s{S_T1}, s{S_T0}")
    e(f"v_add3_u32 v{V_STO}, v{A0}, v{A1}, s{S_T1}")
    e(f"s_lshr_b32 s{S_T1}, s{S_HKV}, 1")
    e(f"s_mul_i32 s{S_T1}, s{S_T1}, {6*4096}")
    e(f"s_add_u32 s{S_T0}, s{S_T0}, s{S_T1}")
    e(f"s_and_b32 s{S_T1}, s{S_HKV}, 1")
    e(f"s_lshl_b32 s{S_T1}, s{S_T1}, 7")
    e(f"s_add_u32 s{S_T0}, s{S_T0}, s{S_T1}")
    e(f"v_lshrrev_b32 v{A0}, 3, v0")
    e(f"v_lshlrev_b32 v{A0}, 8, v{A0}")
    e(f"v_and_b32 v{A1}, 7, v0")
    e(f"v_lshlrev_b32 v{A1}, 4, v{A1}")
    e(f"v_add3_u32 v{V_PL}, v{A0}, v{A1}, s{S_T0}")
    def call():
        if pace: e("s_call_b64 s[20:21], L_agent")
    if pace:
        e(f"s_add_u32 s16, s46, 0x400000")
        e(f"s_addc_u32 s17, s47, 0")
        e(f"s_mov_b32 s18, 0x40000")
        e(f"s_mov_b32 s19, 0x00020000")
        e(f"s_cmp_eq_u32 s{S_WAVE}, {pace.get('wave', 7)}")
        e(f"s_cselect_b32 s22, {8*pace['q0']}, 0x1000")
        e(f"s_mov_b32 s23, 0")
        e(f"s_lshr_b32 s{S_T0}, s2, 5")
        e(f"s_lshl_b32 s{S_T0}, s{S_T0}, 3")
        e(f"s_and_b32 s{S_T1}, s2, 7")
        e(f"s_add_u32 s{S_T0}, s{S_T0}, s{S_T1}")
        e(f"s_lshl_b32 s4, s{S_T0}, 4")
        e(f"s_add_u32 s4, s4, {1152*pace['lag']}")
    e(f"s_lshl_b32 s{S_T0}, s2, 3")
    e(f"s_add_u32 s{S_T0}, s{S_T0}, s{S_WAVE}")
    e(f"s_cmp_lg_u32 s{S_T0}, 7")
    e("s_cbranch_scc1 L_notag")
    e(f"s_memrealtime s[{S_T1}:{S_T1+1}]")
    e("s_waitcnt lgkmcnt(0)")
    e(f"s_or_b32 s{S_T1}, s{S_T1}, 1")
    e(f"v_mov_b32 v{A1}, s{S_T1}")
    e("s_mov_b64 exec, 1")
    e(f"buffer_store_dword v{A1}, v{AZ}, s[{S_DBG}:{S_DBG+3}], 0 offen sc1")
    e("s_mov_b64 exec, -1")
    e.label("L_notag")
    if wostart:
        wait_flag("L_ws", LDS_FLAG+4, wostart, AS, A0, 8)
    stamp(4)
    def hook():
        if pace:
            call(); e("s_waitcnt vmcnt(0)")
    if wob:
        e(f"s_lshr_b32 s{S_T0}, s{S_BP}, 2")
        e(f"s_and_b32 s{S_T0}, s{S_T0}, {wob[2]-1}")
        e(f"s_lshl_b32 s{S_T0}, s{S_T0}, 3")
        e(f"v_add_u32 v{A2}, s{S_T0}, v{AS}")
    for j in range(4):
        for hh in range(2):
            for t in range(8):
                if wob and t % wog == 0:
                    gi = ((j*2+hh)*8 + t) // wog
                    wait_flag(f"L_wb{gi}", LDS_H + 8*int(wob[0] + gi*wob[1]), 1, A2, A0, 4, hook)
                if t % 4 == 0 or (wob and t % wog == 0): e(f"s_mov_b32 s{S_T0}, {(64*j+32*hh+(t>>2)*8)*1152}")
                e(f"buffer_load_dwordx3 {vr(BF+4*t,3)}, v{V_WO}, s[{S_WO}:{S_WO+3}], s{S_T0} offen offset:{(t%4)*1152} {wopol}")
                if (t + 1) % wog == 0:
                    call()
                    e("s_waitcnt vmcnt(0)")
            for i in range(6):
                w_, h = i >> 1, i & 1
                sel = S_HI if h else S_LO
                for r in range(4):
                    tl = (r & 1) * 4 + ((r >> 1) & 1) * 2
                    e(f"v_perm_b32 v{WF+(j*6+i)*8+hh*4+r}, v{BF+(tl+1)*4+w_}, v{BF+tl*4+w_}, s{sel}")
    stamp(5)
    e(f"s_lshl_b32 s{S_T0}, s{S_BP}, 3")
    e(f"s_lshr_b32 s{S_T1}, s{S_HKV}, 1")
    e(f"s_add_u32 s{S_T0}, s{S_T0}, s{S_T1}")
    e(f"s_mul_i32 s{S_T0}, s{S_T0}, 1152")
    e(f"s_mul_i32 s{S_T1}, s{S_T3}, 192")
    e(f"s_add_u32 s{S_T0}, s{S_T0}, s{S_T1}")
    e(f"s_and_b32 s{S_T1}, s{S_HKV}, 1")
    e(f"s_mul_i32 s{S_T1}, s{S_T1}, 96")
    e(f"s_add_u32 s{S_T0}, s{S_T0}, s{S_T1}")
    e(f"v_mul_u32_u24 v{A0}, 12, v{AN}")
    e(f"v_lshl_add_u32 v{A0}, v{AG}, 2, v{A0}")
    e(f"v_add_u32 v{V_OO}, s{S_T0}, v{A0}")
    e(f"s_cmp_lg_u32 s{S_WAVE}, 3")
    e("s_cbranch_scc1 L_nochk")
    e(f"s_mov_b32 s{S_T1}, 0x40000")
    e.label("L_chk")
    e(f"buffer_load_dword v{A0}, v{AZ}, s[{S_DBG}:{S_DBG+3}], 0 offen sc1")
    e("s_waitcnt vmcnt(0)")
    e(f"v_readfirstlane_b32 s{S_T0}, v{A0}")
    e(f"s_sub_u32 s{S_T1}, s{S_T1}, 1")
    e("s_cbranch_scc1 L_chkd")
    e(f"s_cmp_lg_u32 s{S_T0}, 0")
    e("s_cbranch_scc1 L_chkd")
    e("s_sleep 8")
    e("s_branch L_chk")
    e.label("L_chkd")
    e(f"ds_write_b32 v{AS}, v{A0} offset:{LDS_FLAG+8-SB}")
    e(f"v_mov_b32 v{A1}, 1")
    e("s_mov_b64 exec, 1")
    e("s_waitcnt lgkmcnt(0)")
    e(f"ds_add_u32 v{AS}, v{A1} offset:{LDS_FLAG+12-SB}")
    e("s_mov_b64 exec, -1")
    e.label("L_nochk")
    AF, G, G0, SEL, DD = 200, 216, 220, 224, 228
    F = AF
    e(f"v_mov_b32 v{V_SB}, {SB}")
    e(f"v_and_b32 v{A1}, 1, v0")
    e(f"v_mul_u32_u24 v{V_IDX}, 0xaaaa, v{A1}")
    e(f"v_add_u32 v{V_IDX}, 0x4444, v{V_IDX}")
    e(f"v_lshlrev_b32 v{A1}, 4, v{A1}")
    e(f"v_mov_b32 v{A2}, 0x3f80")
    e(f"v_lshlrev_b32 v{A1}, v{A1}, v{A2}")
    e(f"v_and_b32 v{A2}, 14, v0")
    for q in range(3):
        e(f"v_cmp_eq_u32 vcc, {4*q}, v{A2}")
        e("s_nop 1")
        e(f"v_cndmask_b32 v{SEL+q}, 0, v{A1}, vcc")
    e(f"v_mov_b32 v{SEL+3}, 0")
    e(f"s_mov_b32 s{S_PW}, 0")
    e(f"s_mov_b32 s{S_WS+2}, 0")
    e(f"s_mov_b32 s{S_OUT+2}, 0")
    e(f"s_mov_b32 s{S_CAP}, 0")
    wait_flag("L_w0", LDS_FLAG+12, 3, V_SB, F, 8, hook)
    call()
    if pace:
        e("s_waitcnt vmcnt(0)")
        e("s_mov_b32 s23, 0")
    e(f"ds_read_b32 v{V_TAG}, v{V_SB} offset:{LDS_FLAG+8-SB}")
    for i in range(24): e(f"v_mov_b32 v{PA+i}, 0")
    e("s_waitcnt lgkmcnt(0)")
    e(f"v_mov_b32 v{G+3}, v{V_TAG}")
    e("s_branch L_tail")
    e.label("L_barB")
    e("s_mov_b64 exec, -1")
    e("s_waitcnt vmcnt(0)")
    if pace:
        e.label("L_agl")
        e(f"s_cmp_gt_u32 s22, {8*pace['qend']}")
        e("s_cbranch_scc1 L_agd")
        call()
        e("s_waitcnt vmcnt(0)")
        e("s_sleep 4")
        e("s_branch L_agl")
        e.label("L_agd")
        call()
    for i in range(24): e(f"v_mov_b32 v{PA+i}, 0")
    for i in range(4): e(f"v_mov_b32 v{G0+i}, v{G+i}")
    e(f"v_add_u32 v{V_BRD}, {8*OB_ROW}, v{V_BRD}")
    e(f"s_mov_b32 s{S_PW}, {4*6*4096}")
    e(f"s_mov_b32 s{S_WS+2}, {GRP}")
    e(f"s_mov_b32 s{S_OUT+2}, {128*1152}")
    e(f"s_mov_b32 s{S_CAP}, 0x40000")
    if warm is not None:
        for x_ in range(2):
            e(f"buffer_load_dwordx4 {vr(F+4*x_,4)}, v{V_PL}, s[{S_WS}:{S_WS+3}], 0 offen offset:{2048*x_} {warm}")
        e("s_waitcnt vmcnt(0)")
    if g0early: e(f"buffer_store_dwordx4 {vr(G0,4)}, v{V_STO}, s[{S_WS}:{S_WS+3}], 0 offen {spol}")
    if tprio: e(f"s_setprio {tprio}")
    stamp(6)
    e("s_barrier")
    if not lite: stamp(7)
    e.label("L_tail")
    for j in range(4):
        e(f"ds_read_b128 {vr(AF+4*j,4)}, v{V_BRD} offset:{j*128}")
    if not g0early: e(f"buffer_store_dwordx4 {vr(G0,4)}, v{V_STO}, s[{S_WS}:{S_WS+3}], 0 offen {spol}")
    def adds(i):
        e(f"v_pk_add_f32 {vr(PA+4*i,2)}, {vr(PA+4*i,2)}, {vr(PA+4*i+2,2)}")
        e(f"v_add_f32 v{PA+4*i}, v{PA+4*i}, v{PA+4*i+1}")
        if i & 1: e(f"v_cvt_pk_bf16_f32 v{G+(i>>1)}, v{PA+4*i-4}, v{PA+4*i}")
    for i in range(6):
        for j in range(4):
            if i == 0: e(f"s_waitcnt lgkmcnt({3-j})")
            e(f"v_smfmac_f32_16x16x64_bf16 {vr(PA+4*i,4)}, {vr(AF+4*j,4)}, {vr(WF+(j*6+i)*8,8)}, v{V_IDX}")
        if i >= 2: adds(i - 2)
    e("s_nop 0")
    adds(4)
    e("s_nop 1")
    adds(5)
    e(f"buffer_store_dwordx4 {vr(G,4)}, v{V_STO}, s[{S_WS}:{S_WS+3}], s{S_PW} offen {spol}")
    e("s_setprio 0")
    stamp(8)
    if hint:
        HA, HD = PA, PA + 1
        e(f"s_cmp_lg_u32 s{S_PW}, 0")
        e("s_cbranch_scc1 L_hb")
        if hwarm: e(f"s_mov_b32 s{S_WS+2}, {GRP}")
        e.label("L_hp")
        if hd: e(f"s_sleep {hd}")
        e(f"v_lshlrev_b32 v{HA}, 7, v0")
        e(f"v_add_u32 v{HA}, {GD}, v{HA}")
        e("s_mov_b32 exec_hi, 0")
        e(f"s_mov_b32 s{S_T3}, s{S_CAP}")
        e.label("L_h1")
        e(f"buffer_load_dword v{HD+1}, v{HA}, s[{S_WS}:{S_WS+3}], 0 offen sc1")
        e("s_waitcnt vmcnt(0)")
        e(f"v_subrev_u32 v{HD}, s{S_H0}, v{HD+1}")
        e("s_mov_b32 exec_lo, -1")
        e.label("L_h2")
        e(f"s_memrealtime s[{S_T1}:{S_T1+1}]")
        e("s_waitcnt lgkmcnt(0)")
        e(f"s_sub_u32 s{S_T1}, s{S_T1}, s{S_H0}")
        e(f"s_sub_u32 s{S_T2}, s{S_T1}, s{S_H0+2}")
        e(f"s_add_u32 s{S_T1}, s{S_T1}, 8")
        e(f"v_cmp_lt_u32 s[{S_MASK}:{S_MASK+1}], s{S_T2}, v{HD}")
        e(f"v_cmp_lt_u32 vcc, s{S_T1}, v{HD}")
        e(f"s_sub_u32 s{S_T3}, s{S_T3}, 1")
        e("s_cbranch_scc1 L_h3")
        e(f"s_cmp_eq_u32 s{S_MASK}, 0")
        e("s_cbranch_scc1 L_h3")
        e("s_cmp_eq_u32 vcc_lo, 0")
        e("s_cbranch_scc1 L_h2")
        e("s_mov_b32 exec_lo, vcc_lo")
        if len(hint) > 2: e(f"s_sleep {hint[2]}")
        e("s_branch L_h1")
        e.label("L_h3")
        e("s_mov_b64 exec, -1")
        e(f"s_cmp_lg_u32 s{S_WAVE}, 0")
        if hwarm: e(f"s_mov_b32 s{S_WS+2}, 0")
        e("s_cbranch_scc1 L_hc")
        e("s_barrier")
        if stamps:
            stamp(8)
            e("s_branch L_sfin")
        else: e("s_endpgm")
        e.label("L_hb")
        e("s_barrier")
        e.label("L_hc")
    e(f"s_mov_b32 s{S_T1}, s{S_CAP}")
    if pp:
        SL = [208, 232, 240, 248][:pp['d']]
        D = len(SL)
        MS = S_MASK
        def issue(k):
            for x_ in range(2):
                e(f"buffer_load_dwordx4 {vr(SL[k]+4*x_,4)}, v{V_PL}, s[{S_WS}:{S_WS+3}], 0 offen offset:{2048*x_} {ppol}")
        e(f"v_mov_b32 v{F+3}, 0")
        e(f"v_mov_b32 v{F+7}, 0")
        e(f"s_mov_b64 s[{MS}:{MS+1}], -1")
        if pp['d0']: e(f"s_sleep {pp['d0']}")
        for k in range(D):
            issue(k)
            if k < D - 1: e(f"s_sleep {pp['gap']}")
        e.label("L_poll")
        for k in range(D):
            e(f"s_waitcnt vmcnt({2*(D-1)})")
            e(f"v_cmp_eq_u32 vcc, v{SL[k]+3}, v{V_TAG}")
            e(f"v_cmp_eq_u32 s[{S_T2-1}:{S_T2}], v{SL[k]+7}, v{V_TAG}")
            e(f"s_and_b64 exec, vcc, s[{S_T2-1}:{S_T2}]")
            e(f"s_andn2_b64 s[{MS}:{MS+1}], s[{MS}:{MS+1}], exec")
            for x_ in range(2):
                e(f"v_mov_b64 {vr(F+4*x_,2)}, {vr(SL[k]+4*x_,2)}")
                e(f"v_mov_b32 v{F+4*x_+2}, v{SL[k]+4*x_+2}")
            e("s_cbranch_scc0 L_pdone")
            e(f"s_mov_b64 exec, s[{MS}:{MS+1}]")
            e(f"s_sub_u32 s{S_CAP}, s{S_CAP}, 1")
            e("s_cbranch_scc1 L_pdone")
            if pp.get('bo'):
                e(f"s_bcnt1_i32_b64 s{S_T0}, exec")
                e(f"s_cmp_lt_u32 s{S_T0}, {pp['bo'][0]}")
                e(f"s_cbranch_scc1 L_pb{k}")
                e(f"s_sleep {pp['bo'][1]}")
                e.label(f"L_pb{k}")
            issue(k)
        e("s_branch L_poll")
        e.label("L_pdone")
        e("s_mov_b64 exec, -1")
        stamp(9)
        e("s_nop 0")
    else:
        if pbo: e.label("L_pbo")
        if pdelay: e(f"s_sleep {pdelay}")
        e.label("L_poll")
        for x_ in range(2):
            e(f"buffer_load_dwordx4 {vr(F+4*x_,4)}, v{V_PL}, s[{S_WS}:{S_WS+3}], 0 offen offset:{2048*x_} {ppol}")
        e("s_waitcnt vmcnt(0)")
        e(f"v_cmp_ne_u32 vcc, v{F+3}, v{V_TAG}")
        e(f"v_cmp_ne_u32 s[{S_MASK}:{S_MASK+1}], v{F+7}, v{V_TAG}")
        e(f"s_or_b64 exec, vcc, s[{S_MASK}:{S_MASK+1}]")
        e("s_cbranch_scc0 L_pdone")
        e(f"s_sub_u32 s{S_T1}, s{S_T1}, 1")
        if pbo:
            e("s_cbranch_scc1 L_pdone")
            e("s_cmp_eq_u64 exec, -1")
            e("s_cbranch_scc0 L_poll")
            e("s_branch L_pbo")
        elif slp is None:
            e("s_cbranch_scc0 L_poll")
        else:
            e("s_cbranch_scc1 L_pdone")
            e(f"s_bcnt1_i32_b64 s{S_T0}, exec")
            e(f"s_cmp_lt_u32 s{S_T0}, {slp[2]}")
            e("s_cbranch_scc1 L_poll")
            e(f"s_sleep {slp[3]}")
            e(f"s_cmp_lt_u32 s{S_T0}, {slp[0]}")
            e("s_cbranch_scc1 L_poll")
            e(f"s_sleep {slp[1]}")
            e("s_branch L_poll")
        e.label("L_pdone")
        e("s_mov_b64 exec, -1")
        stamp(9)
        e(f"v_mov_b32 v{F+3}, 0")
        e(f"v_mov_b32 v{F+7}, 0")
        e("s_nop 0")
    e(f"v_mfma_f32_16x16x32_bf16 {vr(DD,4)}, {vr(SEL,4)}, {vr(F,4)}, 0")
    e(f"v_mfma_f32_16x16x32_bf16 {vr(DD,4)}, {vr(SEL,4)}, {vr(F+4,4)}, {vr(DD,4)}")
    e("s_mov_b32 vcc_lo, 0x00ff00ff")
    e("s_mov_b32 vcc_hi, 0x000000ff")
    e("s_nop 5")
    for k in range(2):
        e(f"v_add_f32_dpp v{DD+k}, v{DD+k}, v{DD+k} row_ror:8 row_mask:0xf bank_mask:0xf")
    e("s_mov_b64 exec, vcc")
    e(f"v_cvt_pk_bf16_f32 v{DD+2}, v{DD}, v{DD+1}")
    e(f"buffer_store_dword v{DD+2}, v{V_OO}, s[{S_OUT}:{S_OUT+3}], 0 offen {opol}")
    e(f"s_cmp_eq_u32 s{S_PW}, 0")
    e("s_cbranch_scc1 L_barB")
    if stamps:
        e("s_mov_b64 exec, -1")
        stamp(10)
        e("s_waitcnt vmcnt(0)")
        stamp(11)
        e.label("L_dump")
        e(f"s_add_u32 s{S_WS}, s46, 0x800000")
        e(f"s_addc_u32 s{S_WS+1}, s47, 0")
        e(f"s_mov_b32 s{S_WS+2}, 0x100000")
        e(f"s_mov_b32 s{S_WS+3}, 0x00020000")
        e(f"s_lshl_b32 s{S_T0}, s2, 3")
        e(f"s_add_u32 s{S_T0}, s{S_T0}, s{S_WAVE}")
        e(f"s_lshl_b32 s{S_T0}, s{S_T0}, 6")
        e("v_mov_b32 v1, 0")
        for i in range(NST):
            e(f"v_mov_b32 v2, s{64+2*i}")
            e(f"buffer_store_dword v2, v1, s[{S_WS}:{S_WS+3}], s{S_T0} offen offset:{4*i}")
        e(f"s_getreg_b32 s{S_T1}, hwreg(HW_REG_XCC_ID)")
        e(f"v_mov_b32 v2, s{S_T1}")
        e(f"buffer_store_dword v2, v1, s[{S_WS}:{S_WS+3}], s{S_T0} offen offset:56")
        e("v_mov_b32 v2, s27" if pace else "v_mov_b32 v2, 0")
        e(f"buffer_store_dword v2, v1, s[{S_WS}:{S_WS+3}], s{S_T0} offen offset:52")
    e.label("L_end")
    e("s_endpgm")
    if pace:
        RS = 1152
        step, span, lag = pace['step'], pace['span'], pace['lag']
        R, T_, REF, AD = 244, 248, 252, 254
        e.label("L_agent")
        e("s_cmp_eq_u32 s23, 0")
        e("s_cbranch_scc1 L_ag1")
        e("s_mov_b32 s23, 0")
        for i in range(4):
            e(f"v_sub_u32 v{R+i}, v{R+i}, v{REF}")
            e(f"v_add_u32 v{T_+i}, 0x1000, v{R+i}")
        e(f"v_max_u32 v{T_}, v{T_}, v{T_+1}")
        e(f"v_max3_u32 v{T_}, v{T_}, v{T_+2}, v{T_+3}")
        e(f"v_cmp_gt_u32 vcc, 0x1200, v{T_}")
        e(f"v_add_u32 v{R}, v{R}, v{R+1}")
        e(f"v_add_u32 v{R+1}, v{R+2}, v{R+3}")
        e(f"v_cvt_f32_i32 v{R}, v{R}")
        e(f"v_cvt_f32_i32 v{R+1}, v{R+1}")
        e(f"v_cndmask_b32 v{R}, 0, v{R}, vcc")
        e(f"v_cndmask_b32 v{R+1}, 0, v{R+1}, vcc")
        e(f"s_bcnt1_i32_b64 s5, vcc")
        for sh_ in (8, 4, 2, 1):
            e("s_nop 0")
            for r_ in (R, R+1):
                e(f"v_add_f32_dpp v{r_}, v{r_}, v{r_} row_ror:{sh_} row_mask:0xf bank_mask:0xf")
        for op in ("v_permlane32_swap_b32", "v_permlane16_swap_b32"):
            e(f"v_mov_b32 v{R+2}, v{R}")
            e(f"v_mov_b32 v{R+3}, v{R+1}")
            e("s_nop 1")
            e(f"{op} v{R}, v{R+2}")
            e(f"{op} v{R+1}, v{R+3}")
            e("s_nop 1")
            e(f"v_add_f32 v{R}, v{R}, v{R+2}")
            e(f"v_add_f32 v{R+1}, v{R+1}, v{R+3}")
        e(f"v_cvt_f32_u32 v{R+2}, s5")
        e(f"v_rcp_f32 v{R+2}, v{R+2}")
        e(f"v_sub_f32 v{R}, v{R+1}, v{R}")
        e(f"v_mul_f32 v{R}, {f32((1.0 - pace.get('eps', 0.0)) / (2 * span))}, v{R}")
        e(f"v_mul_f32 v{R+1}, 0.5, v{R+1}")
        e(f"v_mul_f32 v{R}, v{R}, v{R+2}")
        e(f"v_mul_f32 v{R+1}, v{R+1}, v{R+2}")
        e(f"s_sub_i32 s6, {8*(pace['b'] + step + lag)}, s22")
        e(f"v_cvt_f32_i32 v{R+3}, s6")
        e(f"v_mul_f32 v{R+3}, 0x3e000000, v{R+3}")
        e(f"v_fmac_f32 v{R+1}, v{R+3}, v{R}")
        e(f"v_mul_f32 v{R}, 0x41800000, v{R}")
        e(f"v_cvt_i32_f32 v{R+3}, v{R}")
        e(f"v_cvt_i32_f32 v{R+2}, v{R+1}")
        e(f"v_add_u32 v{R+2}, {pace['off']}, v{R+2}")
        e(f"v_add_u32 v{R+2}, v{R+2}, v{REF}")
        e(f"v_mov_b32 v{AD}, {SB}")
        e(f"s_cmp_lt_u32 s5, 32")
        e("s_cbranch_scc1 L_ag1")
        e(f"ds_write_b64 v{AD}, {vr(R+2,2)} offset:{LDS_LINE-SB}")
        e.label("L_ag1")
        e(f"s_cmp_gt_u32 s22, {8*pace['qend']}")
        e("s_cbranch_scc1 L_agr")
        e(f"s_add_u32 s5, s22, {SB}")
        e(f"v_mov_b32 v{AD}, s5")
        e(f"ds_read_b64 {vr(T_,2)}, v{AD} offset:{LDS_H-SB-8*span}")
        e(f"ds_read_b64 {vr(T_+2,2)}, v{AD} offset:{LDS_H-SB}")
        e("s_waitcnt lgkmcnt(0)")
        e(f"v_min_u32 v{REF+1}, v{T_+2}, v{T_+3}")
        e(f"v_mov_b32 v{REF}, v{T_+2}")
        e(f"v_readfirstlane_b32 s5, v{REF+1}")
        e("s_cmp_eq_u32 s5, 0")
        e("s_cbranch_scc1 L_agr")
        e(f"s_mul_i32 s5, s22, {RS//8}")
        e(f"v_lshlrev_b32 v{AD}, 4, v0")
        e(f"buffer_load_dwordx4 {vr(R,4)}, v{AD}, s[16:19], s5 offen {pace.get('rpol', '')}")
        e(f"s_add_u32 s22, s22, {8*step}")
        e("s_mov_b32 s23, 1")
        e("s_and_b32 s6, s2, 24")
        e("s_cbranch_scc1 L_agr")
        e("s_add_u32 s5, s5, s4")
        e("s_mov_b64 exec, 1")
        e(f"buffer_store_dwordx4 {vr(T_,4)}, v{AD}, s[16:19], s5 offen sc1")
        e("s_mov_b64 exec, -1")
        e.label("L_agr")
        e("s_setpc_b64 s[20:21]")

    e.raw('.section .rodata,"a"')
    e.raw(f""".p2align 6
.amdhsa_kernel {KN}
  .amdhsa_next_free_vgpr 256
  .amdhsa_next_free_sgpr 96
  .amdhsa_accum_offset 256
  .amdhsa_group_segment_fixed_size 0
  .amdhsa_kernarg_size 64
  .amdhsa_user_sgpr_count 2
  .amdhsa_user_sgpr_kernarg_segment_ptr 1
  .amdhsa_system_sgpr_workgroup_id_x 1
.end_amdhsa_kernel""")
    open(name, "w").write(e.text())
    return name

PB = dict(b=16, sh=5, nmax=2, q0=4, qend=24, step=2, span=4, lag=2, off=0)
if __name__ == "__main__":
    S = dict(stamps=True, cks=(112, 108, 104))
    L = [gen("k10_t0.s", **S), gen("k10_p0.s", pace=PB, **S), gen("k10_p12.s", pace=dict(PB, off=12), **S), gen("k10_p-12.s", pace=dict(PB, off=-12), **S)]
    print(" ".join(L))
    print(" ".join(x[:-2] for x in L))
    import json; print(json.dumps(["work/bench.py", "work/an8.py", "cdna_kernels/cdna_launch.py", "cdna_kernels/cdna_unwritten_srd_check.py"] + ["work/"+x for x in L]))
```

```python
from gen12 import gen, PB
import mk
P=dict(PB,sh=4,off=-12)
L=[gen("k12h_a.s", npre=(0,5,8,2), pace=P, slp=None, pdelay=16, pbo=True),
   gen("k12h_b.s", npre=(0,2,4,6), pace=P, slp=None, pdelay=16, pbo=True),
   gen("k12h_c.s", npre=(0,4,6,8), pace=P, slp=None, pdelay=16, pbo=True),
   gen("k12h_d.s", npre=(0,5,8,2), pace=P, slp=None, hint=(50,75), hd=6),
]
mk.show(L)
```

```python
import sys, math, struct
from gen2 import HEADER, E, vr

KN = "standalone__gqa_block_cached__sampling_kernel"
V_KOFF, V_VOFF, V_QRD, V_SA, V_MLW, V_OBW, V_MLR = 1, 2, 3, 4, 5, 6, 7
V_MC, V_L, V_AL, V_T0, V_T1, V_T2, V_N, V_G = 8, 9, 10, 11, 12, 13, 14, 15
QF, XT, V_FL, V_Z, V_LR, V_H, V_LN, OA = 16, 24, 25, 26, 28, 29, 30, 32
QF1, SH = 32, 40
BUF = [64, 96, 128, 160]
TMP, ST, PT, PP, SS = 192, 224, 240, 248, 252
XF, XB, QA, WB = 16, 36, 44, 76
WF, BF, PA = 8, 200, 232
S_K, S_V, S_WQ, S_X, S_WO, S_WS = 8, 12, 16, 20, 24, 28
S_OUT, S_DBG = 8, 12
S_WAVE, S_HKV, S_BP = 3, 48, 49
S_LO, S_HI, S_C = 50, 51, 52
S_IT, S_OFF, S_T0, S_T1, S_T2, S_T3 = 53, 54, 55, 56, 57, 58
S_NPRE = 59
S_MASK = 60
S_U, S_CAP = 62, 62
S_THR, S_Q, S_PH = 7, 6, 5
OB_ROW = 544; QP_ROW = 1040
LDS_ML = 131072
LDS_FLAG = LDS_ML + 512
LDS_OB = LDS_FLAG + 32
LDS_QP = LDS_OB + 16 * OB_ROW
LDS_H = LDS_QP + 16 * QP_ROW
LDS_LINE = LDS_H + 248
LDS_TOTAL = LDS_H + 256
NST = 12
GD = 48 * 4096
GRP = GD + 4096
NEG = "0xf149f2ca"
def f32(x): return "0x%08x" % struct.unpack("<I", struct.pack("<f", x))[0]

def gen(name, pol="nt", wpol="", wopol="", stamps=False, npre=(0,4,6,0,4,6,0,6),
        wog=2, prio=(3, 2), qdepth=3, nwb=4, wostart=2, bar1=8, nwarm=1,
        slp=(40, 16, 17, 4), qprio=3, kprio0=1, tprio=2, spol='sc1', ppol='sc1', opol='', hb=2, nq=9,
        pace=None, cks=None, g0early=False, pdelay=0, pp=None, warm=None, hint=None, lite=False, hwarm=False, hd=0, meter=None, sched=None, cmode=0, wob=None, pbo=False):
    e = E()
    QT = WB + 32 * nwb
    SB = LDS_ML
    def stamp(i):
        if not stamps: return
        e(f"s_memrealtime s[{64+2*i}:{65+2*i}]")
        e("s_waitcnt lgkmcnt(0)")
    def table(vals):
        t = 0
        for i in range(8): t |= vals[i % len(vals)] << (4 * i)
        return t
    e.raw(HEADER.rstrip("\n"))
    e.raw(f"; @launch grid=(256,1,1) block=(512,1,1) lds={LDS_TOTAL}")
    if stamps: e.raw(f"; NSTAMPS={NST}")
    e.raw('.amdgcn_target "amdgcn-amd-amdhsa--gfx950"')
    e.raw(".text")
    e.raw(f".globl {KN}\n.p2align 8\n.type {KN},@function\n{KN}:")
    e("s_cmp_lt_u32 s2, 256")
    e("s_cbranch_scc1 L_main")
    e.label("L_end0")
    e("s_endpgm")
    e.label("L_main")
    stamp(0)
    e("s_load_dwordx8 s[32:39], s[0:1], 0")
    e("s_load_dwordx8 s[40:47], s[0:1], 32")
    e("v_lshrrev_b32 v1, 6, v0")
    e("v_and_b32 v0, 63, v0")
    e(f"v_readfirstlane_b32 s{S_WAVE}, v1")
    e(f"v_and_b32 v{V_N}, 15, v0")
    e(f"v_lshrrev_b32 v{V_G}, 4, v0")
    if hb == 0:
        e(f"s_and_b32 s{S_T0}, s2, 7")
        e(f"s_lshl_b32 s{S_HKV}, s{S_T0}, 1")
        e(f"s_bfe_u32 s{S_T0}, s2, 0x10003")
        e(f"s_add_u32 s{S_HKV}, s{S_HKV}, s{S_T0}")
    elif hb == 2:
        e(f"s_lshr_b32 s{S_T0}, s2, 1")
        e(f"s_xor_b32 s{S_T0}, s{S_T0}, s2")
        e(f"s_and_b32 s{S_T0}, s{S_T0}, 4")
        e(f"s_mul_i32 s{S_T0}, s{S_T0}, 3")
        e(f"s_xor_b32 s{S_HKV}, s{S_T0}, s2")
        e(f"s_and_b32 s{S_HKV}, s{S_HKV}, 15")
    else:
        e(f"s_and_b32 s{S_HKV}, s2, 15")
    e(f"s_lshr_b32 s{S_BP}, s2, 4")
    if stamps:
        for i in range(1, NST): e(f"s_mov_b32 s{64+2*i}, s64")
    e(f"s_cmp_lt_u32 s{S_WAVE}, 4")
    e("s_cbranch_scc1 L_kv")

    def consts():
        e(f"s_mov_b32 s{S_LO}, 0x05040100")
        e(f"s_mov_b32 s{S_HI}, 0x07060302")
        e(f"s_mov_b32 s{S_MASK}, 0xff00ff00")
        e(f"s_mov_b32 s{S_MASK+1}, 0xff00ff00")
    def unit_mma(buf, bfrag, acc, first, T0):
        def perms(i):
            w_, h = i >> 1, i & 1
            sel = S_HI if h else S_LO
            T = T0 + (i & 1) * 4
            for u_ in range(4):
                e(f"v_perm_b32 v{T+u_}, v{buf+(2*u_+1)*4+w_}, v{buf+(2*u_)*4+w_}, s{sel}")
        perms(0)
        for i in range(8):
            if i + 1 < 8: perms(i + 1)
            else: e("s_nop 1")
            T = T0 + (i & 1) * 4
            cc = "0" if first else vr(acc+4*i, 4)
            e(f"v_mfma_f32_16x16x32_bf16 {vr(acc+4*i,4)}, {vr(T,4)}, {vr(bfrag,4)}, {cc}")
    def wait_flag(lab, off, val, vz, vt, slp_=1, hook=None):
        e.label(lab)
        if hook: hook()
        e(f"ds_read_b32 v{vt}, v{vz} offset:{off-SB}")
        e("s_waitcnt lgkmcnt(0)")
        e(f"v_readfirstlane_b32 s{S_T0}, v{vt}")
        e(f"s_cmp_ge_u32 s{S_T0}, {val}")
        e(f"s_cbranch_scc1 {lab}_d")
        e(f"s_sleep {slp_}")
        e(f"s_branch {lab}")
        e.label(lab + "_d")

    V_WOFF, XO, V_QW = 1, 2, 7
    if qprio: e(f"s_setprio {qprio}")
    e(f"v_lshlrev_b32 v{V_T0}, 16, v{V_G}")
    e(f"v_lshl_add_u32 v{V_WOFF}, v{V_N}, 4, v{V_T0}")
    e(f"v_and_b32 v{V_T1}, 7, v{V_N}")
    e(f"v_mul_u32_u24 v{V_T0}, 1152, v{V_T1}")
    e(f"v_lshl_add_u32 v{V_T0}, v{V_G}, 4, v{V_T0}")
    e(f"s_mul_i32 s{S_U}, s{S_BP}, 9")
    e(f"s_lshr_b32 s{S_U}, s{S_U}, 4")
    e(f"v_lshrrev_b32 v{V_T2}, 3, v{V_N}")
    e(f"v_add_u32 v{V_AL}, s{S_U}, v{V_T2}")
    e(f"v_lshlrev_b32 v{V_AL}, 6, v{V_AL}")
    e(f"s_mov_b32 s{S_WQ+3}, 0x00020000")
    e(f"s_mov_b32 s{S_X+3}, 0x00020000")
    e(f"s_and_b32 s{S_T1}, s{S_WAVE}, 1")
    e(f"s_bfe_u32 s{S_T3}, s{S_WAVE}, 0x10001")
    e(f"s_mul_i32 s{S_T2}, s{S_T1}, {288*8192}")
    e(f"s_lshl_b32 s{S_T0}, s{S_HKV}, 9")
    e(f"s_add_u32 s{S_T2}, s{S_T2}, s{S_T0}")
    e(f"s_lshl_b32 s{S_T0}, s{S_T3}, 8")
    e(f"s_add_u32 s{S_T2}, s{S_T2}, s{S_T0}")
    e(f"s_sub_u32 s{S_WQ+2}, {576*8192}, s{S_T2}")
    e(f"s_mul_i32 s{S_IT}, s{S_T1}, 576")
    e(f"s_mul_i32 s{S_T0}, s{S_BP}, {8*1152}")
    e(f"s_add_u32 s{S_IT}, s{S_IT}, s{S_T0}")
    e(f"s_sub_u32 s{S_X+2}, {128*1152}, s{S_IT}")
    for i in range(5):
        e(f"v_add_u32 v{V_MC}, {i*128}, v{V_AL}")
        e(f"v_add_u32 v{V_L}, {i*128-576}, v{V_AL}")
        e(f"v_min_u32 v{V_MC}, v{V_MC}, v{V_L}")
        e(f"v_add_u32 v{XO+i}, v{V_MC}, v{V_T0}")
    e("s_waitcnt lgkmcnt(0)")
    e(f"s_add_u32 s{S_WQ}, s38, s{S_T2}")
    e(f"s_addc_u32 s{S_WQ+1}, s39, 0")
    e(f"s_add_u32 s{S_X}, s32, s{S_IT}")
    e(f"s_addc_u32 s{S_X+1}, s33, 0")
    stamp(1)
    for i in range(5):
        e(f"buffer_load_dwordx4 {vr(XF+4*i,4)}, v{XO+i}, s[{S_X}:{S_X+3}], 0 offen")
    def q_setup():
        consts()
        e(f"v_mul_u32_u24 v{V_T0}, {QP_ROW}, v{V_T1}")
        e(f"v_lshl_add_u32 v{V_T2}, v{V_G}, 1, v{V_T2}")
        e(f"v_lshl_add_u32 v{V_T0}, v{V_T2}, 6, v{V_T0}")
        e(f"s_mul_i32 s{S_T0}, s{S_T1}, {8*QP_ROW}")
        e(f"s_lshl_b32 s{S_T3}, s{S_T3}, 9")
        e(f"s_add_u32 s{S_T0}, s{S_T0}, s{S_T3}")
        e(f"s_add_u32 s{S_T0}, s{S_T0}, {LDS_QP}")
        e(f"v_add_u32 v{V_QW}, s{S_T0}, v{V_T0}")
        e(f"v_mov_b32 v{V_MC}, {SB}")
        e(f"v_mov_b32 v{V_L}, 1")
    def q_comp(s_):
        xb = XB + 4 * (s_ & 1); xf = XF + 4 * (s_ >> 1)
        for r in range(4):
            e(f"v_mov_b32_dpp v{xb+r}, v{xf+r} quad_perm:[0,1,2,3] row_mask:0xf bank_mask:{'0xc' if s_ & 1 else '0x3'}")
            e(f"v_mov_b32_dpp v{xb+r}, v{xf+r} row_ror:8 row_mask:0xf bank_mask:{'0x3' if s_ & 1 else '0xc'}")
        unit_mma(WB + 32 * (s_ % nwb), xb, QA, s_ == 0, QT)
    if meter:
        qg, qlw = meter['qg'], meter['qlw']
        done = 0
        for i in range(0, 72, qg):
            if i > 0: e(f"s_waitcnt vmcnt({qlw})")
            landed = max(0, i - qlw) if i > 0 else 0
            for t in range(i, i + qg):
                s_, tt = t >> 3, t & 7
                assert s_ - done < nwb
                if tt == 0: e(f"s_lshl_b32 s{S_OFF}, s{S_U}, 18")
                e(f"buffer_load_dwordx4 {vr(WB+32*(s_%nwb)+4*tt,4)}, v{V_WOFF}, s[{S_WQ}:{S_WQ+3}], s{S_OFF} offen {wpol}")
                if tt < 7: e(f"s_add_u32 s{S_OFF}, s{S_OFF}, 8192")
                elif s_ < 8:
                    e(f"s_add_u32 s{S_U}, s{S_U}, 1")
                    e(f"s_cmp_eq_u32 s{S_U}, 9")
                    e(f"s_cselect_b32 s{S_U}, 0, s{S_U}")
            if i == 0:
                q_setup()
                e("s_barrier")
            if landed >= 8 * (done + 1):
                q_comp(done); done += 1
        stamp(2)
        while done < 9:
            e(f"s_waitcnt vmcnt({72 - 8*(done+1)})")
            q_comp(done); done += 1
    else:
        def q_issue(s_):
            if s_ == nwarm: e("s_barrier")
            buf = WB + 32 * (s_ % nwb)
            e(f"s_lshl_b32 s{S_OFF}, s{S_U}, 18")
            for t in range(8):
                e(f"buffer_load_dwordx4 {vr(buf+4*t,4)}, v{V_WOFF}, s[{S_WQ}:{S_WQ+3}], s{S_OFF} offen {wpol}")
                if t < 7: e(f"s_add_u32 s{S_OFF}, s{S_OFF}, 8192")
            if s_ < nq - 1:
                e(f"s_add_u32 s{S_U}, s{S_U}, 1")
                e(f"s_cmp_eq_u32 s{S_U}, 9")
                e(f"s_cselect_b32 s{S_U}, 0, s{S_U}")
            else:
                stamp(2)
            if s_ == min(bar1, nq - 1): e("s_barrier")
        assert nwarm < qdepth
        for s_ in range(qdepth): q_issue(s_)
        consts()
        e(f"v_mul_u32_u24 v{V_T0}, {QP_ROW}, v{V_T1}")
        e(f"v_lshl_add_u32 v{V_T2}, v{V_G}, 1, v{V_T2}")
        e(f"v_lshl_add_u32 v{V_T0}, v{V_T2}, 6, v{V_T0}")
        e(f"s_mul_i32 s{S_T0}, s{S_T1}, {8*QP_ROW}")
        e(f"s_lshl_b32 s{S_T3}, s{S_T3}, 9")
        e(f"s_add_u32 s{S_T0}, s{S_T0}, s{S_T3}")
        e(f"s_add_u32 s{S_T0}, s{S_T0}, {LDS_QP}")
        e(f"v_add_u32 v{V_QW}, s{S_T0}, v{V_T0}")
        e(f"v_mov_b32 v{V_MC}, {SB}")
        e(f"v_mov_b32 v{V_L}, 1")
        assert qdepth < nwb
        for s_ in range(nq):
            nxt = s_ + qdepth
            inflight = min(nq, nxt) - s_ - 1
            e(f"s_waitcnt vmcnt({8*inflight})")
            if nxt < nq: q_issue(nxt)
            xb = XB + 4 * (s_ & 1); xf = XF + 4 * (s_ >> 1)
            for r in range(4):
                e(f"v_mov_b32_dpp v{xb+r}, v{xf+r} quad_perm:[0,1,2,3] row_mask:0xf bank_mask:{'0xc' if s_ & 1 else '0x3'}")
                e(f"v_mov_b32_dpp v{xb+r}, v{xf+r} row_ror:8 row_mask:0xf bank_mask:{'0x3' if s_ & 1 else '0xc'}")
            unit_mma(WB + 32 * (s_ % nwb), xb, QA, s_ == 0, QT)
    e("s_nop 0")
    QCC = WB + 32 * (9 % nwb)
    for i in range(8):
        for ee in range(2):
            e(f"v_cndmask_b32 v{QCC+ee*8+i}, v{QA+4*i+ee}, v{QA+4*i+2+ee}, s[{S_MASK}:{S_MASK+1}]")
    for x_ in range(4):
        e(f"ds_write_b128 v{V_QW}, {vr(QCC+4*x_,4)} offset:{16*x_}")
    e("s_mov_b64 exec, 1")
    e("s_waitcnt lgkmcnt(0)")
    e(f"ds_add_u32 v{V_MC}, v{V_L} offset:{LDS_FLAG-SB}")
    e("s_mov_b64 exec, -1")
    stamp(3)
    e("s_branch L_wo")

    e.label("L_kv")
    if kprio0: e(f"s_setprio {kprio0}")
    e(f"v_lshrrev_b32 v{V_T0}, 1, v{V_N}")
    e(f"v_lshlrev_b32 v{V_T0}, 10, v{V_T0}")
    e(f"v_and_b32 v{V_T1}, 1, v{V_N}")
    e(f"v_lshlrev_b32 v{V_T1}, 4, v{V_T1}")
    e(f"v_lshlrev_b32 v{V_T2}, 5, v{V_G}")
    e(f"v_add3_u32 v{V_KOFF}, v{V_T0}, v{V_T1}, v{V_T2}")
    e(f"v_mov_b32 v{V_Z}, 0")
    e(f"v_mov_b32 v{V_Z+1}, 0")
    e(f"v_mov_b32 v{V_T2}, {SB}")
    e(f"v_lshl_add_u32 v{V_T1}, v0, 2, v{V_T2}")
    for i in range(3): e(f"ds_write_b64 v{V_T2}, {vr(V_Z,2)} offset:{LDS_FLAG+8*i-SB}")
    if pace: e(f"ds_write_b32 v{V_T1}, v{V_Z} offset:{LDS_H-SB}")
    e(f"s_lshl_b32 s{S_T0}, s{S_BP}, 5")
    e(f"s_add_u32 s{S_T0}, s{S_T0}, s{S_HKV}")
    e(f"s_lshl_b32 s{S_T0}, s{S_T0}, 19")
    if len(npre) == 4: e(f"s_and_b32 s{S_T1}, s{S_BP}, 12")
    elif cmode == 0: e(f"s_lshl_b32 s{S_T1}, s{S_BP}, 2")
    else:
        e(f"s_bfe_u32 s{S_T1}, s2, {0x10000 + cmode - 1}")
        e(f"s_lshl_b32 s{S_T1}, s{S_T1}, 4")
        e(f"s_and_b32 s{S_NPRE}, s{S_BP}, 12")
        e(f"s_or_b32 s{S_T1}, s{S_T1}, s{S_NPRE}")
    e(f"s_lshr_b32 s{S_NPRE}, 0x{table(npre):08x}, s{S_T1}")
    e(f"s_and_b32 s{S_NPRE}, s{S_NPRE}, 15")
    e(f"s_mov_b32 s{S_K+2}, 0x880000")
    e(f"s_mov_b32 s{S_K+3}, 0x00020000")
    e(f"s_lshl_b32 s{S_OFF}, s{S_WAVE}, 13")
    e(f"s_lshl_b32 s{S_T2}, s{S_WAVE}, 16")
    e(f"s_lshl_b32 s{S_T3}, s{S_WAVE}, 14")
    e(f"s_or_b32 s{S_T2}, s{S_T2}, s{S_T3}")
    e(f"s_and_b32 s{S_T2}, s{S_T2}, 0x18000")
    e(f"s_add_u32 m0, s{S_T2}, 8192")
    e("s_waitcnt lgkmcnt(0)")
    e(f"s_add_u32 s{S_K}, s34, s{S_T0}")
    e(f"s_addc_u32 s{S_K+1}, s35, 0")
    stamp(1)
    def ld_k(buf):
        for u in range(4):
            for j in range(2):
                e(f"buffer_load_dwordx4 {vr(buf+(u*2+j)*4,4)}, v{V_KOFF}, s[{S_K}:{S_K+3}], s{S_OFF} offen offset:{u*256+j*128} {pol}")
    def ld_v(buf):
        for t in range(8):
            e(f"buffer_load_dwordx4 {vr(buf+t*4,4)}, v{V_VOFF}, s[{S_V}:{S_V+3}], s{S_OFF} offen offset:{t*256} {pol}")
    def ld_lds(lastw):
        for i in range(8):
            e(f"buffer_load_dwordx4 v{V_KOFF}, s[{S_K}:{S_K+3}], s{S_OFF} offen offset:{i*128} {pol} lds")
            e(f"s_add_u32 m0, m0, {896 if i < 7 else 8192-7*896}")
            if i < 7: e("s_nop 0")
        if lastw: e("s_waitcnt vmcnt(55)")
    def gate(g):
        e(f"s_cmp_lg_u32 s{S_NPRE}, {g}")
        e(f"s_cbranch_scc1 L_g{g}")
        e("s_barrier")
        e("s_barrier")
        e.label(f"L_g{g}")
    def k_setup(sfx=""):
        e(f"s_add_u32 s{S_V}, s36, s{S_T0}")
        e(f"s_addc_u32 s{S_V+1}, s37, 0")
        e(f"s_mov_b32 s{S_V+2}, 0x880000")
        e(f"s_mov_b32 s{S_V+3}, 0x00020000")
        e(f"s_setprio {prio[1]}")
        if prio[0] != prio[1]:
            e(f"s_cmp_ge_u32 s{S_WAVE}, 2")
            e(f"s_cbranch_scc1 L_pr{sfx}")
            e(f"s_setprio {prio[0]}")
            e.label(f"L_pr{sfx}")
        consts()
        e(f"s_mov_b32 s{S_THR}, {pace['lv']['norm'] if pace and pace.get('lv') else 0}")
        if pace:
            e(f"s_mov_b32 s{S_Q}, {-pace['b'] * 2}")
            e(f"s_mov_b32 s27, 0")
        e(f"s_mov_b32 s{S_C}, {f32(math.log2(math.e) / math.sqrt(128.0))}")
        A0, A1, A2, A3 = TMP, TMP+1, TMP+2, TMP+3
        e(f"v_lshlrev_b32 v{A0}, 11, v{V_G}")
        e(f"v_lshl_add_u32 v{V_VOFF}, v{V_N}, 4, v{A0}")
        e(f"v_lshrrev_b32 v{A3}, 3, v0")
        e(f"v_and_b32 v{A1}, 3, v{V_N}")
        e(f"v_mul_u32_u24 v{A0}, {QP_ROW}, v{A1}")
        e(f"v_bfe_u32 v{A2}, v{V_N}, 2, 1")
        e(f"v_lshl_add_u32 v{A0}, v{A2}, 9, v{A0}")
        e(f"v_lshl_add_u32 v{A0}, v{A3}, 5, v{A0}")
        e(f"v_add_u32 v{V_QRD}, {LDS_QP}, v{A0}")
        e(f"v_mul_u32_u24 v{A0}, {OB_ROW}, v{A1}")
        e(f"v_lshl_add_u32 v{A0}, v{A2}, 8, v{A0}")
        e(f"v_lshl_add_u32 v{A0}, v{A3}, 5, v{A0}")
        e(f"s_mul_i32 s{S_T0}, s{S_WAVE}, {4*OB_ROW}")
        e(f"s_add_u32 s{S_T3}, s{S_T0}, {LDS_OB}")
        e(f"v_add_u32 v{V_OBW}, s{S_T3}, v{A0}")
        e(f"v_lshlrev_b32 v{A0}, 4, v0")
        e(f"v_add_u32 v{V_LR}, s{S_T2}, v{A0}")
        e(f"v_add_u32 v{V_SA}, 8192, v{V_LR}")
        e(f"v_and_b32 v{A2}, 7, v{V_N}")
        e(f"v_lshl_add_u32 v{V_MLR}, v{A2}, 5, v{V_T2}")
        e(f"s_lshl_b32 s{S_T0}, s{S_WAVE}, 3")
        e(f"v_add_u32 v{V_MLW}, s{S_T0}, v{V_MLR}")
        e(f"v_mov_b32 v{V_FL}, {SB}")
        if pace:
            e(f"s_lshl_b32 s{S_T0}, s{S_WAVE}, 2")
            e(f"v_add_u32 v{V_H}, s{S_T0}, v{V_T2}")
        e(f"v_mov_b32 v{V_MC}, {NEG}")
        e(f"v_mov_b32 v{V_L}, 0")
        e(f"v_mov_b32 v{XT}, {NEG}")
    def qload(dst, b):
        for j in range(2):
            for ee in range(2):
                for h in range(2):
                    e(f"ds_read_b128 {vr(TMP+j*16+ee*8+h*4,4)}, v{V_QRD} offset:{b*4*QP_ROW+ee*8*QP_ROW+j*256+h*16}")
        for j in range(2):
            e(f"s_waitcnt lgkmcnt({4-4*j})")
            for i in range(4):
                e(f"v_pk_add_f32 {vr(TMP+j*16+2*i,2)}, {vr(TMP+j*16+2*i,2)}, {vr(TMP+j*16+8+2*i,2)}")
            for i in range(4):
                e(f"v_cvt_pk_bf16_f32 v{dst+j*4+i}, v{TMP+j*16+2*i}, v{TMP+j*16+2*i+1}")

    def adv():
        e(f"s_add_u32 s{S_OFF}, s{S_OFF}, 0x4000")
        e(f"s_bitcmp1_b32 s{S_OFF}, 19")
        e(f"s_cselect_b32 s{S_T0}, 0x880000, 0")
        e(f"s_xor_b32 s{S_OFF}, s{S_OFF}, s{S_T0}")
    def xreduce(r, op):
        e("s_nop 1")
        e(f"{op}_dpp v{r}, v{r}, v{r} row_ror:8 row_mask:0xf bank_mask:0xf")
        for sw in ("v_permlane32_swap_b32", "v_permlane16_swap_b32"):
            e(f"v_mov_b32 v{V_T1}, v{r}")
            e("s_nop 1")
            e(f"{sw} v{r}, v{V_T1}")
            e(f"{op} v{r}, v{r}, v{V_T1}")
    def merge(acc, dst):
        for i in range(8):
            for ee in range(2):
                e(f"v_add_f32_dpp v{dst+ee*8+i}, v{acc+4*i+ee}, v{acc+4*i+ee} row_ror:8 row_mask:0xf bank_mask:0x3")
                e(f"v_add_f32_dpp v{dst+ee*8+i}, v{acc+4*i+2+ee}, v{acc+4*i+2+ee} row_ror:8 row_mask:0xf bank_mask:0xc")
    def thp(lab):
        e(f"s_cmp_eq_u32 s{S_THR}, 0")
        e(f"s_cbranch_scc1 {lab}")
        e(f"s_sub_u32 s{S_THR}, s{S_THR}, 1")
        e("s_waitcnt vmcnt(0)")
        e.label(lab)
    LV = pace.get('lv') if pace else None
    def gate(lab):
        for i_, w_ in enumerate(LV['waits'][1:]):
            e(f"s_cmp_lt_u32 s{S_THR}, {i_+1}")
            e(f"s_cbranch_scc1 {lab}")
            e(f"s_waitcnt vmcnt({w_})")
        e.label(lab)
    def probe():
        e("s_memrealtime s[20:21]")
        e(f"ds_read_b64 {vr(V_LN,2)}, v{V_T2} offset:{LDS_LINE-SB}")
    def decide(rec, ec=False):
        e("s_waitcnt lgkmcnt(0)")
        e(f"v_readfirstlane_b32 s{S_T0}, v{V_LN}")
        e(f"v_readfirstlane_b32 s{S_T1}, v{V_LN+1}")
        if rec:
            e(f"v_or_b32_e64 v{V_LN}, 1, s20")
            e("s_mov_b64 exec, 1")
            e(f"ds_write_b32 v{V_H}, v{V_LN} offset:{LDS_H-SB}")
            e("s_mov_b64 exec, -1")
            e(f"v_add_u32 v{V_H}, 8, v{V_H}")
        e(f"s_mul_i32 s{S_T2}, s{S_T1}, s{S_Q}")
        e(f"s_ashr_i32 s{S_T2}, s{S_T2}, 5")
        e(f"s_add_u32 s{S_T0}, s{S_T0}, s{S_T2}")
        e(f"s_sub_u32 s{S_T0}, s{S_T0}, s20")
        e(f"s_ashr_i32 s{S_T0}, s{S_T0}, {pace['sh']}")
        e(f"s_max_i32 s{S_T0}, s{S_T0}, 0")
        if LV:
            e(f"s_min_i32 s{S_T0}, s{S_T0}, 7")
            e(f"s_lshl_b32 s{S_T0}, s{S_T0}, 2")
            e(f"s_lshr_b32 s{S_T0}, {table(LV['tab'])}, s{S_T0}")
            e(f"s_and_b32 s{S_T0}, s{S_T0}, 15")
            e(f"s_cmp_lg_u32 s{S_T1}, 0")
            e(f"s_cselect_b32 s{S_THR}, s{S_T0}, {LV['norm']}")
            if LV.get('endcap') and ec:
                e(f"s_cmp_ge_i32 s{S_Q}, {LV['endcap'][0]}")
                e(f"s_cselect_b32 s{S_T0}, {LV['endcap'][1]}, 15")
                e(f"s_min_u32 s{S_THR}, s{S_THR}, s{S_T0}")
        else:
            e(f"s_min_i32 s{S_T0}, s{S_T0}, {pace['nmax']}")
            e(f"s_cmp_lg_u32 s{S_T1}, 0")
            e(f"s_cselect_b32 s{S_THR}, s{S_T0}, 0")
        e(f"s_add_u32 s{S_Q}, s{S_Q}, 1")
        if stamps: e(f"s_add_u32 s27, s27, s{S_THR}")
    def ckpts(base, first=False):
        if not cks: return
        for i_, ck in enumerate(cks):
            if ck // 100 != base: continue
            if first:
                if ck == 12: stamp(2 + i_)
                continue
            e(f"s_cmp_lg_u32 s{S_IT}, {ck % 100}")
            e(f"s_cbranch_scc1 L_ck{i_}")
            stamp(2 + i_)
            e.label(f"L_ck{i_}")

    def kcomp(kb, S, lds=None, mid=None, wr=None):
        for j in range(2):
            if lds == 'pre' and j == 0: e("s_waitcnt lgkmcnt(0)")
            if lds == 'now': e(f"s_waitcnt lgkmcnt({4-4*j})")
            for u in range(4):
                cc = "0" if j == 0 else vr(ST+u*4, 4)
                e(f"v_mfma_f32_16x16x32_bf16 {vr(ST+u*4,4)}, {vr(kb+(u*2+j)*4,4)}, {vr(QF+j*4,4)}, {cc}")
        if mid: mid()
        else: e("s_nop 4")
        for u in range(4):
            a = ST + 4*u
            e(f"v_add_f32_dpp v{S+u}, v{a+1}, v{a} row_ror:8 row_mask:0xf bank_mask:0x3")
            e(f"v_add_f32_dpp v{S+u}, v{a+2}, v{a+3} row_ror:8 row_mask:0xf bank_mask:0xc")
        if wr is not None: e(f"ds_write_b128 v{wr[0]}, {vr(S,4)} offset:{wr[1]}")
        e(f"v_max3_f32 v{V_T0}, v{S}, v{S+1}, v{XT}")
        e(f"v_max3_f32 v{XT}, v{S+2}, v{S+3}, v{V_T0}")
        e(f"v_mul_f32 v{V_T0}, s{S_C}, v{XT}")
        e(f"v_sub_f32 v{V_AL}, v{V_MC}, v{V_T0}")
        e(f"v_exp_f32 v{V_AL}, v{V_AL}")
        e(f"v_mov_b32 v{V_MC}, v{V_T0}")
        for i in range(4): e(f"v_fma_f32 v{PT+i}, v{S+i}, s{S_C}, -v{V_T0}")
        for i in range(4): e(f"v_exp_f32 v{PT+i}, v{PT+i}")
        e(f"v_fma_f32 v{V_L}, v{V_L}, v{V_AL}, v{PT}")
        e(f"v_add_f32 v{V_T0}, v{PT+1}, v{PT+2}")
        e(f"v_add_f32 v{V_L}, v{V_L}, v{PT+3}")
        e(f"v_add_f32 v{V_L}, v{V_L}, v{V_T0}")

    XB_ = OA
    DEST0 = [0, 1, 2, 3, 'X', 'L', 'L', 'L']
    class St: pass
    def fresh():
        st = St(); st.iss = {'S': [], 'E': []}; st.known = {'S': 0, 'E': 0}; st.loc = {}; st.nl = 0; st.nr = 0; st.pre = None; st.n = 0
        return st
    def guard(st, ty):
        if 8 * (len(st.iss[ty]) - st.known[ty]) + 8 > 63: e("s_waitcnt vmcnt(55)")
    def issue(st, j, d):
        guard(st, 'S')
        if d == 'L':
            st.nl += 1; assert st.nl <= 3
            st.loc[j] = ('L', st.nl * 8192); ld_lds(False)
        else:
            st.loc[j] = ('R', XB_ if d == 'X' else BUF[d]); ld_k(st.loc[j][1])
        e(f"s_add_u32 s{S_OFF}, s{S_OFF}, 0x8000")
        for ty in 'SE': st.iss[ty].append(j)
    def refill(st, c, w=None):
        assert len(st.iss['E']) == 8
        st.n += 1
        e(f"s_cmp_ge_u32 s{S_WAVE}, 2")
        e(f"s_cbranch_scc1 L_ni{c}_{st.n}")
        if w is not None:
            e(f"s_waitcnt vmcnt({w})")
            st.known['S'] = max(st.known['S'], len(st.iss['S']) - w // 8)
        guard(st, 'S')
        ld_k(BUF[st.nr]); adv()
        e.label(f"L_ni{c}_{st.n}")
        st.iss['S'].append(f"R{st.nr}"); st.nr += 1
    def wait(st, c, j):
        n = {}
        for ty in 'SE':
            k = st.iss[ty].index(j) + 1
            n[ty] = None if st.known[ty] >= k else 8 * (len(st.iss[ty]) - k)
            st.known[ty] = max(st.known[ty], k)
        if n['E'] is not None and n['E'] != n['S']:
            st.n += 1
            e(f"s_cmp_lt_u32 s{S_WAVE}, 2")
            e(f"s_cbranch_scc1 L_pw{c}_{st.n}")
            e(f"s_waitcnt vmcnt({n['E']})")
            e.label(f"L_pw{c}_{st.n}")
        if n['S'] is not None: e(f"s_waitcnt vmcnt({min(n['S'], 63)})")
    def lread(off):
        for jj in range(2):
            for u in range(4):
                e(f"ds_read_b128 {vr(TMP+(u*2+jj)*4,4)}, v{V_LR} offset:{off+(u*2+jj)*1024}")
    def run(st, c, toks):
        for t in toks:
            if t[0] == 'I': issue(st, int(t[1]), t[2] if t[2] in 'XL' else int(t[2]))
            elif t[0] == 'R': refill(st, c, int(t[1:]) if len(t) > 1 else None)
            elif t[0] == 'W': wait(st, c, int(t[1]))
            elif t[0] == 'Q':
                stamp(2)
                wait_flag(f"L_wq{c}", LDS_FLAG, 4, V_T2, V_T0)
                stamp(3)
                qload(QF, 0)
            elif t[0] == 'P':
                j = int(t[1]); wait(st, c, j); lread(st.loc[j][1]); st.pre = j
            elif t[0] == 'C':
                j = int(t[1]); wait(st, c, j)
                mid = None
                if len(t) > 2:
                    def mid(): run(st, c, t[3:].split('+')); e("s_nop 2")
                if st.loc[j][0] == 'R': kcomp(st.loc[j][1], SS, mid=mid, wr=(V_LR, j*1024))
                else:
                    if st.pre != j: lread(st.loc[j][1])
                    kcomp(TMP, SS, lds='pre' if st.pre == j else 'now', mid=mid, wr=(V_LR, j*1024))
    SCH = {
        0: "I00 I11 Q W0 I22 C0 W1 I33 C1 W2 I40 C2 W3 I51 C3 W4 I62 C4 W5 I73 C5 W6 R C6 W7 R C7",
        2: "I22 I33 Q C0:I40 C1:I51 C2:I62 C3:I73 C4:R C5:R C6 C7",
        4: "I4X I5L Q C2:I62 C0 C3:I73 C1 C4 P5 R C5 W6 R C6 C7",
        5: "I5L I6L Q C3:I73 C0 C1 C2:R C4 P5 R C5 C6 C7",
        6: "I6L I7L Q P5 C0:R C1:R C5 C2 P6 C3 C6 R8 P7 C4 C7 R8",
        7: "I7L Q P5 C0:R C1:R C5 P6 C2 C6 R8 P7 C3 C7 R8 C4",
        8: "Q P5 C0:R C1:R C5 P6 C2:R C6 P7 C3:R C7 C4",
    }
    if sched: SCH.update(sched)
    classes = sorted(set(npre))
    st0 = fresh()
    import copy
    states = {}
    for j in range(classes[-1] + 1):
        if j in classes:
            states[j] = copy.deepcopy(st0)
            if j != classes[-1]:
                e(f"s_cmp_eq_u32 s{S_NPRE}, {j}")
                e(f"s_cbranch_scc1 L_path{j}")
        if j < classes[-1]: issue(st0, j, DEST0[j])
    for c in reversed(classes):
        st = states[c]
        e.label(f"L_path{c}")
        e("s_barrier")
        k_setup(str(c))
        e("s_barrier")
        run(st, c, SCH[c].split())
        assert st.nr in (2, 4) and len(st.iss['E']) == 8
        e(f"s_mov_b32 s{S_IT}, {12 + (0x100 if st.nr == 4 else 0)}")
        if c != classes[0]: e("s_branch L_pdn")
    e.label("L_pdn")
    e(f"s_cmp_ge_u32 s{S_WAVE}, 2")
    e("s_cbranch_scc1 L_kfin")
    wait_flag("L_wp", LDS_FLAG+4, 2, V_T2, V_T0)
    e(f"s_cmp_eq_u32 s{S_IT}, 12")
    e("s_cbranch_scc1 L_kloop")
    e(f"s_mov_b32 s{S_IT}, 12")
    ckpts(0, True)
    for p in range(2):
        e(f"s_waitcnt vmcnt({24-8*p})")
        if pace and p & 1: probe()
        kcomp(BUF[p], SS, wr=(V_SA, (p & 1)*32768))
        if pace and p & 1: decide(True)
    e("s_branch L_kp2")
    e.label("L_kb1")
    qload(QF, 1)
    e.label("L_kloop")
    ckpts(0)
    for p in range(4):
        if p == 2: e.label("L_kp2")
        if LV: gate(f"L_tk{p}")
        else:
            e("s_waitcnt vmcnt(8)")
            if pace: thp(f"L_tk{p}")
            if pace and p & 1: probe()
        if p >= 2:
            e(f"s_cmp_eq_u32 s{S_IT}, 1")
            e(f"s_cbranch_scc1 L_kv{p}")
        ld_k(BUF[(p+2) & 3])
        if p >= 2: e.label(f"L_kr{p}")
        if LV:
            e("s_waitcnt vmcnt(16)")
            if p & 1: probe()
        kcomp(BUF[p], SS, mid=lambda: (adv(), e("s_nop 0")), wr=(V_SA, (p & 1)*32768 + (p >> 1)*1024))
        if pace and p & 1: decide(p == 1)
    e(f"v_add_u32 v{V_SA}, 2048, v{V_SA}")
    e(f"s_sub_u32 s{S_IT}, s{S_IT}, 1")
    e(f"s_and_b32 s{S_T0}, s{S_IT}, 7")
    e("s_cbranch_scc1 L_kloop")
    e.label("L_kfin")
    e(f"v_mov_b32 v{V_T0}, v{V_MC}")
    xreduce(V_MC, "v_max_f32")
    e(f"v_sub_f32 v{V_T0}, v{V_T0}, v{V_MC}")
    e(f"v_exp_f32 v{V_T0}, v{V_T0}")
    e("s_nop 0")
    e(f"v_mul_f32 v{V_L}, v{V_L}, v{V_T0}")
    xreduce(V_L, "v_add_f32")
    e(f"ds_write_b64 v{V_MLW}, {vr(V_MC,2)} offset:{LDS_ML-SB}")
    e(f"v_mov_b32 v{V_T0}, 1")
    e(f"v_add_u32 v{V_MLW}, 256, v{V_MLW}")
    e(f"v_mov_b32 v{V_MC}, {NEG}")
    e(f"v_mov_b32 v{V_L}, 0")
    e(f"v_mov_b32 v{XT}, {NEG}")
    e(f"s_cmp_lt_u32 s{S_WAVE}, 2")
    e("s_cbranch_scc1 L_kf1")
    e(f"ds_write_b64 v{V_MLW}, {vr(V_MC,2)} offset:{LDS_ML-SB}")
    e.label("L_kf1")
    e("s_mov_b64 exec, 1")
    e("s_waitcnt lgkmcnt(0)")
    e(f"ds_add_u32 v{V_FL}, v{V_T0} offset:{LDS_FLAG+4-SB}")
    e("s_mov_b64 exec, -1")
    e(f"v_add_u32 v{V_FL}, 12, v{V_FL}")
    e(f"s_cmp_ge_u32 s{S_WAVE}, 2")
    e("s_cbranch_scc1 L_wo")
    e(f"s_cmp_lg_u32 s{S_IT}, 0")
    e("s_cbranch_scc1 L_kb1")
    stamp(5)
    e(f"v_mov_b32 v{V_SA}, v{V_LR}")
    e(f"v_mov_b32 v{V_FL}, {SB}")
    e(f"s_mov_b32 s{S_IT}, 16")
    e(f"s_mov_b32 s{S_PH}, 4")
    V_HO, V_HD = QF, QF + 1
    S_H0 = 32
    if hint:
        e(f"s_mul_i32 s{S_T0}, s{S_BP}, {GRP}")
        e(f"s_add_u32 s{S_WS}, s46, s{S_T0}")
        e(f"s_addc_u32 s{S_WS+1}, s47, 0")
        e(f"s_mov_b32 s{S_WS+2}, 0")
        e(f"s_mov_b32 s{S_WS+3}, 0x00020000")
        e(f"s_lshl_b32 s{S_T0}, s{S_HKV}, 1")
        e(f"s_add_u32 s{S_T0}, s{S_T0}, s{S_WAVE}")
        e(f"s_lshl_b32 s{S_T0}, s{S_T0}, 7")
        e(f"s_add_u32 s{S_T0}, s{S_T0}, {GD}")
        e(f"v_lshlrev_b32 v{V_HO}, 2, v0")
        e(f"v_add_u32 v{V_HO}, s{S_T0}, v{V_HO}")
        e(f"s_memrealtime s[{S_H0}:{S_H0+1}]")
        e(f"s_mov_b32 s{S_H0+2}, {hint[1]}")
        e(f"s_cmp_lt_u32 s{S_HKV}, 8")
        e(f"s_cselect_b32 s{S_H0+2}, {hint[0]}, s{S_H0+2}")
        e(f"s_mov_b32 s{S_CAP}, 0x40000")
    e.label("L_vstart")
    e.label("L_wk")
    e(f"ds_read_b32 v{V_T0}, v{V_FL} offset:{LDS_FLAG+4-SB}")
    e("s_waitcnt lgkmcnt(0)")
    e(f"v_readfirstlane_b32 s{S_T0}, v{V_T0}")
    e(f"s_cmp_lt_u32 s{S_T0}, s{S_PH}")
    e("s_cbranch_scc1 L_wk")
    e(f"ds_read_b128 {vr(TMP,4)}, v{V_MLR} offset:{LDS_ML-SB}")
    e(f"ds_read_b128 {vr(TMP+4,4)}, v{V_MLR} offset:{LDS_ML+16-SB}")
    e(f"ds_read_b128 {vr(SS,4)}, v{V_SA}")
    for i in range(16):
        e(f"v_pk_mul_f32 {vr(OA+2*i,2)}, {vr(V_Z,2)}, {vr(V_Z,2)}")
    e(f"v_add_u32 v{V_FL}, 12, v{V_FL}")
    e(f"v_add_u32 v{V_MLR}, 256, v{V_MLR}")
    e(f"s_mov_b32 s{S_PH}, 2")
    e("s_waitcnt lgkmcnt(1)")
    e(f"v_max3_f32 v{V_MC}, v{TMP}, v{TMP+2}, v{TMP+4}")
    e(f"v_max_f32 v{V_MC}, v{V_MC}, v{TMP+6}")
    for p in range(4): e(f"v_sub_f32 v{TMP+2*p}, v{TMP+2*p}, v{V_MC}")
    for p in range(4): e(f"v_exp_f32 v{TMP+2*p}, v{TMP+2*p}")
    e(f"v_mul_f32 v{V_L}, v{TMP}, v{TMP+1}")
    for p in range(1, 4): e(f"v_fmac_f32 v{V_L}, v{TMP+2*p}, v{TMP+2*p+1}")
    e(f"v_log_f32 v{V_L}, v{V_L}")
    e("s_nop 0")
    e(f"v_add_f32 v{V_MC}, v{V_MC}, v{V_L}")
    e.label("L_vloop")
    ckpts(1)
    for p in range(4):
        e("s_waitcnt lgkmcnt(0)")
        for i in range(4): e(f"v_fma_f32 v{SS+i}, v{SS+i}, s{S_C}, -v{V_MC}")
        for i in range(4): e(f"v_exp_f32 v{SS+i}, v{SS+i}")
        if p == 3: e(f"v_add_u32 v{V_SA}, 2048, v{V_SA}")
        else: e("s_nop 0")
        e(f"v_cvt_pk_bf16_f32 v{V_T0}, v{SS}, v{SS+1}")
        e(f"v_cvt_pk_bf16_f32 v{V_T1}, v{SS+2}, v{SS+3}")
        e(f"v_cndmask_b32 v{PP}, v{V_T0}, 0, s[{S_MASK}:{S_MASK+1}]")
        e(f"v_cndmask_b32 v{PP+1}, v{V_T1}, 0, s[{S_MASK}:{S_MASK+1}]")
        e(f"v_cndmask_b32 v{PP+2}, 0, v{V_T0}, s[{S_MASK}:{S_MASK+1}]")
        e(f"v_cndmask_b32 v{PP+3}, 0, v{V_T1}, s[{S_MASK}:{S_MASK+1}]")
        q_ = (p + 1) & 3
        e(f"ds_read_b128 {vr(SS,4)}, v{V_SA} offset:{(q_ & 1)*32768 + (q_ >> 1)*1024}")
        if p >= 2:
            e(f"s_cmp_eq_u32 s{S_IT}, 1")
            e(f"s_cbranch_scc1 L_vl{p}")
        if LV: gate(f"L_tv{p}")
        else:
            e("s_waitcnt vmcnt(8)")
            if pace: thp(f"L_tv{p}")
            if pace and p & 1: probe()
        ld_v(BUF[(p+2) & 3])
        adv()
        if LV:
            e("s_waitcnt vmcnt(16)")
            if p & 1: probe()
        if p >= 2:
            e(f"s_branch L_vc{p}")
            e.label(f"L_vl{p}")
            if p == 3 and not lite: stamp(6)
            e(f"s_waitcnt vmcnt({8 if p == 2 else 0})")
            if p == 3 and not lite: stamp(7)
            if p == 3 and (hint or (lite and stamps)): e("s_memrealtime s[20:21]")
            e.label(f"L_vc{p}")
        unit_mma(BUF[p], PP, OA, False, PT)
        if p == 1 and pace: decide(True, True)
    e(f"s_sub_u32 s{S_IT}, s{S_IT}, 1")
    e(f"s_and_b32 s{S_T0}, s{S_IT}, 7")
    e("s_cbranch_scc0 L_vfin")
    if pace: decide(False, True)
    e("s_branch L_vloop")
    e.label("L_vfin")
    if hint:
        e("s_waitcnt lgkmcnt(0)")
        e(f"v_mov_b32 v{V_HD}, s20")
        e("s_mov_b32 exec_hi, 0")
        e(f"buffer_store_dword v{V_HD}, v{V_HO}, s[{S_WS}:{S_WS+3}], 0 offen sc1")
        e("s_mov_b32 exec_hi, -1")
    merge(OA, TMP)
    for i in range(8):
        e(f"v_cvt_pk_bf16_f32 v{TMP+16+i}, v{TMP+2*i}, v{TMP+2*i+1}")
    e(f"ds_write_b128 v{V_OBW}, {vr(TMP+16,4)}")
    e(f"ds_write_b128 v{V_OBW}, {vr(TMP+20,4)} offset:16")
    e(f"s_cmp_lg_u32 s{S_IT}, 0")
    e("s_waitcnt lgkmcnt(0)")
    e("s_cbranch_scc1 L_vnext")
    if not lite: stamp(8)
    e("s_barrier")
    if stamps and lite: e(f"s_mov_b32 s{64+14}, s20")
    if hint:
        e("s_setprio 0")
        e(f"s_cmp_eq_u32 s{S_WAVE}, 0")
        e("s_cbranch_scc1 L_hp")
        e("s_barrier")
    e.label("L_sfin")
    if stamps:
        stamp(9); stamp(10); stamp(11)
        e("s_branch L_dump")
    else:
        e("s_endpgm")
    e.label("L_vnext")
    e(f"v_mov_b32 v{V_T0}, 1")
    e("s_mov_b64 exec, 1")
    e(f"ds_add_u32 v{V_T2}, v{V_T0} offset:{LDS_FLAG+12-SB}")
    e("s_mov_b64 exec, -1")
    e(f"v_add_u32 v{V_OBW}, {8*OB_ROW}, v{V_OBW}")
    if hint: e(f"s_mov_b32 s{S_WS+2}, {GRP}")
    if pace: decide(False)
    e("s_branch L_vstart")
    for p in (2, 3):
        e.label(f"L_kv{p}")
        ld_v(BUF[(p+2) & 3])
        e(f"s_branch L_kr{p}")

    e.label("L_wo")
    e("s_setprio 0")
    V_WO, V_BRD, V_STO, V_PL, V_OO, V_TAG, V_SB, V_IDX = 1, 5, 6, 7, 1, 2, 3, 4
    A0, A1, A2, AN, AG, AZ, AS = 232, 233, 234, 235, 236, 237, 238
    S_PW = S_OFF
    e(f"v_and_b32 v{AN}, 15, v0")
    e(f"v_lshrrev_b32 v{AG}, 4, v0")
    e(f"v_mov_b32 v{AZ}, 0")
    e(f"v_mov_b32 v{AS}, {SB}")
    e(f"s_sub_u32 s{S_T3}, s{S_WAVE}, 2")
    e(f"v_lshrrev_b32 v{A0}, 5, v0")
    e(f"v_mul_u32_u24 v{A0}, {16*1152}, v{A0}")
    e(f"v_and_b32 v{A1}, 1, v{AG}")
    e(f"v_mul_u32_u24 v{A1}, {4*1152}, v{A1}")
    e(f"v_mul_u32_u24 v{A2}, 12, v{AN}")
    e(f"v_add3_u32 v{A0}, v{A0}, v{A1}, v{A2}")
    e(f"s_mul_i32 s{S_T0}, s{S_T3}, 192")
    e(f"v_add_u32 v{V_WO}, s{S_T0}, v{A0}")
    e(f"s_mul_i32 s{S_T0}, s{S_HKV}, {256*1152}")
    e(f"s_add_u32 s{S_WO}, s40, s{S_T0}")
    e(f"s_addc_u32 s{S_WO+1}, s41, 0")
    e(f"s_mov_b32 s{S_WO+2}, {256*1152}")
    e(f"s_mov_b32 s{S_WO+3}, 0x00020000")
    e(f"s_mul_i32 s{S_T0}, s{S_BP}, {GRP}")
    e(f"s_add_u32 s{S_WS}, s46, s{S_T0}")
    e(f"s_addc_u32 s{S_WS+1}, s47, 0")
    e(f"s_mov_b32 s{S_WS+2}, {GRP}")
    e(f"s_mov_b32 s{S_WS+3}, 0x00020000")
    e(f"s_mov_b32 s{S_OUT}, s42")
    e(f"s_mov_b32 s{S_OUT+1}, s43")
    e(f"s_mov_b32 s{S_OUT+2}, {128*1152}")
    e(f"s_mov_b32 s{S_OUT+3}, 0x00020000")
    e(f"s_mov_b32 s{S_DBG}, s44")
    e(f"s_mov_b32 s{S_DBG+1}, s45")
    e(f"s_mov_b32 s{S_DBG+2}, 256")
    e(f"s_mov_b32 s{S_DBG+3}, 0x00020000")
    e(f"v_bfe_u32 v{A0}, v{AN}, 1, 1")
    e(f"v_lshrrev_b32 v{A1}, 2, v{AN}")
    e(f"v_lshl_add_u32 v{A0}, v{A0}, 2, v{A1}")
    e(f"v_mul_u32_u24 v{A0}, {OB_ROW}, v{A0}")
    e(f"v_lshl_add_u32 v{A0}, v{AG}, 5, v{A0}")
    e(f"v_and_b32 v{A1}, 1, v{AN}")
    e(f"v_lshl_add_u32 v{A0}, v{A1}, 4, v{A0}")
    e(f"v_add_u32 v{V_BRD}, {LDS_OB}, v{A0}")
    e(f"v_mul_u32_u24 v{A0}, {6*4096}, v{AG}")
    e(f"v_lshlrev_b32 v{A1}, 4, v{AN}")
    e(f"s_lshl_b32 s{S_T0}, s{S_T3}, 12")
    e(f"s_lshl_b32 s{S_T1}, s{S_HKV}, 8")
    e(f"s_add_u32 s{S_T1}, s{S_T1}, s{S_T0}")
    e(f"v_add3_u32 v{V_STO}, v{A0}, v{A1}, s{S_T1}")
    e(f"s_lshr_b32 s{S_T1}, s{S_HKV}, 1")
    e(f"s_mul_i32 s{S_T1}, s{S_T1}, {6*4096}")
    e(f"s_add_u32 s{S_T0}, s{S_T0}, s{S_T1}")
    e(f"s_and_b32 s{S_T1}, s{S_HKV}, 1")
    e(f"s_lshl_b32 s{S_T1}, s{S_T1}, 7")
    e(f"s_add_u32 s{S_T0}, s{S_T0}, s{S_T1}")
    e(f"v_lshrrev_b32 v{A0}, 3, v0")
    e(f"v_lshlrev_b32 v{A0}, 8, v{A0}")
    e(f"v_and_b32 v{A1}, 7, v0")
    e(f"v_lshlrev_b32 v{A1}, 4, v{A1}")
    e(f"v_add3_u32 v{V_PL}, v{A0}, v{A1}, s{S_T0}")
    def call():
        if pace: e("s_call_b64 s[20:21], L_agent")
    if pace:
        e(f"s_add_u32 s16, s46, 0x400000")
        e(f"s_addc_u32 s17, s47, 0")
        e(f"s_mov_b32 s18, 0x40000")
        e(f"s_mov_b32 s19, 0x00020000")
        e(f"s_cmp_eq_u32 s{S_WAVE}, {pace.get('wave', 7)}")
        e(f"s_cselect_b32 s22, {8*pace['q0']}, 0x1000")
        e(f"s_mov_b32 s23, 0")
        e(f"s_lshr_b32 s{S_T0}, s2, 5")
        e(f"s_lshl_b32 s{S_T0}, s{S_T0}, 3")
        e(f"s_and_b32 s{S_T1}, s2, 7")
        e(f"s_add_u32 s{S_T0}, s{S_T0}, s{S_T1}")
        e(f"s_lshl_b32 s4, s{S_T0}, 4")
        e(f"s_add_u32 s4, s4, {1152*pace['lag']}")
    e(f"s_lshl_b32 s{S_T0}, s2, 3")
    e(f"s_add_u32 s{S_T0}, s{S_T0}, s{S_WAVE}")
    e(f"s_cmp_lg_u32 s{S_T0}, 7")
    e("s_cbranch_scc1 L_notag")
    e(f"s_memrealtime s[{S_T1}:{S_T1+1}]")
    e("s_waitcnt lgkmcnt(0)")
    e(f"s_or_b32 s{S_T1}, s{S_T1}, 1")
    e(f"v_mov_b32 v{A1}, s{S_T1}")
    e("s_mov_b64 exec, 1")
    e(f"buffer_store_dword v{A1}, v{AZ}, s[{S_DBG}:{S_DBG+3}], 0 offen sc1")
    e("s_mov_b64 exec, -1")
    e.label("L_notag")
    if wostart:
        wait_flag("L_ws", LDS_FLAG+4, wostart, AS, A0, 8)
    stamp(4)
    def hook():
        if pace:
            call(); e("s_waitcnt vmcnt(0)")
    if wob:
        e(f"s_lshr_b32 s{S_T0}, s{S_BP}, 2")
        e(f"s_and_b32 s{S_T0}, s{S_T0}, {wob[2]-1}")
        e(f"s_lshl_b32 s{S_T0}, s{S_T0}, 3")
        e(f"v_add_u32 v{A2}, s{S_T0}, v{AS}")
    for j in range(4):
        for hh in range(2):
            for t in range(8):
                if wob and t % wog == 0:
                    gi = ((j*2+hh)*8 + t) // wog
                    wait_flag(f"L_wb{gi}", LDS_H + 8*int(wob[0] + gi*wob[1]), 1, A2, A0, 4, hook)
                if t % 4 == 0 or (wob and t % wog == 0): e(f"s_mov_b32 s{S_T0}, {(64*j+32*hh+(t>>2)*8)*1152}")
                e(f"buffer_load_dwordx3 {vr(BF+4*t,3)}, v{V_WO}, s[{S_WO}:{S_WO+3}], s{S_T0} offen offset:{(t%4)*1152} {wopol}")
                if (t + 1) % wog == 0:
                    call()
                    e("s_waitcnt vmcnt(0)")
            for i in range(6):
                w_, h = i >> 1, i & 1
                sel = S_HI if h else S_LO
                for r in range(4):
                    tl = (r & 1) * 4 + ((r >> 1) & 1) * 2
                    e(f"v_perm_b32 v{WF+(j*6+i)*8+hh*4+r}, v{BF+(tl+1)*4+w_}, v{BF+tl*4+w_}, s{sel}")
    stamp(5)
    e(f"s_lshl_b32 s{S_T0}, s{S_BP}, 3")
    e(f"s_lshr_b32 s{S_T1}, s{S_HKV}, 1")
    e(f"s_add_u32 s{S_T0}, s{S_T0}, s{S_T1}")
    e(f"s_mul_i32 s{S_T0}, s{S_T0}, 1152")
    e(f"s_mul_i32 s{S_T1}, s{S_T3}, 192")
    e(f"s_add_u32 s{S_T0}, s{S_T0}, s{S_T1}")
    e(f"s_and_b32 s{S_T1}, s{S_HKV}, 1")
    e(f"s_mul_i32 s{S_T1}, s{S_T1}, 96")
    e(f"s_add_u32 s{S_T0}, s{S_T0}, s{S_T1}")
    e(f"v_mul_u32_u24 v{A0}, 12, v{AN}")
    e(f"v_lshl_add_u32 v{A0}, v{AG}, 2, v{A0}")
    e(f"v_add_u32 v{V_OO}, s{S_T0}, v{A0}")
    e(f"s_cmp_lg_u32 s{S_WAVE}, 3")
    e("s_cbranch_scc1 L_nochk")
    e(f"s_mov_b32 s{S_T1}, 0x40000")
    e.label("L_chk")
    e(f"buffer_load_dword v{A0}, v{AZ}, s[{S_DBG}:{S_DBG+3}], 0 offen sc1")
    e("s_waitcnt vmcnt(0)")
    e(f"v_readfirstlane_b32 s{S_T0}, v{A0}")
    e(f"s_sub_u32 s{S_T1}, s{S_T1}, 1")
    e("s_cbranch_scc1 L_chkd")
    e(f"s_cmp_lg_u32 s{S_T0}, 0")
    e("s_cbranch_scc1 L_chkd")
    e("s_sleep 8")
    e("s_branch L_chk")
    e.label("L_chkd")
    e(f"ds_write_b32 v{AS}, v{A0} offset:{LDS_FLAG+8-SB}")
    e(f"v_mov_b32 v{A1}, 1")
    e("s_mov_b64 exec, 1")
    e("s_waitcnt lgkmcnt(0)")
    e(f"ds_add_u32 v{AS}, v{A1} offset:{LDS_FLAG+12-SB}")
    e("s_mov_b64 exec, -1")
    e.label("L_nochk")
    AF, G, G0, SEL, DD = 200, 216, 220, 224, 228
    F = AF
    e(f"v_mov_b32 v{V_SB}, {SB}")
    e(f"v_and_b32 v{A1}, 1, v0")
    e(f"v_mul_u32_u24 v{V_IDX}, 0xaaaa, v{A1}")
    e(f"v_add_u32 v{V_IDX}, 0x4444, v{V_IDX}")
    e(f"v_lshlrev_b32 v{A1}, 4, v{A1}")
    e(f"v_mov_b32 v{A2}, 0x3f80")
    e(f"v_lshlrev_b32 v{A1}, v{A1}, v{A2}")
    e(f"v_and_b32 v{A2}, 14, v0")
    for q in range(3):
        e(f"v_cmp_eq_u32 vcc, {4*q}, v{A2}")
        e("s_nop 1")
        e(f"v_cndmask_b32 v{SEL+q}, 0, v{A1}, vcc")
    e(f"v_mov_b32 v{SEL+3}, 0")
    e(f"s_mov_b32 s{S_PW}, 0")
    e(f"s_mov_b32 s{S_WS+2}, 0")
    e(f"s_mov_b32 s{S_OUT+2}, 0")
    e(f"s_mov_b32 s{S_CAP}, 0")
    wait_flag("L_w0", LDS_FLAG+12, 3, V_SB, F, 8, hook)
    call()
    if pace:
        e("s_waitcnt vmcnt(0)")
        e("s_mov_b32 s23, 0")
    e(f"ds_read_b32 v{V_TAG}, v{V_SB} offset:{LDS_FLAG+8-SB}")
    for i in range(24): e(f"v_mov_b32 v{PA+i}, 0")
    e("s_waitcnt lgkmcnt(0)")
    e(f"v_mov_b32 v{G+3}, v{V_TAG}")
    e("s_branch L_tail")
    e.label("L_barB")
    e("s_mov_b64 exec, -1")
    e("s_waitcnt vmcnt(0)")
    if pace:
        e.label("L_agl")
        e(f"s_cmp_gt_u32 s22, {8*pace['qend']}")
        e("s_cbranch_scc1 L_agd")
        call()
        e("s_waitcnt vmcnt(0)")
        e("s_sleep 4")
        e("s_branch L_agl")
        e.label("L_agd")
        call()
    for i in range(24): e(f"v_mov_b32 v{PA+i}, 0")
    for i in range(4): e(f"v_mov_b32 v{G0+i}, v{G+i}")
    e(f"v_add_u32 v{V_BRD}, {8*OB_ROW}, v{V_BRD}")
    e(f"s_mov_b32 s{S_PW}, {4*6*4096}")
    e(f"s_mov_b32 s{S_WS+2}, {GRP}")
    e(f"s_mov_b32 s{S_OUT+2}, {128*1152}")
    e(f"s_mov_b32 s{S_CAP}, 0x40000")
    if warm is not None:
        for x_ in range(2):
            e(f"buffer_load_dwordx4 {vr(F+4*x_,4)}, v{V_PL}, s[{S_WS}:{S_WS+3}], 0 offen offset:{2048*x_} {warm}")
        e("s_waitcnt vmcnt(0)")
    if g0early: e(f"buffer_store_dwordx4 {vr(G0,4)}, v{V_STO}, s[{S_WS}:{S_WS+3}], 0 offen {spol}")
    if tprio: e(f"s_setprio {tprio}")
    stamp(6)
    e("s_barrier")
    if not lite: stamp(7)
    e.label("L_tail")
    for j in range(4):
        e(f"ds_read_b128 {vr(AF+4*j,4)}, v{V_BRD} offset:{j*128}")
    if not g0early: e(f"buffer_store_dwordx4 {vr(G0,4)}, v{V_STO}, s[{S_WS}:{S_WS+3}], 0 offen {spol}")
    def adds(i):
        e(f"v_pk_add_f32 {vr(PA+4*i,2)}, {vr(PA+4*i,2)}, {vr(PA+4*i+2,2)}")
        e(f"v_add_f32 v{PA+4*i}, v{PA+4*i}, v{PA+4*i+1}")
        if i & 1: e(f"v_cvt_pk_bf16_f32 v{G+(i>>1)}, v{PA+4*i-4}, v{PA+4*i}")
    for i in range(6):
        for j in range(4):
            if i == 0: e(f"s_waitcnt lgkmcnt({3-j})")
            e(f"v_smfmac_f32_16x16x64_bf16 {vr(PA+4*i,4)}, {vr(AF+4*j,4)}, {vr(WF+(j*6+i)*8,8)}, v{V_IDX}")
        if i >= 2: adds(i - 2)
    e("s_nop 0")
    adds(4)
    e("s_nop 1")
    adds(5)
    e(f"buffer_store_dwordx4 {vr(G,4)}, v{V_STO}, s[{S_WS}:{S_WS+3}], s{S_PW} offen {spol}")
    e("s_setprio 0")
    stamp(8)
    if hint:
        HA, HD = PA, PA + 1
        e(f"s_cmp_lg_u32 s{S_PW}, 0")
        e("s_cbranch_scc1 L_hb")
        if hwarm: e(f"s_mov_b32 s{S_WS+2}, {GRP}")
        e.label("L_hp")
        if hd: e(f"s_sleep {hd}")
        e(f"v_lshlrev_b32 v{HA}, 7, v0")
        e(f"v_add_u32 v{HA}, {GD}, v{HA}")
        e("s_mov_b32 exec_hi, 0")
        e(f"s_mov_b32 s{S_T3}, s{S_CAP}")
        e.label("L_h1")
        e(f"buffer_load_dword v{HD+1}, v{HA}, s[{S_WS}:{S_WS+3}], 0 offen sc1")
        e("s_waitcnt vmcnt(0)")
        e(f"v_subrev_u32 v{HD}, s{S_H0}, v{HD+1}")
        e("s_mov_b32 exec_lo, -1")
        e.label("L_h2")
        e(f"s_memrealtime s[{S_T1}:{S_T1+1}]")
        e("s_waitcnt lgkmcnt(0)")
        e(f"s_sub_u32 s{S_T1}, s{S_T1}, s{S_H0}")
        e(f"s_sub_u32 s{S_T2}, s{S_T1}, s{S_H0+2}")
        e(f"s_add_u32 s{S_T1}, s{S_T1}, 8")
        e(f"v_cmp_lt_u32 s[{S_MASK}:{S_MASK+1}], s{S_T2}, v{HD}")
        e(f"v_cmp_lt_u32 vcc, s{S_T1}, v{HD}")
        e(f"s_sub_u32 s{S_T3}, s{S_T3}, 1")
        e("s_cbranch_scc1 L_h3")
        e(f"s_cmp_eq_u32 s{S_MASK}, 0")
        e("s_cbranch_scc1 L_h3")
        e("s_cmp_eq_u32 vcc_lo, 0")
        e("s_cbranch_scc1 L_h2")
        e("s_mov_b32 exec_lo, vcc_lo")
        if len(hint) > 2: e(f"s_sleep {hint[2]}")
        e("s_branch L_h1")
        e.label("L_h3")
        e("s_mov_b64 exec, -1")
        e(f"s_cmp_lg_u32 s{S_WAVE}, 0")
        if hwarm: e(f"s_mov_b32 s{S_WS+2}, 0")
        e("s_cbranch_scc1 L_hc")
        e("s_barrier")
        if stamps:
            stamp(8)
            e("s_branch L_sfin")
        else: e("s_endpgm")
        e.label("L_hb")
        e("s_barrier")
        e.label("L_hc")
    e(f"s_mov_b32 s{S_T1}, s{S_CAP}")
    if pp:
        SL = [208, 232, 240, 248][:pp['d']]
        D = len(SL)
        MS = S_MASK
        def issue(k):
            for x_ in range(2):
                e(f"buffer_load_dwordx4 {vr(SL[k]+4*x_,4)}, v{V_PL}, s[{S_WS}:{S_WS+3}], 0 offen offset:{2048*x_} {ppol}")
        e(f"v_mov_b32 v{F+3}, 0")
        e(f"v_mov_b32 v{F+7}, 0")
        e(f"s_mov_b64 s[{MS}:{MS+1}], -1")
        if pp['d0']: e(f"s_sleep {pp['d0']}")
        for k in range(D):
            issue(k)
            if k < D - 1: e(f"s_sleep {pp['gap']}")
        e.label("L_poll")
        for k in range(D):
            e(f"s_waitcnt vmcnt({2*(D-1)})")
            e(f"v_cmp_eq_u32 vcc, v{SL[k]+3}, v{V_TAG}")
            e(f"v_cmp_eq_u32 s[{S_T2-1}:{S_T2}], v{SL[k]+7}, v{V_TAG}")
            e(f"s_and_b64 exec, vcc, s[{S_T2-1}:{S_T2}]")
            e(f"s_andn2_b64 s[{MS}:{MS+1}], s[{MS}:{MS+1}], exec")
            for x_ in range(2):
                e(f"v_mov_b64 {vr(F+4*x_,2)}, {vr(SL[k]+4*x_,2)}")
                e(f"v_mov_b32 v{F+4*x_+2}, v{SL[k]+4*x_+2}")
            e("s_cbranch_scc0 L_pdone")
            e(f"s_mov_b64 exec, s[{MS}:{MS+1}]")
            e(f"s_sub_u32 s{S_CAP}, s{S_CAP}, 1")
            e("s_cbranch_scc1 L_pdone")
            if pp.get('bo'):
                e(f"s_bcnt1_i32_b64 s{S_T0}, exec")
                e(f"s_cmp_lt_u32 s{S_T0}, {pp['bo'][0]}")
                e(f"s_cbranch_scc1 L_pb{k}")
                e(f"s_sleep {pp['bo'][1]}")
                e.label(f"L_pb{k}")
            issue(k)
        e("s_branch L_poll")
        e.label("L_pdone")
        e("s_mov_b64 exec, -1")
        stamp(9)
        e("s_nop 0")
    else:
        if pbo: e.label("L_pbo")
        if pdelay: e(f"s_sleep {pdelay}")
        e.label("L_poll")
        for x_ in range(2):
            e(f"buffer_load_dwordx4 {vr(F+4*x_,4)}, v{V_PL}, s[{S_WS}:{S_WS+3}], 0 offen offset:{2048*x_} {ppol}")
        e("s_waitcnt vmcnt(0)")
        e(f"v_cmp_ne_u32 vcc, v{F+3}, v{V_TAG}")
        e(f"v_cmp_ne_u32 s[{S_MASK}:{S_MASK+1}], v{F+7}, v{V_TAG}")
        e(f"s_or_b64 exec, vcc, s[{S_MASK}:{S_MASK+1}]")
        e("s_cbranch_scc0 L_pdone")
        e(f"s_sub_u32 s{S_T1}, s{S_T1}, 1")
        if pbo:
            e("s_cbranch_scc1 L_pdone")
            e("s_cmp_eq_u64 exec, -1")
            e("s_cbranch_scc0 L_poll")
            e("s_branch L_pbo")
        elif slp is None:
            e("s_cbranch_scc0 L_poll")
        else:
            e("s_cbranch_scc1 L_pdone")
            e(f"s_bcnt1_i32_b64 s{S_T0}, exec")
            e(f"s_cmp_lt_u32 s{S_T0}, {slp[2]}")
            e("s_cbranch_scc1 L_poll")
            e(f"s_sleep {slp[3]}")
            e(f"s_cmp_lt_u32 s{S_T0}, {slp[0]}")
            e("s_cbranch_scc1 L_poll")
            e(f"s_sleep {slp[1]}")
            e("s_branch L_poll")
        e.label("L_pdone")
        e("s_mov_b64 exec, -1")
        stamp(9)
        e(f"v_mov_b32 v{F+3}, 0")
        e(f"v_mov_b32 v{F+7}, 0")
        e("s_nop 0")
    e(f"v_mfma_f32_16x16x32_bf16 {vr(DD,4)}, {vr(SEL,4)}, {vr(F,4)}, 0")
    e(f"v_mfma_f32_16x16x32_bf16 {vr(DD,4)}, {vr(SEL,4)}, {vr(F+4,4)}, {vr(DD,4)}")
    e("s_mov_b32 vcc_lo, 0x00ff00ff")
    e("s_mov_b32 vcc_hi, 0x000000ff")
    e("s_nop 5")
    for k in range(2):
        e(f"v_add_f32_dpp v{DD+k}, v{DD+k}, v{DD+k} row_ror:8 row_mask:0xf bank_mask:0xf")
    e("s_mov_b64 exec, vcc")
    e(f"v_cvt_pk_bf16_f32 v{DD+2}, v{DD}, v{DD+1}")
    e(f"buffer_store_dword v{DD+2}, v{V_OO}, s[{S_OUT}:{S_OUT+3}], 0 offen {opol}")
    e(f"s_cmp_eq_u32 s{S_PW}, 0")
    e("s_cbranch_scc1 L_barB")
    if stamps:
        e("s_mov_b64 exec, -1")
        stamp(10)
        e("s_waitcnt vmcnt(0)")
        stamp(11)
        e.label("L_dump")
        e(f"s_add_u32 s{S_WS}, s46, 0x800000")
        e(f"s_addc_u32 s{S_WS+1}, s47, 0")
        e(f"s_mov_b32 s{S_WS+2}, 0x100000")
        e(f"s_mov_b32 s{S_WS+3}, 0x00020000")
        e(f"s_lshl_b32 s{S_T0}, s2, 3")
        e(f"s_add_u32 s{S_T0}, s{S_T0}, s{S_WAVE}")
        e(f"s_lshl_b32 s{S_T0}, s{S_T0}, 6")
        e("v_mov_b32 v1, 0")
        for i in range(NST):
            e(f"v_mov_b32 v2, s{64+2*i}")
            e(f"buffer_store_dword v2, v1, s[{S_WS}:{S_WS+3}], s{S_T0} offen offset:{4*i}")
        e(f"s_getreg_b32 s{S_T1}, hwreg(HW_REG_XCC_ID)")
        e(f"v_mov_b32 v2, s{S_T1}")
        e(f"buffer_store_dword v2, v1, s[{S_WS}:{S_WS+3}], s{S_T0} offen offset:56")
        e("v_mov_b32 v2, s27" if pace else "v_mov_b32 v2, 0")
        e(f"buffer_store_dword v2, v1, s[{S_WS}:{S_WS+3}], s{S_T0} offen offset:52")
    e.label("L_end")
    e("s_endpgm")
    if pace:
        RS = 1152
        step, span, lag = pace['step'], pace['span'], pace['lag']
        R, T_, REF, AD = 244, 248, 252, 254
        e.label("L_agent")
        e("s_cmp_eq_u32 s23, 0")
        e("s_cbranch_scc1 L_ag1")
        e("s_mov_b32 s23, 0")
        for i in range(4):
            e(f"v_sub_u32 v{R+i}, v{R+i}, v{REF}")
            e(f"v_add_u32 v{T_+i}, 0x1000, v{R+i}")
        e(f"v_max_u32 v{T_}, v{T_}, v{T_+1}")
        e(f"v_max3_u32 v{T_}, v{T_}, v{T_+2}, v{T_+3}")
        e(f"v_cmp_gt_u32 vcc, 0x1200, v{T_}")
        e(f"v_add_u32 v{R}, v{R}, v{R+1}")
        e(f"v_add_u32 v{R+1}, v{R+2}, v{R+3}")
        e(f"v_cvt_f32_i32 v{R}, v{R}")
        e(f"v_cvt_f32_i32 v{R+1}, v{R+1}")
        e(f"v_cndmask_b32 v{R}, 0, v{R}, vcc")
        e(f"v_cndmask_b32 v{R+1}, 0, v{R+1}, vcc")
        e(f"s_bcnt1_i32_b64 s5, vcc")
        for sh_ in (8, 4, 2, 1):
            e("s_nop 0")
            for r_ in (R, R+1):
                e(f"v_add_f32_dpp v{r_}, v{r_}, v{r_} row_ror:{sh_} row_mask:0xf bank_mask:0xf")
        for op in ("v_permlane32_swap_b32", "v_permlane16_swap_b32"):
            e(f"v_mov_b32 v{R+2}, v{R}")
            e(f"v_mov_b32 v{R+3}, v{R+1}")
            e("s_nop 1")
            e(f"{op} v{R}, v{R+2}")
            e(f"{op} v{R+1}, v{R+3}")
            e("s_nop 1")
            e(f"v_add_f32 v{R}, v{R}, v{R+2}")
            e(f"v_add_f32 v{R+1}, v{R+1}, v{R+3}")
        e(f"v_cvt_f32_u32 v{R+2}, s5")
        e(f"v_rcp_f32 v{R+2}, v{R+2}")
        e(f"v_sub_f32 v{R}, v{R+1}, v{R}")
        e(f"v_mul_f32 v{R}, {f32((1.0 - pace.get('eps', 0.0)) / (2 * span))}, v{R}")
        e(f"v_mul_f32 v{R+1}, 0.5, v{R+1}")
        e(f"v_mul_f32 v{R}, v{R}, v{R+2}")
        e(f"v_mul_f32 v{R+1}, v{R+1}, v{R+2}")
        e(f"s_sub_i32 s6, {8*(pace['b'] + step + lag)}, s22")
        e(f"v_cvt_f32_i32 v{R+3}, s6")
        e(f"v_mul_f32 v{R+3}, 0x3e000000, v{R+3}")
        e(f"v_fmac_f32 v{R+1}, v{R+3}, v{R}")
        e(f"v_mul_f32 v{R}, 0x41800000, v{R}")
        e(f"v_cvt_i32_f32 v{R+3}, v{R}")
        e(f"v_cvt_i32_f32 v{R+2}, v{R+1}")
        e(f"v_add_u32 v{R+2}, {pace['off']}, v{R+2}")
        e(f"v_add_u32 v{R+2}, v{R+2}, v{REF}")
        e(f"v_mov_b32 v{AD}, {SB}")
        e(f"s_cmp_lt_u32 s5, 32")
        e("s_cbranch_scc1 L_ag1")
        e(f"ds_write_b64 v{AD}, {vr(R+2,2)} offset:{LDS_LINE-SB}")
        e.label("L_ag1")
        e(f"s_cmp_gt_u32 s22, {8*pace['qend']}")
        e("s_cbranch_scc1 L_agr")
        e(f"s_add_u32 s5, s22, {SB}")
        e(f"v_mov_b32 v{AD}, s5")
        e(f"ds_read_b64 {vr(T_,2)}, v{AD} offset:{LDS_H-SB-8*span}")
        e(f"ds_read_b64 {vr(T_+2,2)}, v{AD} offset:{LDS_H-SB}")
        e("s_waitcnt lgkmcnt(0)")
        e(f"v_min_u32 v{REF+1}, v{T_+2}, v{T_+3}")
        e(f"v_mov_b32 v{REF}, v{T_+2}")
        e(f"v_readfirstlane_b32 s5, v{REF+1}")
        e("s_cmp_eq_u32 s5, 0")
        e("s_cbranch_scc1 L_agr")
        e(f"s_mul_i32 s5, s22, {RS//8}")
        e(f"v_lshlrev_b32 v{AD}, 4, v0")
        e(f"buffer_load_dwordx4 {vr(R,4)}, v{AD}, s[16:19], s5 offen {pace.get('rpol', '')}")
        e(f"s_add_u32 s22, s22, {8*step}")
        e("s_mov_b32 s23, 1")
        e("s_and_b32 s6, s2, 24")
        e("s_cbranch_scc1 L_agr")
        e("s_add_u32 s5, s5, s4")
        e("s_mov_b64 exec, 1")
        e(f"buffer_store_dwordx4 {vr(T_,4)}, v{AD}, s[16:19], s5 offen sc1")
        e("s_mov_b64 exec, -1")
        e.label("L_agr")
        e("s_setpc_b64 s[20:21]")

    e.raw('.section .rodata,"a"')
    e.raw(f""".p2align 6
.amdhsa_kernel {KN}
  .amdhsa_next_free_vgpr 256
  .amdhsa_next_free_sgpr 96
  .amdhsa_accum_offset 256
  .amdhsa_group_segment_fixed_size 0
  .amdhsa_kernarg_size 64
  .amdhsa_user_sgpr_count 2
  .amdhsa_user_sgpr_kernarg_segment_ptr 1
  .amdhsa_system_sgpr_workgroup_id_x 1
.end_amdhsa_kernel""")
    open(name, "w").write(e.text())
    return name

PB = dict(b=16, sh=5, nmax=2, q0=4, qend=24, step=2, span=4, lag=2, off=0)
if __name__ == "__main__":
    S = dict(stamps=True, cks=(112, 108, 104))
    L = [gen("k10_t0.s", **S), gen("k10_p0.s", pace=PB, **S), gen("k10_p12.s", pace=dict(PB, off=12), **S), gen("k10_p-12.s", pace=dict(PB, off=-12), **S)]
    print(" ".join(L))
    print(" ".join(x[:-2] for x in L))
    import json; print(json.dumps(["work/bench.py", "work/an8.py", "cdna_kernels/cdna_launch.py", "cdna_kernels/cdna_unwritten_srd_check.py"] + ["work/"+x for x in L]))
```

```python
from gen13 import gen, PB
import mk
S=dict(slp=None, pbo=True)
W=[16,12,8,4,0]
def lv(tab, off, sh=4, waits=W, norm=2, endcap=None): return dict(PB, sh=sh, off=off, lv=dict(tab=tab, waits=waits, norm=norm, endcap=endcap))
B=[0,0,1,2,2,2,3,4]
L=[gen("k13h_a.s", pace=lv(B, 68, endcap=(21,0)), npre=(0,2,4,6), pdelay=16, **S),
   gen("k13h_b.s", pace=lv(B, 68, endcap=(21,0)), npre=(0,5,8,2), pdelay=16, **S),
   gen("k13h_c.s", pace=lv(B, 68, endcap=(21,0)), npre=(0,2,4,6), pdelay=12, **S),
   gen("k13h_d.s", pace=lv(B, 68, endcap=(21,0)), npre=(0,2,4,6), pdelay=20, **S),
]
mk.show(L)
```

```python
import sys, math, struct
from gen2 import HEADER, E, vr

KN = "standalone__gqa_block_cached__sampling_kernel"
V_KOFF, V_VOFF, V_QRD, V_SA, V_MLW, V_OBW, V_MLR = 1, 2, 3, 4, 5, 6, 7
V_MC, V_L, V_AL, V_T0, V_T1, V_T2, V_N, V_G = 8, 9, 10, 11, 12, 13, 14, 15
QF, XT, V_FL, V_Z, V_LR, V_H, V_LN, OA = 16, 24, 25, 26, 28, 29, 30, 32
QF1, SH = 32, 40
BUF = [64, 96, 128, 160]
TMP, ST, PT, PP, SS = 192, 224, 240, 248, 252
XF, XB, QA, WB = 16, 36, 44, 76
WF, BF, PA = 8, 200, 232
S_K, S_V, S_WQ, S_X, S_WO, S_WS = 8, 12, 16, 20, 24, 28
S_OUT, S_DBG = 8, 12
S_WAVE, S_HKV, S_BP = 3, 48, 49
S_LO, S_HI, S_C = 50, 51, 52
S_IT, S_OFF, S_T0, S_T1, S_T2, S_T3 = 53, 54, 55, 56, 57, 58
S_NPRE = 59
S_MASK = 60
S_U, S_CAP = 62, 62
S_THR, S_Q, S_PH = 7, 6, 5
OB_ROW = 544; QP_ROW = 1040
LDS_ML = 131072
LDS_FLAG = LDS_ML + 512
LDS_OB = LDS_FLAG + 32
LDS_QP = LDS_OB + 16 * OB_ROW
LDS_H = LDS_QP + 16 * QP_ROW
LDS_LINE = LDS_H + 248
LDS_TOTAL = LDS_H + 256
NST = 12
GD = 48 * 4096
GRP = GD + 4096
NEG = "0xf149f2ca"
def f32(x): return "0x%08x" % struct.unpack("<I", struct.pack("<f", x))[0]

def gen(name, pol="nt", wpol="", wopol="", stamps=False, npre=(0,4,6,0,4,6,0,6),
        wog=2, prio=(3, 2), qdepth=3, nwb=4, wostart=2, bar1=8, nwarm=1,
        slp=(40, 16, 17, 4), qprio=3, kprio0=1, tprio=2, spol='sc1', ppol='sc1', opol='', hb=2, nq=9,
        pace=None, cks=None, g0early=False, pdelay=0, pp=None, warm=None, hint=None, lite=False, hwarm=False, hd=0, meter=None, sched=None, cmode=0, wob=None, pbo=False, dsplit=False, dsw=None, fast=False, fwarm=False, tl=None, own=False, rho=False):
    e = E()
    QT = WB + 32 * nwb
    SB = LDS_ML
    def stamp(i):
        if not stamps: return
        e(f"s_memrealtime s[{64+2*i}:{65+2*i}]")
        e("s_waitcnt lgkmcnt(0)")
    def table(vals):
        t = 0
        for i in range(8): t |= vals[i % len(vals)] << (4 * i)
        return t
    e.raw(HEADER.rstrip("\n"))
    e.raw(f"; @launch grid=(256,1,1) block=(512,1,1) lds={LDS_TOTAL}")
    if stamps: e.raw(f"; NSTAMPS={NST}")
    e.raw('.amdgcn_target "amdgcn-amd-amdhsa--gfx950"')
    e.raw(".text")
    e.raw(f".globl {KN}\n.p2align 8\n.type {KN},@function\n{KN}:")
    e("s_cmp_lt_u32 s2, 256")
    e("s_cbranch_scc1 L_main")
    e.label("L_end0")
    e("s_endpgm")
    e.label("L_main")
    stamp(0)
    e("s_load_dwordx8 s[32:39], s[0:1], 0")
    e("s_load_dwordx8 s[40:47], s[0:1], 32")
    e("v_lshrrev_b32 v1, 6, v0")
    e("v_and_b32 v0, 63, v0")
    e(f"v_readfirstlane_b32 s{S_WAVE}, v1")
    e(f"v_and_b32 v{V_N}, 15, v0")
    e(f"v_lshrrev_b32 v{V_G}, 4, v0")
    if hb == 0:
        e(f"s_and_b32 s{S_T0}, s2, 7")
        e(f"s_lshl_b32 s{S_HKV}, s{S_T0}, 1")
        e(f"s_bfe_u32 s{S_T0}, s2, 0x10003")
        e(f"s_add_u32 s{S_HKV}, s{S_HKV}, s{S_T0}")
    elif hb == 2:
        e(f"s_lshr_b32 s{S_T0}, s2, 1")
        e(f"s_xor_b32 s{S_T0}, s{S_T0}, s2")
        e(f"s_and_b32 s{S_T0}, s{S_T0}, 4")
        e(f"s_mul_i32 s{S_T0}, s{S_T0}, 3")
        e(f"s_xor_b32 s{S_HKV}, s{S_T0}, s2")
        e(f"s_and_b32 s{S_HKV}, s{S_HKV}, 15")
    else:
        e(f"s_and_b32 s{S_HKV}, s2, 15")
    e(f"s_lshr_b32 s{S_BP}, s2, 4")
    if stamps:
        for i in range(1, NST): e(f"s_mov_b32 s{64+2*i}, s64")
    e(f"s_cmp_lt_u32 s{S_WAVE}, 4")
    e("s_cbranch_scc1 L_kv")

    def consts():
        e(f"s_mov_b32 s{S_LO}, 0x05040100")
        e(f"s_mov_b32 s{S_HI}, 0x07060302")
        e(f"s_mov_b32 s{S_MASK}, 0xff00ff00")
        e(f"s_mov_b32 s{S_MASK+1}, 0xff00ff00")
    def unit_mma(buf, bfrag, acc, first, T0):
        def perms(i):
            w_, h = i >> 1, i & 1
            sel = S_HI if h else S_LO
            T = T0 + (i & 1) * 4
            for u_ in range(4):
                e(f"v_perm_b32 v{T+u_}, v{buf+(2*u_+1)*4+w_}, v{buf+(2*u_)*4+w_}, s{sel}")
        perms(0)
        for i in range(8):
            if i + 1 < 8: perms(i + 1)
            else: e("s_nop 1")
            T = T0 + (i & 1) * 4
            cc = "0" if first else vr(acc+4*i, 4)
            e(f"v_mfma_f32_16x16x32_bf16 {vr(acc+4*i,4)}, {vr(T,4)}, {vr(bfrag,4)}, {cc}")
    def wait_flag(lab, off, val, vz, vt, slp_=1, hook=None):
        e.label(lab)
        if hook: hook()
        e(f"ds_read_b32 v{vt}, v{vz} offset:{off-SB}")
        e("s_waitcnt lgkmcnt(0)")
        e(f"v_readfirstlane_b32 s{S_T0}, v{vt}")
        e(f"s_cmp_ge_u32 s{S_T0}, {val}")
        e(f"s_cbranch_scc1 {lab}_d")
        e(f"s_sleep {slp_}")
        e(f"s_branch {lab}")
        e.label(lab + "_d")

    V_WOFF, XO, V_QW = 1, 2, 7
    if qprio: e(f"s_setprio {qprio}")
    e(f"v_lshlrev_b32 v{V_T0}, 16, v{V_G}")
    e(f"v_lshl_add_u32 v{V_WOFF}, v{V_N}, 4, v{V_T0}")
    e(f"v_and_b32 v{V_T1}, 7, v{V_N}")
    e(f"v_mul_u32_u24 v{V_T0}, 1152, v{V_T1}")
    e(f"v_lshl_add_u32 v{V_T0}, v{V_G}, 4, v{V_T0}")
    e(f"s_mul_i32 s{S_U}, s{S_BP}, 9")
    e(f"s_lshr_b32 s{S_U}, s{S_U}, 4")
    e(f"v_lshrrev_b32 v{V_T2}, 3, v{V_N}")
    e(f"v_add_u32 v{V_AL}, s{S_U}, v{V_T2}")
    e(f"v_lshlrev_b32 v{V_AL}, 6, v{V_AL}")
    e(f"s_mov_b32 s{S_WQ+3}, 0x00020000")
    e(f"s_mov_b32 s{S_X+3}, 0x00020000")
    e(f"s_and_b32 s{S_T1}, s{S_WAVE}, 1")
    e(f"s_bfe_u32 s{S_T3}, s{S_WAVE}, 0x10001")
    e(f"s_mul_i32 s{S_T2}, s{S_T1}, {288*8192}")
    e(f"s_lshl_b32 s{S_T0}, s{S_HKV}, 9")
    e(f"s_add_u32 s{S_T2}, s{S_T2}, s{S_T0}")
    e(f"s_lshl_b32 s{S_T0}, s{S_T3}, 8")
    e(f"s_add_u32 s{S_T2}, s{S_T2}, s{S_T0}")
    e(f"s_sub_u32 s{S_WQ+2}, {576*8192}, s{S_T2}")
    e(f"s_mul_i32 s{S_IT}, s{S_T1}, 576")
    e(f"s_mul_i32 s{S_T0}, s{S_BP}, {8*1152}")
    e(f"s_add_u32 s{S_IT}, s{S_IT}, s{S_T0}")
    e(f"s_sub_u32 s{S_X+2}, {128*1152}, s{S_IT}")
    for i in range(5):
        e(f"v_add_u32 v{V_MC}, {i*128}, v{V_AL}")
        e(f"v_add_u32 v{V_L}, {i*128-576}, v{V_AL}")
        e(f"v_min_u32 v{V_MC}, v{V_MC}, v{V_L}")
        e(f"v_add_u32 v{XO+i}, v{V_MC}, v{V_T0}")
    e("s_waitcnt lgkmcnt(0)")
    e(f"s_add_u32 s{S_WQ}, s38, s{S_T2}")
    e(f"s_addc_u32 s{S_WQ+1}, s39, 0")
    e(f"s_add_u32 s{S_X}, s32, s{S_IT}")
    e(f"s_addc_u32 s{S_X+1}, s33, 0")
    stamp(1)
    for i in range(5):
        e(f"buffer_load_dwordx4 {vr(XF+4*i,4)}, v{XO+i}, s[{S_X}:{S_X+3}], 0 offen")
    def q_setup():
        consts()
        e(f"v_mul_u32_u24 v{V_T0}, {QP_ROW}, v{V_T1}")
        e(f"v_lshl_add_u32 v{V_T2}, v{V_G}, 1, v{V_T2}")
        e(f"v_lshl_add_u32 v{V_T0}, v{V_T2}, 6, v{V_T0}")
        e(f"s_mul_i32 s{S_T0}, s{S_T1}, {8*QP_ROW}")
        e(f"s_lshl_b32 s{S_T3}, s{S_T3}, 9")
        e(f"s_add_u32 s{S_T0}, s{S_T0}, s{S_T3}")
        e(f"s_add_u32 s{S_T0}, s{S_T0}, {LDS_QP}")
        e(f"v_add_u32 v{V_QW}, s{S_T0}, v{V_T0}")
        e(f"v_mov_b32 v{V_MC}, {SB}")
        e(f"v_mov_b32 v{V_L}, 1")
    def q_comp(s_):
        xb = XB + 4 * (s_ & 1); xf = XF + 4 * (s_ >> 1)
        for r in range(4):
            e(f"v_mov_b32_dpp v{xb+r}, v{xf+r} quad_perm:[0,1,2,3] row_mask:0xf bank_mask:{'0xc' if s_ & 1 else '0x3'}")
            e(f"v_mov_b32_dpp v{xb+r}, v{xf+r} row_ror:8 row_mask:0xf bank_mask:{'0x3' if s_ & 1 else '0xc'}")
        unit_mma(WB + 32 * (s_ % nwb), xb, QA, s_ == 0, QT)
    if meter:
        qg, qlw = meter['qg'], meter['qlw']
        done = 0
        for i in range(0, 72, qg):
            if i > 0: e(f"s_waitcnt vmcnt({qlw})")
            landed = max(0, i - qlw) if i > 0 else 0
            for t in range(i, i + qg):
                s_, tt = t >> 3, t & 7
                assert s_ - done < nwb
                if tt == 0: e(f"s_lshl_b32 s{S_OFF}, s{S_U}, 18")
                e(f"buffer_load_dwordx4 {vr(WB+32*(s_%nwb)+4*tt,4)}, v{V_WOFF}, s[{S_WQ}:{S_WQ+3}], s{S_OFF} offen {wpol}")
                if tt < 7: e(f"s_add_u32 s{S_OFF}, s{S_OFF}, 8192")
                elif s_ < 8:
                    e(f"s_add_u32 s{S_U}, s{S_U}, 1")
                    e(f"s_cmp_eq_u32 s{S_U}, 9")
                    e(f"s_cselect_b32 s{S_U}, 0, s{S_U}")
            if i == 0:
                q_setup()
                e("s_barrier")
            if landed >= 8 * (done + 1):
                q_comp(done); done += 1
        stamp(2)
        while done < 9:
            e(f"s_waitcnt vmcnt({72 - 8*(done+1)})")
            q_comp(done); done += 1
    else:
        def q_issue(s_):
            if s_ == nwarm: e("s_barrier")
            buf = WB + 32 * (s_ % nwb)
            e(f"s_lshl_b32 s{S_OFF}, s{S_U}, 18")
            for t in range(8):
                e(f"buffer_load_dwordx4 {vr(buf+4*t,4)}, v{V_WOFF}, s[{S_WQ}:{S_WQ+3}], s{S_OFF} offen {wpol}")
                if t < 7: e(f"s_add_u32 s{S_OFF}, s{S_OFF}, 8192")
            if s_ < nq - 1:
                e(f"s_add_u32 s{S_U}, s{S_U}, 1")
                e(f"s_cmp_eq_u32 s{S_U}, 9")
                e(f"s_cselect_b32 s{S_U}, 0, s{S_U}")
            else:
                stamp(2)
            if s_ == min(bar1, nq - 1): e("s_barrier")
        assert nwarm < qdepth
        for s_ in range(qdepth): q_issue(s_)
        consts()
        e(f"v_mul_u32_u24 v{V_T0}, {QP_ROW}, v{V_T1}")
        e(f"v_lshl_add_u32 v{V_T2}, v{V_G}, 1, v{V_T2}")
        e(f"v_lshl_add_u32 v{V_T0}, v{V_T2}, 6, v{V_T0}")
        e(f"s_mul_i32 s{S_T0}, s{S_T1}, {8*QP_ROW}")
        e(f"s_lshl_b32 s{S_T3}, s{S_T3}, 9")
        e(f"s_add_u32 s{S_T0}, s{S_T0}, s{S_T3}")
        e(f"s_add_u32 s{S_T0}, s{S_T0}, {LDS_QP}")
        e(f"v_add_u32 v{V_QW}, s{S_T0}, v{V_T0}")
        e(f"v_mov_b32 v{V_MC}, {SB}")
        e(f"v_mov_b32 v{V_L}, 1")
        assert qdepth < nwb
        for s_ in range(nq):
            nxt = s_ + qdepth
            inflight = min(nq, nxt) - s_ - 1
            e(f"s_waitcnt vmcnt({8*inflight})")
            if nxt < nq: q_issue(nxt)
            xb = XB + 4 * (s_ & 1); xf = XF + 4 * (s_ >> 1)
            for r in range(4):
                e(f"v_mov_b32_dpp v{xb+r}, v{xf+r} quad_perm:[0,1,2,3] row_mask:0xf bank_mask:{'0xc' if s_ & 1 else '0x3'}")
                e(f"v_mov_b32_dpp v{xb+r}, v{xf+r} row_ror:8 row_mask:0xf bank_mask:{'0x3' if s_ & 1 else '0xc'}")
            unit_mma(WB + 32 * (s_ % nwb), xb, QA, s_ == 0, QT)
    e("s_nop 0")
    QCC = WB + 32 * (9 % nwb)
    for i in range(8):
        for ee in range(2):
            e(f"v_cndmask_b32 v{QCC+ee*8+i}, v{QA+4*i+ee}, v{QA+4*i+2+ee}, s[{S_MASK}:{S_MASK+1}]")
    for x_ in range(4):
        e(f"ds_write_b128 v{V_QW}, {vr(QCC+4*x_,4)} offset:{16*x_}")
    e("s_mov_b64 exec, 1")
    e("s_waitcnt lgkmcnt(0)")
    e(f"ds_add_u32 v{V_MC}, v{V_L} offset:{LDS_FLAG-SB}")
    e("s_mov_b64 exec, -1")
    stamp(3)
    e("s_branch L_wo")

    e.label("L_kv")
    if kprio0: e(f"s_setprio {kprio0}")
    e(f"v_lshrrev_b32 v{V_T0}, 1, v{V_N}")
    e(f"v_lshlrev_b32 v{V_T0}, 10, v{V_T0}")
    e(f"v_and_b32 v{V_T1}, 1, v{V_N}")
    e(f"v_lshlrev_b32 v{V_T1}, 4, v{V_T1}")
    e(f"v_lshlrev_b32 v{V_T2}, 5, v{V_G}")
    e(f"v_add3_u32 v{V_KOFF}, v{V_T0}, v{V_T1}, v{V_T2}")
    e(f"v_mov_b32 v{V_Z}, 0")
    e(f"v_mov_b32 v{V_Z+1}, 0")
    e(f"v_mov_b32 v{V_T2}, {SB}")
    e(f"v_lshl_add_u32 v{V_T1}, v0, 2, v{V_T2}")
    for i in range(3): e(f"ds_write_b64 v{V_T2}, {vr(V_Z,2)} offset:{LDS_FLAG+8*i-SB}")
    if pace: e(f"ds_write_b32 v{V_T1}, v{V_Z} offset:{LDS_H-SB}")
    e(f"s_lshl_b32 s{S_T0}, s{S_BP}, 5")
    e(f"s_add_u32 s{S_T0}, s{S_T0}, s{S_HKV}")
    e(f"s_lshl_b32 s{S_T0}, s{S_T0}, 19")
    if len(npre) == 4: e(f"s_and_b32 s{S_T1}, s{S_BP}, 12")
    elif cmode == 0: e(f"s_lshl_b32 s{S_T1}, s{S_BP}, 2")
    else:
        e(f"s_bfe_u32 s{S_T1}, s2, {0x10000 + cmode - 1}")
        e(f"s_lshl_b32 s{S_T1}, s{S_T1}, 4")
        e(f"s_and_b32 s{S_NPRE}, s{S_BP}, 12")
        e(f"s_or_b32 s{S_T1}, s{S_T1}, s{S_NPRE}")
    e(f"s_lshr_b32 s{S_NPRE}, 0x{table(npre):08x}, s{S_T1}")
    e(f"s_and_b32 s{S_NPRE}, s{S_NPRE}, 15")
    e(f"s_mov_b32 s{S_K+2}, 0x880000")
    e(f"s_mov_b32 s{S_K+3}, 0x00020000")
    e(f"s_lshl_b32 s{S_OFF}, s{S_WAVE}, 13")
    e(f"s_lshl_b32 s{S_T2}, s{S_WAVE}, 16")
    e(f"s_lshl_b32 s{S_T3}, s{S_WAVE}, 14")
    e(f"s_or_b32 s{S_T2}, s{S_T2}, s{S_T3}")
    e(f"s_and_b32 s{S_T2}, s{S_T2}, 0x18000")
    e(f"s_add_u32 m0, s{S_T2}, 8192")
    e("s_waitcnt lgkmcnt(0)")
    e(f"s_add_u32 s{S_K}, s34, s{S_T0}")
    e(f"s_addc_u32 s{S_K+1}, s35, 0")
    stamp(1)
    def ld_k(buf):
        for u in range(4):
            for j in range(2):
                e(f"buffer_load_dwordx4 {vr(buf+(u*2+j)*4,4)}, v{V_KOFF}, s[{S_K}:{S_K+3}], s{S_OFF} offen offset:{u*256+j*128} {pol}")
    def ld_v(buf, vo=V_VOFF):
        for t in range(8):
            e(f"buffer_load_dwordx4 {vr(buf+t*4,4)}, v{vo}, s[{S_V}:{S_V+3}], s{S_OFF} offen offset:{t*256} {pol}")
    def ld_lds(lastw):
        for i in range(8):
            e(f"buffer_load_dwordx4 v{V_KOFF}, s[{S_K}:{S_K+3}], s{S_OFF} offen offset:{i*128} {pol} lds")
            e(f"s_add_u32 m0, m0, {896 if i < 7 else 8192-7*896}")
            if i < 7: e("s_nop 0")
        if lastw: e("s_waitcnt vmcnt(55)")
    def gate(g):
        e(f"s_cmp_lg_u32 s{S_NPRE}, {g}")
        e(f"s_cbranch_scc1 L_g{g}")
        e("s_barrier")
        e("s_barrier")
        e.label(f"L_g{g}")
    def k_setup(sfx=""):
        e(f"s_add_u32 s{S_V}, s36, s{S_T0}")
        e(f"s_addc_u32 s{S_V+1}, s37, 0")
        e(f"s_mov_b32 s{S_V+2}, 0x880000")
        e(f"s_mov_b32 s{S_V+3}, 0x00020000")
        e(f"s_setprio {prio[1]}")
        if prio[0] != prio[1]:
            e(f"s_cmp_ge_u32 s{S_WAVE}, 2")
            e(f"s_cbranch_scc1 L_pr{sfx}")
            e(f"s_setprio {prio[0]}")
            e.label(f"L_pr{sfx}")
        consts()
        e(f"s_mov_b32 s{S_THR}, {pace['lv']['norm'] if pace and pace.get('lv') else 0}")
        if pace:
            e(f"s_mov_b32 s{S_Q}, {-pace['b'] * 2}")
            e(f"s_mov_b32 s27, 0")
        e(f"s_mov_b32 s{S_C}, {f32(math.log2(math.e) / math.sqrt(128.0))}")
        A0, A1, A2, A3 = TMP, TMP+1, TMP+2, TMP+3
        e(f"v_lshlrev_b32 v{A0}, 11, v{V_G}")
        e(f"v_lshl_add_u32 v{V_VOFF}, v{V_N}, 4, v{A0}")
        e(f"v_lshrrev_b32 v{A3}, 3, v0")
        e(f"v_and_b32 v{A1}, 3, v{V_N}")
        e(f"v_mul_u32_u24 v{A0}, {QP_ROW}, v{A1}")
        e(f"v_bfe_u32 v{A2}, v{V_N}, 2, 1")
        e(f"v_lshl_add_u32 v{A0}, v{A2}, 9, v{A0}")
        e(f"v_lshl_add_u32 v{A0}, v{A3}, 5, v{A0}")
        e(f"v_add_u32 v{V_QRD}, {LDS_QP}, v{A0}")
        e(f"v_mul_u32_u24 v{A0}, {OB_ROW}, v{A1}")
        e(f"v_lshl_add_u32 v{A0}, v{A2}, 8, v{A0}")
        if dsw is not None:
            e(f"s_bfe_u32 s{S_T0}, s2, {0x10000 + dsw}")
            e(f"s_lshl_b32 s{S_T0}, s{S_T0}, 2")
            e(f"v_xor_b32 v{A3}, s{S_T0}, v{A3}")
        e(f"v_lshl_add_u32 v{A0}, v{A3}, 5, v{A0}")
        e(f"s_mul_i32 s{S_T0}, s{S_WAVE}, {4*OB_ROW}")
        e(f"s_add_u32 s{S_T3}, s{S_T0}, {LDS_OB}")
        e(f"v_add_u32 v{V_OBW}, s{S_T3}, v{A0}")
        e(f"v_lshlrev_b32 v{A0}, 4, v0")
        e(f"v_add_u32 v{V_LR}, s{S_T2}, v{A0}")
        e(f"v_add_u32 v{V_SA}, 8192, v{V_LR}")
        e(f"v_and_b32 v{A2}, 7, v{V_N}")
        e(f"v_lshl_add_u32 v{V_MLR}, v{A2}, 5, v{V_T2}")
        e(f"s_lshl_b32 s{S_T0}, s{S_WAVE}, 3")
        e(f"v_add_u32 v{V_MLW}, s{S_T0}, v{V_MLR}")
        e(f"v_mov_b32 v{V_FL}, {SB}")
        if pace:
            e(f"s_lshl_b32 s{S_T0}, s{S_WAVE}, 2")
            e(f"v_add_u32 v{V_H}, s{S_T0}, v{V_T2}")
        e(f"v_mov_b32 v{V_MC}, {NEG}")
        e(f"v_mov_b32 v{V_L}, 0")
        e(f"v_mov_b32 v{XT}, {NEG}")
    def qload(dst, b):
        for j in range(2):
            for ee in range(2):
                for h in range(2):
                    e(f"ds_read_b128 {vr(TMP+j*16+ee*8+h*4,4)}, v{V_QRD} offset:{b*4*QP_ROW+ee*8*QP_ROW+j*256+h*16}")
        for j in range(2):
            e(f"s_waitcnt lgkmcnt({4-4*j})")
            for i in range(4):
                e(f"v_pk_add_f32 {vr(TMP+j*16+2*i,2)}, {vr(TMP+j*16+2*i,2)}, {vr(TMP+j*16+8+2*i,2)}")
            for i in range(4):
                e(f"v_cvt_pk_bf16_f32 v{dst+j*4+i}, v{TMP+j*16+2*i}, v{TMP+j*16+2*i+1}")

    def adv():
        e(f"s_add_u32 s{S_OFF}, s{S_OFF}, 0x4000")
        e(f"s_bitcmp1_b32 s{S_OFF}, 19")
        e(f"s_cselect_b32 s{S_T0}, 0x880000, 0")
        e(f"s_xor_b32 s{S_OFF}, s{S_OFF}, s{S_T0}")
    def xreduce(r, op):
        e("s_nop 1")
        e(f"{op}_dpp v{r}, v{r}, v{r} row_ror:8 row_mask:0xf bank_mask:0xf")
        for sw in ("v_permlane32_swap_b32", "v_permlane16_swap_b32"):
            e(f"v_mov_b32 v{V_T1}, v{r}")
            e("s_nop 1")
            e(f"{sw} v{r}, v{V_T1}")
            e(f"{op} v{r}, v{r}, v{V_T1}")
    def merge(acc, dst):
        for i in range(8):
            for ee in range(2):
                e(f"v_add_f32_dpp v{dst+ee*8+i}, v{acc+4*i+ee}, v{acc+4*i+ee} row_ror:8 row_mask:0xf bank_mask:0x3")
                e(f"v_add_f32_dpp v{dst+ee*8+i}, v{acc+4*i+2+ee}, v{acc+4*i+2+ee} row_ror:8 row_mask:0xf bank_mask:0xc")
    def thp(lab):
        e(f"s_cmp_eq_u32 s{S_THR}, 0")
        e(f"s_cbranch_scc1 {lab}")
        e(f"s_sub_u32 s{S_THR}, s{S_THR}, 1")
        e("s_waitcnt vmcnt(0)")
        e.label(lab)
    LV = pace.get('lv') if pace else None
    def gate(lab, add=0):
        for i_, w_ in enumerate(LV['waits'][1:]):
            e(f"s_cmp_lt_u32 s{S_THR}, {i_+1}")
            e(f"s_cbranch_scc1 {lab}")
            e(f"s_waitcnt vmcnt({w_+add})")
        e.label(lab)
    def probe():
        e("s_memrealtime s[20:21]")
        e(f"ds_read_b64 {vr(V_LN,2)}, v{V_T2} offset:{LDS_LINE-SB}")
    def decide(rec, ec=False):
        e("s_waitcnt lgkmcnt(0)")
        e(f"v_readfirstlane_b32 s{S_T0}, v{V_LN}")
        e(f"v_readfirstlane_b32 s{S_T1}, v{V_LN+1}")
        if rec:
            e(f"v_or_b32_e64 v{V_LN}, 1, s20")
            e("s_mov_b64 exec, 1")
            e(f"ds_write_b32 v{V_H}, v{V_LN} offset:{LDS_H-SB}")
            e("s_mov_b64 exec, -1")
            e(f"v_add_u32 v{V_H}, 8, v{V_H}")
        e(f"s_mul_i32 s{S_T2}, s{S_T1}, s{S_Q}")
        e(f"s_ashr_i32 s{S_T2}, s{S_T2}, 5")
        e(f"s_add_u32 s{S_T0}, s{S_T0}, s{S_T2}")
        e(f"s_sub_u32 s{S_T0}, s{S_T0}, s20")
        e(f"s_ashr_i32 s{S_T0}, s{S_T0}, {pace['sh']}")
        e(f"s_max_i32 s{S_T0}, s{S_T0}, 0")
        if LV:
            e(f"s_min_i32 s{S_T0}, s{S_T0}, 7")
            e(f"s_lshl_b32 s{S_T0}, s{S_T0}, 2")
            e(f"s_lshr_b32 s{S_T0}, {table(LV['tab'])}, s{S_T0}")
            e(f"s_and_b32 s{S_T0}, s{S_T0}, 15")
            e(f"s_cmp_lg_u32 s{S_T1}, 0")
            e(f"s_cselect_b32 s{S_THR}, s{S_T0}, {LV['norm']}")
            if LV.get('endcap') and ec:
                e(f"s_cmp_ge_i32 s{S_Q}, {LV['endcap'][0]}")
                e(f"s_cselect_b32 s{S_T0}, {LV['endcap'][1]}, 15")
                e(f"s_min_u32 s{S_THR}, s{S_THR}, s{S_T0}")
        else:
            e(f"s_min_i32 s{S_T0}, s{S_T0}, {pace['nmax']}")
            e(f"s_cmp_lg_u32 s{S_T1}, 0")
            e(f"s_cselect_b32 s{S_THR}, s{S_T0}, 0")
        e(f"s_add_u32 s{S_Q}, s{S_Q}, 1")
        if stamps: e(f"s_add_u32 s27, s27, s{S_THR}")
    def ckpts(base, first=False):
        if not cks: return
        for i_, ck in enumerate(cks):
            if ck // 100 != base: continue
            if first:
                if ck == 12: stamp(2 + i_)
                continue
            e(f"s_cmp_lg_u32 s{S_IT}, {ck % 100}")
            e(f"s_cbranch_scc1 L_ck{i_}")
            stamp(2 + i_)
            e.label(f"L_ck{i_}")

    def kcomp(kb, S, lds=None, mid=None, wr=None):
        for j in range(2):
            if lds == 'pre' and j == 0: e("s_waitcnt lgkmcnt(0)")
            if lds == 'now': e(f"s_waitcnt lgkmcnt({4-4*j})")
            for u in range(4):
                cc = "0" if j == 0 else vr(ST+u*4, 4)
                e(f"v_mfma_f32_16x16x32_bf16 {vr(ST+u*4,4)}, {vr(kb+(u*2+j)*4,4)}, {vr(QF+j*4,4)}, {cc}")
        if mid: mid()
        else: e("s_nop 4")
        for u in range(4):
            a = ST + 4*u
            e(f"v_add_f32_dpp v{S+u}, v{a+1}, v{a} row_ror:8 row_mask:0xf bank_mask:0x3")
            e(f"v_add_f32_dpp v{S+u}, v{a+2}, v{a+3} row_ror:8 row_mask:0xf bank_mask:0xc")
        if wr is not None: e(f"ds_write_b128 v{wr[0]}, {vr(S,4)} offset:{wr[1]}")
        e(f"v_max3_f32 v{V_T0}, v{S}, v{S+1}, v{XT}")
        e(f"v_max3_f32 v{XT}, v{S+2}, v{S+3}, v{V_T0}")
        e(f"v_mul_f32 v{V_T0}, s{S_C}, v{XT}")
        e(f"v_sub_f32 v{V_AL}, v{V_MC}, v{V_T0}")
        e(f"v_exp_f32 v{V_AL}, v{V_AL}")
        e(f"v_mov_b32 v{V_MC}, v{V_T0}")
        for i in range(4): e(f"v_fma_f32 v{PT+i}, v{S+i}, s{S_C}, -v{V_T0}")
        for i in range(4): e(f"v_exp_f32 v{PT+i}, v{PT+i}")
        e(f"v_fma_f32 v{V_L}, v{V_L}, v{V_AL}, v{PT}")
        e(f"v_add_f32 v{V_T0}, v{PT+1}, v{PT+2}")
        e(f"v_add_f32 v{V_L}, v{V_L}, v{PT+3}")
        e(f"v_add_f32 v{V_L}, v{V_L}, v{V_T0}")

    XB_ = OA
    DEST0 = [0, 1, 2, 3, 'X', 'L', 'L', 'L']
    class St: pass
    def fresh():
        st = St(); st.iss = {'S': [], 'E': []}; st.known = {'S': 0, 'E': 0}; st.loc = {}; st.nl = 0; st.nr = 0; st.pre = None; st.n = 0
        return st
    def guard(st, ty):
        if 8 * (len(st.iss[ty]) - st.known[ty]) + 8 > 63: e("s_waitcnt vmcnt(55)")
    def issue(st, j, d):
        guard(st, 'S')
        if d == 'L':
            st.nl += 1; assert st.nl <= 3
            st.loc[j] = ('L', st.nl * 8192); ld_lds(False)
        else:
            st.loc[j] = ('R', XB_ if d == 'X' else BUF[d]); ld_k(st.loc[j][1])
        e(f"s_add_u32 s{S_OFF}, s{S_OFF}, 0x8000")
        for ty in 'SE': st.iss[ty].append(j)
    def refill(st, c, w=None):
        assert len(st.iss['E']) == 8
        st.n += 1
        e(f"s_cmp_ge_u32 s{S_WAVE}, 2")
        e(f"s_cbranch_scc1 L_ni{c}_{st.n}")
        if w is not None:
            e(f"s_waitcnt vmcnt({w})")
            st.known['S'] = max(st.known['S'], len(st.iss['S']) - w // 8)
        guard(st, 'S')
        ld_k(BUF[st.nr]); adv()
        e.label(f"L_ni{c}_{st.n}")
        st.iss['S'].append(f"R{st.nr}"); st.nr += 1
    def wait(st, c, j):
        n = {}
        for ty in 'SE':
            k = st.iss[ty].index(j) + 1
            n[ty] = None if st.known[ty] >= k else 8 * (len(st.iss[ty]) - k)
            st.known[ty] = max(st.known[ty], k)
        if n['E'] is not None and n['E'] != n['S']:
            st.n += 1
            e(f"s_cmp_lt_u32 s{S_WAVE}, 2")
            e(f"s_cbranch_scc1 L_pw{c}_{st.n}")
            e(f"s_waitcnt vmcnt({n['E']})")
            e.label(f"L_pw{c}_{st.n}")
        if n['S'] is not None: e(f"s_waitcnt vmcnt({min(n['S'], 63)})")
    def lread(off):
        for jj in range(2):
            for u in range(4):
                e(f"ds_read_b128 {vr(TMP+(u*2+jj)*4,4)}, v{V_LR} offset:{off+(u*2+jj)*1024}")
    def run(st, c, toks):
        for t in toks:
            if t[0] == 'I': issue(st, int(t[1]), t[2] if t[2] in 'XL' else int(t[2]))
            elif t[0] == 'R': refill(st, c, int(t[1:]) if len(t) > 1 else None)
            elif t[0] == 'W': wait(st, c, int(t[1]))
            elif t[0] == 'Q':
                stamp(2)
                wait_flag(f"L_wq{c}", LDS_FLAG, 4, V_T2, V_T0)
                stamp(3)
                qload(QF, 0)
            elif t[0] == 'P':
                j = int(t[1]); wait(st, c, j); lread(st.loc[j][1]); st.pre = j
            elif t[0] == 'C':
                j = int(t[1]); wait(st, c, j)
                mid = None
                if len(t) > 2:
                    def mid(): run(st, c, t[3:].split('+')); e("s_nop 2")
                if st.loc[j][0] == 'R': kcomp(st.loc[j][1], SS, mid=mid, wr=(V_LR, j*1024))
                else:
                    if st.pre != j: lread(st.loc[j][1])
                    kcomp(TMP, SS, lds='pre' if st.pre == j else 'now', mid=mid, wr=(V_LR, j*1024))
    SCH = {
        0: "I00 I11 Q W0 I22 C0 W1 I33 C1 W2 I40 C2 W3 I51 C3 W4 I62 C4 W5 I73 C5 W6 R C6 W7 R C7",
        2: "I22 I33 Q C0:I40 C1:I51 C2:I62 C3:I73 C4:R C5:R C6 C7",
        4: "I4X I5L Q C2:I62 C0 C3:I73 C1 C4 P5 R C5 W6 R C6 C7",
        5: "I5L I6L Q C3:I73 C0 C1 C2:R C4 P5 R C5 C6 C7",
        6: "I6L I7L Q P5 C0:R C1:R C5 C2 P6 C3 C6 R8 P7 C4 C7 R8",
        7: "I7L Q P5 C0:R C1:R C5 P6 C2 C6 R8 P7 C3 C7 R8 C4",
        8: "Q P5 C0:R C1:R C5 P6 C2:R C6 P7 C3:R C7 C4",
    }
    if sched: SCH.update(sched)
    classes = sorted(set(npre))
    st0 = fresh()
    import copy
    states = {}
    for j in range(classes[-1] + 1):
        if j in classes:
            states[j] = copy.deepcopy(st0)
            if j != classes[-1]:
                e(f"s_cmp_eq_u32 s{S_NPRE}, {j}")
                e(f"s_cbranch_scc1 L_path{j}")
        if j < classes[-1]: issue(st0, j, DEST0[j])
    for c in reversed(classes):
        st = states[c]
        e.label(f"L_path{c}")
        e("s_barrier")
        k_setup(str(c))
        e("s_barrier")
        run(st, c, SCH[c].split())
        assert st.nr in (2, 4) and len(st.iss['E']) == 8
        e(f"s_mov_b32 s{S_IT}, {12 + (0x100 if st.nr == 4 else 0)}")
        if c != classes[0]: e("s_branch L_pdn")
    e.label("L_pdn")
    e(f"s_cmp_ge_u32 s{S_WAVE}, 2")
    e("s_cbranch_scc1 L_kfin")
    wait_flag("L_wp", LDS_FLAG+4, 2, V_T2, V_T0)
    e(f"s_cmp_eq_u32 s{S_IT}, 12")
    e("s_cbranch_scc1 L_kloop")
    e(f"s_mov_b32 s{S_IT}, 12")
    ckpts(0, True)
    for p in range(2):
        e(f"s_waitcnt vmcnt({24-8*p})")
        if pace and p & 1: probe()
        kcomp(BUF[p], SS, wr=(V_SA, (p & 1)*32768))
        if pace and p & 1: decide(True)
    e("s_branch L_kp2")
    e.label("L_kb1")
    qload(QF, 1)
    e.label("L_kloop")
    ckpts(0)
    for p in range(4):
        if p == 2: e.label("L_kp2")
        if LV: gate(f"L_tk{p}")
        else:
            e("s_waitcnt vmcnt(8)")
            if pace: thp(f"L_tk{p}")
            if pace and p & 1: probe()
        if p >= 2:
            e(f"s_cmp_eq_u32 s{S_IT}, 1")
            e(f"s_cbranch_scc1 L_kv{p}")
        ld_k(BUF[(p+2) & 3])
        if p >= 2: e.label(f"L_kr{p}")
        if LV:
            e("s_waitcnt vmcnt(16)")
            if p & 1: probe()
        kcomp(BUF[p], SS, mid=lambda: (adv(), e("s_nop 0")), wr=(V_SA, (p & 1)*32768 + (p >> 1)*1024))
        if pace and p & 1: decide(p == 1)
    e(f"v_add_u32 v{V_SA}, 2048, v{V_SA}")
    e(f"s_sub_u32 s{S_IT}, s{S_IT}, 1")
    e(f"s_and_b32 s{S_T0}, s{S_IT}, 7")
    e("s_cbranch_scc1 L_kloop")
    e.label("L_kfin")
    e(f"v_mov_b32 v{V_T0}, v{V_MC}")
    xreduce(V_MC, "v_max_f32")
    e(f"v_sub_f32 v{V_T0}, v{V_T0}, v{V_MC}")
    e(f"v_exp_f32 v{V_T0}, v{V_T0}")
    e("s_nop 0")
    e(f"v_mul_f32 v{V_L}, v{V_L}, v{V_T0}")
    xreduce(V_L, "v_add_f32")
    e(f"ds_write_b64 v{V_MLW}, {vr(V_MC,2)} offset:{LDS_ML-SB}")
    e(f"v_mov_b32 v{V_T0}, 1")
    e(f"v_add_u32 v{V_MLW}, 256, v{V_MLW}")
    e(f"v_mov_b32 v{V_MC}, {NEG}")
    e(f"v_mov_b32 v{V_L}, 0")
    e(f"v_mov_b32 v{XT}, {NEG}")
    e(f"s_cmp_lt_u32 s{S_WAVE}, 2")
    e("s_cbranch_scc1 L_kf1")
    e(f"ds_write_b64 v{V_MLW}, {vr(V_MC,2)} offset:{LDS_ML-SB}")
    e.label("L_kf1")
    e("s_mov_b64 exec, 1")
    e("s_waitcnt lgkmcnt(0)")
    e(f"ds_add_u32 v{V_FL}, v{V_T0} offset:{LDS_FLAG+4-SB}")
    e("s_mov_b64 exec, -1")
    e(f"v_add_u32 v{V_FL}, 12, v{V_FL}")
    if fwarm: e(f"s_not_b64 s[32:33], s[{S_MASK}:{S_MASK+1}]")
    e(f"s_cmp_ge_u32 s{S_WAVE}, 2")
    e("s_cbranch_scc1 L_dry" if fwarm == 2 else "s_cbranch_scc1 L_vr1" if fwarm else "s_cbranch_scc1 L_wo")
    e(f"s_cmp_lg_u32 s{S_IT}, 0")
    e("s_cbranch_scc1 L_kb1")
    stamp(5)
    e(f"v_mov_b32 v{V_SA}, v{V_LR}")
    e(f"v_mov_b32 v{V_FL}, {SB}")
    e(f"s_mov_b32 s{S_IT}, 16")
    e(f"s_mov_b32 s{S_PH}, 4")
    V_HO, V_HD = QF, QF + 1
    V_A0, V_A1, V_AN, PB_ = QF, QF + 1, QF + 2, QF + 4
    S_XA = 32
    if fast: e(f"s_not_b64 s[{S_XA}:{S_XA+1}], s[{S_MASK}:{S_MASK+1}]")
    if dsplit:
        e(f"v_lshrrev_b32 v{V_A1}, 3, v0")
        e(f"v_and_b32 v{V_A0}, 7, v0")
        e(f"v_lshlrev_b32 v{V_A0}, 4, v{V_A0}")
        e(f"v_lshl_add_u32 v{V_A0}, v{V_A1}, 10, v{V_A0}")
        if dsw is not None:
            e(f"s_bitcmp1_b32 s2, {dsw}")
            e(f"s_cselect_b32 s{S_T0}, 1152, 0")
            e(f"s_cselect_b32 s{S_XA}, 0, 0x00ff00ff")
            e(f"s_cselect_b32 s{S_XA+1}, 0x00ff00ff, 0")
            e(f"v_xor_b32 v{V_A0}, s{S_T0}, v{V_A0}")
        else:
            e(f"s_mov_b32 s{S_XA}, 0x00ff00ff")
            e(f"s_mov_b32 s{S_XA+1}, 0")
        e(f"s_mov_b32 s{S_XA+2}, s{S_XA+1}")
        e(f"s_mov_b32 s{S_XA+3}, s{S_XA}")
        e(f"v_xor_b32 v{V_A1}, 1152, v{V_A0}")
    S_H0 = 32
    if hint:
        e(f"s_mul_i32 s{S_T0}, s{S_BP}, {GRP}")
        e(f"s_add_u32 s{S_WS}, s46, s{S_T0}")
        e(f"s_addc_u32 s{S_WS+1}, s47, 0")
        e(f"s_mov_b32 s{S_WS+2}, 0")
        e(f"s_mov_b32 s{S_WS+3}, 0x00020000")
        e(f"s_lshl_b32 s{S_T0}, s{S_HKV}, 1")
        e(f"s_add_u32 s{S_T0}, s{S_T0}, s{S_WAVE}")
        e(f"s_lshl_b32 s{S_T0}, s{S_T0}, 7")
        e(f"s_add_u32 s{S_T0}, s{S_T0}, {GD}")
        e(f"v_lshlrev_b32 v{V_HO}, 2, v0")
        e(f"v_add_u32 v{V_HO}, s{S_T0}, v{V_HO}")
        e(f"s_memrealtime s[{S_H0}:{S_H0+1}]")
        e(f"s_mov_b32 s{S_H0+2}, {hint[1]}")
        e(f"s_cmp_lt_u32 s{S_HKV}, 8")
        e(f"s_cselect_b32 s{S_H0+2}, {hint[0]}, s{S_H0+2}")
        e(f"s_mov_b32 s{S_CAP}, 0x40000")
    e.label("L_vstart")
    e.label("L_wk")
    e(f"ds_read_b32 v{V_T0}, v{V_FL} offset:{LDS_FLAG+4-SB}")
    e("s_waitcnt lgkmcnt(0)")
    e(f"v_readfirstlane_b32 s{S_T0}, v{V_T0}")
    e(f"s_cmp_lt_u32 s{S_T0}, s{S_PH}")
    e("s_cbranch_scc1 L_wk")
    e(f"ds_read_b128 {vr(TMP,4)}, v{V_MLR} offset:{LDS_ML-SB}")
    e(f"ds_read_b128 {vr(TMP+4,4)}, v{V_MLR} offset:{LDS_ML+16-SB}")
    e(f"ds_read_b128 {vr(SS,4)}, v{V_SA}")
    for i in range(16):
        e(f"v_pk_mul_f32 {vr(OA+2*i,2)}, {vr(V_Z,2)}, {vr(V_Z,2)}")
    e(f"v_add_u32 v{V_FL}, 12, v{V_FL}")
    e(f"v_add_u32 v{V_MLR}, 256, v{V_MLR}")
    e(f"s_mov_b32 s{S_PH}, 2")
    e("s_waitcnt lgkmcnt(1)")
    e(f"v_max3_f32 v{V_MC}, v{TMP}, v{TMP+2}, v{TMP+4}")
    e(f"v_max_f32 v{V_MC}, v{V_MC}, v{TMP+6}")
    for p in range(4): e(f"v_sub_f32 v{TMP+2*p}, v{TMP+2*p}, v{V_MC}")
    for p in range(4): e(f"v_exp_f32 v{TMP+2*p}, v{TMP+2*p}")
    e(f"v_mul_f32 v{V_L}, v{TMP}, v{TMP+1}")
    for p in range(1, 4): e(f"v_fmac_f32 v{V_L}, v{TMP+2*p}, v{TMP+2*p+1}")
    e(f"v_log_f32 v{V_L}, v{V_L}")
    e("s_nop 0")
    e(f"v_add_f32 v{V_MC}, v{V_MC}, v{V_L}")
    if dsplit or fast:
        assert LV and not hint
        def pgen(p, D, nxt=True):
            e("s_waitcnt lgkmcnt(0)")
            for i in range(4): e(f"v_fma_f32 v{SS+i}, v{SS+i}, s{S_C}, -v{V_MC}")
            for i in range(4): e(f"v_exp_f32 v{SS+i}, v{SS+i}")
            if p == 3: e(f"v_add_u32 v{V_SA}, 2048, v{V_SA}")
            else: e("s_nop 0")
            for i in range(4): e(f"v_cvt_pk_bf16_f32 v{D+i}, v{SS+2*(i&1)}, v{SS+2*(i&1)+1}")
            q_ = (p + 1) & 3
            if nxt: e(f"ds_read_b128 {vr(SS,4)}, v{V_SA} offset:{(q_ & 1)*32768 + (q_ >> 1)*1024}")
            else: e("s_nop 0")
            for i in range(4): e(f"v_mov_b32_dpp v{D+i}, v{D+i} row_ror:8 row_mask:0xf bank_mask:{'0xc' if i < 2 else '0x3'}")
        nW = [0]
        def W2(a_, b_):
            e(f"s_waitcnt vmcnt({a_})")
            e(f"s_cbranch_scc1 L_ww{nW[0]}")
            e(f"s_waitcnt vmcnt({b_})")
            e.label(f"L_ww{nW[0]}")
            nW[0] += 1
        def ld_h(buf, vo):
            for t in range(4):
                e(f"buffer_load_dwordx4 {vr(buf+t*4,4)}, v{vo}, s[{S_V}:{S_V+3}], s{S_OFF} offen offset:{t*256} {pol}")
        def fastmma(buf, T, D, w0, w1, half):
            def pm(i, u_):
                e(f"v_perm_b32 v{T+4*i+u_}, v{buf+(2*u_+1)*4+(i>>1)}, v{buf+(2*u_)*4+(i>>1)}, s{S_HI if i & 1 else S_LO}")
            def dp(i, u_): e(f"v_mov_b32_dpp v{T+4*i+2+u_}, v{T+4*i+u_} row_ror:8 row_mask:0xf bank_mask:0xf")
            def mf(i): e(f"v_mfma_f32_16x16x32_bf16 {vr(D+4*i,4)}, {vr(T+4*i,4)}, {vr(PB_,4)}, {vr(OA+4*i,4)}")
            def cv(k, r): e(f"v_cvt_pk_bf16_f32 v{ST+4*r+k}, v{D+8*k+r}, v{D+8*k+4+r}")
            W2(w0 + 2, w1 + 2)
            for i in range(8): pm(i, 0)
            for i in range(8): dp(i, 0)
            W2(w0, w1)
            if half and stamps: e(f"s_memrealtime s[{64+14}:{64+15}]")
            pm(0, 1); pm(1, 1); pm(2, 1); dp(0, 1); pm(3, 1); dp(1, 1)
            for i in range(4):
                mf(i); pm(i + 4, 1); dp(i + 2, 1)
            mf(4); dp(6, 1); dp(7, 1)
            mf(5); cv(0, 0); cv(0, 1); mf(6); cv(0, 2); cv(0, 3); mf(7)
            for k in (1, 2):
                for r in range(4): cv(k, r)
            e(f"s_mov_b64 exec, s[{S_XA+2*half}:{S_XA+2*half+1}]")
            for r in range(4):
                cv(3, r)
                e(f"ds_write_b128 v{V_OBW}, {vr(ST+4*r,4)} offset:{16*r}")
            e("s_mov_b64 exec, -1")
    if fast:
        def fastfull(buf, T):
            def pm(i, u_):
                e(f"v_perm_b32 v{T+4*i+u_}, v{buf+(2*u_+1)*4+(i>>1)}, v{buf+(2*u_)*4+(i>>1)}, s{S_HI if i & 1 else S_LO}")
            def mf(i): e(f"v_mfma_f32_16x16x32_bf16 {vr(OA+4*i,4)}, {vr(T+4*i,4)}, {vr(PP,4)}, {vr(OA+4*i,4)}")
            def cv(k, r): e(f"v_cvt_pk_bf16_f32 v{ST+4*r+k}, v{OA+8*k+r}, v{OA+8*k+4+r}")
            for u_ in range(3):
                W2(22 - 2*u_, 6 - 2*u_)
                for i in range(8): pm(i, u_)
            W2(16, 0)
            if stamps: e(f"s_memrealtime s[{64+14}:{64+15}]")
            pm(0, 3); pm(1, 3); pm(2, 3)
            for i in range(5):
                mf(i); pm(i + 3, 3)
            mf(5); cv(0, 0); cv(0, 1); mf(6); cv(0, 2); cv(0, 3); mf(7)
            for k in (1, 2):
                for r in range(4): cv(k, r)
            e(f"s_mov_b64 exec, s[{S_XA}:{S_XA+1}]")
            for r in range(4):
                cv(3, r)
                e(f"ds_write_b128 v{V_OBW}, {vr(ST+4*r,4)} offset:{16*r}")
            e("s_mov_b64 exec, -1")
        e.label("L_vloop")
        ckpts(1)
        for p in range(4):
            pgen(p, PP)
            if p == 2:
                e(f"s_cmp_eq_u32 s{S_IT}, 1")
                e(f"s_cbranch_scc1 L_vl2")
            if p == 3 and fast == 2:
                e(f"s_cmp_lg_u32 s{S_IT}, 1")
                e(f"s_cbranch_scc0 L_vr1")
            elif p == 3:
                e(f"s_and_b32 s{S_T0}, s{S_IT}, 7")
                e(f"s_cmp_eq_u32 s{S_T0}, 1")
                e(f"s_cbranch_scc1 L_vlast")
            gate(f"L_tv{p}")
            ld_v(BUF[(p+2) & 3])
            adv()
            e("s_waitcnt vmcnt(16)")
            if p & 1: probe()
            if p == 3 and fast == 2:
                e(f"s_cmp_eq_u32 s{S_IT}, 9")
                e(f"s_cbranch_scc1 L_vr1")
            if p == 2:
                e("s_branch L_vc2")
                e.label("L_vl2")
                e("s_waitcnt vmcnt(8)")
                e.label("L_vc2")
            unit_mma(BUF[p], PP, OA, False, PT)
            if p & 1: decide(p == 1, True)
        e(f"s_sub_u32 s{S_IT}, s{S_IT}, 1")
        e("s_branch L_vloop")
        if fast != 2:
            e.label("L_vn1")
            gate("L_tw2")
            ld_v(BUF[1]); adv()
            e("s_waitcnt vmcnt(16)")
            probe()
            e(f"s_cmp_lg_u32 s{S_IT}, 1")
            e("s_branch L_vr1")
            e.label("L_vlast")
            e(f"s_cmp_lg_u32 s{S_IT}, 1")
            e("s_cbranch_scc1 L_vn1")
        e.label("L_vr1")
        fastfull(BUF[3], TMP)
        e("s_cbranch_scc1 L_vnext")
        e("s_waitcnt lgkmcnt(0)")
        e("s_barrier")
        e.label("L_sfin")
        if stamps:
            stamp(9); stamp(10); stamp(11)
            e("s_branch L_dump")
        else:
            e("s_endpgm")
        e.label("L_vnext")
        if fwarm:
            e(f"s_cmp_ge_u32 s{S_WAVE}, 2")
            e("s_cbranch_scc1 L_wo")
        e(f"s_mov_b32 s{S_IT}, 8")
        e(f"v_mov_b32 v{V_T0}, 1")
        e("s_waitcnt lgkmcnt(0)")
        e("s_mov_b64 exec, 1")
        e(f"ds_add_u32 v{V_T2}, v{V_T0} offset:{LDS_FLAG+12-SB}")
        e("s_mov_b64 exec, -1")
        e(f"v_add_u32 v{V_OBW}, {8*OB_ROW}, v{V_OBW}")
        decide(False)
        e("s_branch L_vstart")
    elif dsplit:
        e.label("L_vloop")
        ckpts(1)
        for p in range(4):
            pgen(p, PP)
            gate(f"L_tv{p}")
            ld_v(BUF[(p+2) & 3])
            adv()
            e("s_waitcnt vmcnt(16)")
            if p & 1: probe()
            unit_mma(BUF[p], PP, OA, False, PT)
            if p & 1: decide(p == 1, True)
        e(f"s_sub_u32 s{S_IT}, s{S_IT}, 1")
        e(f"s_and_b32 s{S_T0}, s{S_IT}, 7")
        e(f"s_cmp_lg_u32 s{S_T0}, 1")
        e("s_cbranch_scc1 L_vloop")
        pgen(0, PP)
        gate("L_tw0")
        ld_v(BUF[2]); adv(); ld_h(BUF[3], V_A0)
        e("s_waitcnt vmcnt(20)")
        unit_mma(BUF[0], PP, OA, False, PT)
        pgen(1, PP)
        gate("L_tw1", 4)
        ld_h(BUF[3] + 16, V_A1); adv()
        e("s_waitcnt vmcnt(16)")
        probe()
        unit_mma(BUF[1], PP, OA, False, PT)
        decide(True, True)
        pgen(2, PP)
        pgen(3, PB_, False)
        e(f"s_cmp_lg_u32 s{S_IT}, 1")
        e("s_cbranch_scc1 L_vn0")
        e.label("L_vr0")
        W2(16, 8)
        unit_mma(BUF[2], PP, OA, False, PT)
        fastmma(BUF[3], BUF[2], TMP, 12, 4, 0)
        e("s_cbranch_scc1 L_vn1")
        e("s_waitcnt lgkmcnt(0)")
        e("s_barrier")
        e.label("L_vr1")
        fastmma(BUF[3] + 16, BUF[2], TMP, 16, 0, 1)
        e("s_cbranch_scc1 L_vnext")
        e("s_waitcnt lgkmcnt(0)")
        e("s_barrier")
        e.label("L_sfin")
        if stamps:
            stamp(9); stamp(10); stamp(11)
            e("s_branch L_dump")
        else:
            e("s_endpgm")
        e.label("L_vn0")
        gate("L_tw2")
        ld_v(BUF[0]); adv()
        e(f"s_cmp_lg_u32 s{S_IT}, 1")
        e("s_branch L_vr0")
        e.label("L_vn1")
        ld_v(BUF[1]); adv()
        e(f"s_cmp_lg_u32 s{S_IT}, 1")
        e("s_branch L_vr1")
        e.label("L_vnext")
        probe()
        e(f"s_mov_b32 s{S_IT}, 8")
        e(f"v_mov_b32 v{V_T0}, 1")
        e("s_waitcnt lgkmcnt(0)")
        e("s_mov_b64 exec, 1")
        e(f"ds_add_u32 v{V_T2}, v{V_T0} offset:{LDS_FLAG+12-SB}")
        e("s_mov_b64 exec, -1")
        e(f"v_add_u32 v{V_OBW}, {8*OB_ROW}, v{V_OBW}")
        decide(False)
        e("s_branch L_vstart")
    else:
        e.label("L_vloop")
        ckpts(1)
        for p in range(4):
            e("s_waitcnt lgkmcnt(0)")
            for i in range(4): e(f"v_fma_f32 v{SS+i}, v{SS+i}, s{S_C}, -v{V_MC}")
            for i in range(4): e(f"v_exp_f32 v{SS+i}, v{SS+i}")
            if p == 3: e(f"v_add_u32 v{V_SA}, 2048, v{V_SA}")
            else: e("s_nop 0")
            e(f"v_cvt_pk_bf16_f32 v{V_T0}, v{SS}, v{SS+1}")
            e(f"v_cvt_pk_bf16_f32 v{V_T1}, v{SS+2}, v{SS+3}")
            e(f"v_cndmask_b32 v{PP}, v{V_T0}, 0, s[{S_MASK}:{S_MASK+1}]")
            e(f"v_cndmask_b32 v{PP+1}, v{V_T1}, 0, s[{S_MASK}:{S_MASK+1}]")
            e(f"v_cndmask_b32 v{PP+2}, 0, v{V_T0}, s[{S_MASK}:{S_MASK+1}]")
            e(f"v_cndmask_b32 v{PP+3}, 0, v{V_T1}, s[{S_MASK}:{S_MASK+1}]")
            q_ = (p + 1) & 3
            e(f"ds_read_b128 {vr(SS,4)}, v{V_SA} offset:{(q_ & 1)*32768 + (q_ >> 1)*1024}")
            if p >= 2:
                e(f"s_cmp_eq_u32 s{S_IT}, 1")
                e(f"s_cbranch_scc1 L_vl{p}")
            if LV: gate(f"L_tv{p}")
            else:
                e("s_waitcnt vmcnt(8)")
                if pace: thp(f"L_tv{p}")
                if pace and p & 1: probe()
            ld_v(BUF[(p+2) & 3])
            adv()
            if LV:
                e("s_waitcnt vmcnt(16)")
                if p & 1: probe()
            if p >= 2:
                e(f"s_branch L_vc{p}")
                e.label(f"L_vl{p}")
                if p == 3 and not lite: stamp(6)
                e(f"s_waitcnt vmcnt({8 if p == 2 else 0})")
                if p == 3 and not lite: stamp(7)
                if p == 3 and (hint or (lite and stamps)): e("s_memrealtime s[20:21]")
                e.label(f"L_vc{p}")
            unit_mma(BUF[p], PP, OA, False, PT)
            if p == 1 and pace: decide(True, True)
        e(f"s_sub_u32 s{S_IT}, s{S_IT}, 1")
        e(f"s_and_b32 s{S_T0}, s{S_IT}, 7")
        e("s_cbranch_scc0 L_vfin")
        if pace: decide(False, True)
        e("s_branch L_vloop")
        e.label("L_vfin")
        if hint:
            e("s_waitcnt lgkmcnt(0)")
            e(f"v_mov_b32 v{V_HD}, s20")
            e("s_mov_b32 exec_hi, 0")
            e(f"buffer_store_dword v{V_HD}, v{V_HO}, s[{S_WS}:{S_WS+3}], 0 offen sc1")
            e("s_mov_b32 exec_hi, -1")
        merge(OA, TMP)
        for i in range(8):
            e(f"v_cvt_pk_bf16_f32 v{TMP+16+i}, v{TMP+2*i}, v{TMP+2*i+1}")
        e(f"ds_write_b128 v{V_OBW}, {vr(TMP+16,4)}")
        e(f"ds_write_b128 v{V_OBW}, {vr(TMP+20,4)} offset:16")
        e(f"s_cmp_lg_u32 s{S_IT}, 0")
        e("s_waitcnt lgkmcnt(0)")
        e("s_cbranch_scc1 L_vnext")
        if not lite: stamp(8)
        e("s_barrier")
        if stamps and lite: e(f"s_mov_b32 s{64+14}, s20")
        if hint:
            e("s_setprio 0")
            e(f"s_cmp_eq_u32 s{S_WAVE}, 0")
            e("s_cbranch_scc1 L_hp")
            e("s_barrier")
        e.label("L_sfin")
        if stamps:
            stamp(9); stamp(10); stamp(11)
            e("s_branch L_dump")
        else:
            e("s_endpgm")
        e.label("L_vnext")
        e(f"v_mov_b32 v{V_T0}, 1")
        e("s_mov_b64 exec, 1")
        e(f"ds_add_u32 v{V_T2}, v{V_T0} offset:{LDS_FLAG+12-SB}")
        e("s_mov_b64 exec, -1")
        e(f"v_add_u32 v{V_OBW}, {8*OB_ROW}, v{V_OBW}")
        if hint: e(f"s_mov_b32 s{S_WS+2}, {GRP}")
        if pace: decide(False)
        e("s_branch L_vstart")
    if fwarm == 2:
        e.label("L_dry")
        e(f"s_mov_b32 s{S_V+2}, 0")
        e(f"s_mov_b32 s{S_IT}, 9")
        e(f"s_mov_b32 s{S_PH}, 0")
        e(f"v_mov_b32 v{V_H}, {LDS_OB + 8*OB_ROW - (LDS_H - SB)}")
        e(f"s_cmp_eq_u32 s{S_WAVE}, 3")
        e("s_cbranch_scc1 L_wo")
    for p in (2, 3):
        e.label(f"L_kv{p}")
        ld_v(BUF[(p+2) & 3])
        e(f"s_cbranch_scc1 L_kr{p}" if fwarm == 2 else f"s_branch L_kr{p}")
    if fwarm == 2: e("s_branch L_vstart")

    e.label("L_wo")
    e("s_setprio 0")
    V_WO, V_BRD, V_STO, V_PL, V_OO, V_TAG, V_SB, V_IDX = 1, 5, 6, 7, 1, 2, 3, 4
    A0, A1, A2, AN, AG, AZ, AS = 232, 233, 234, 235, 236, 237, 238
    S_PW = S_OFF
    e(f"v_and_b32 v{AN}, 15, v0")
    e(f"v_lshrrev_b32 v{AG}, 4, v0")
    e(f"v_mov_b32 v{AZ}, 0")
    e(f"v_mov_b32 v{AS}, {SB}")
    e(f"s_sub_u32 s{S_T3}, s{S_WAVE}, 2")
    e(f"v_lshrrev_b32 v{A0}, 5, v0")
    e(f"v_mul_u32_u24 v{A0}, {16*1152}, v{A0}")
    e(f"v_and_b32 v{A1}, 1, v{AG}")
    e(f"v_mul_u32_u24 v{A1}, {4*1152}, v{A1}")
    e(f"v_mul_u32_u24 v{A2}, 12, v{AN}")
    e(f"v_add3_u32 v{A0}, v{A0}, v{A1}, v{A2}")
    e(f"s_mul_i32 s{S_T0}, s{S_T3}, 192")
    e(f"v_add_u32 v{V_WO}, s{S_T0}, v{A0}")
    e(f"s_mul_i32 s{S_T0}, s{S_HKV}, {256*1152}")
    e(f"s_add_u32 s{S_WO}, s40, s{S_T0}")
    e(f"s_addc_u32 s{S_WO+1}, s41, 0")
    e(f"s_mov_b32 s{S_WO+2}, {256*1152}")
    if rho:
        e(f"s_lshr_b32 s{S_T0}, s{S_HKV}, 1")
        e(f"s_xor_b32 s{S_T0}, s{S_T0}, s{S_HKV}")
        e(f"s_and_b32 s{S_T0}, s{S_T0}, 4")
        e(f"s_mul_i32 s{S_T0}, s{S_T0}, 3")
        e(f"s_xor_b32 s{S_HKV}, s{S_HKV}, s{S_T0}")
    e(f"s_mov_b32 s{S_WO+3}, 0x00020000")
    e(f"s_mul_i32 s{S_T0}, s{S_BP}, {GRP}")
    e(f"s_add_u32 s{S_WS}, s46, s{S_T0}")
    e(f"s_addc_u32 s{S_WS+1}, s47, 0")
    e(f"s_mov_b32 s{S_WS+2}, {GRP}")
    e(f"s_mov_b32 s{S_WS+3}, 0x00020000")
    e(f"s_mov_b32 s{S_OUT}, s42")
    e(f"s_mov_b32 s{S_OUT+1}, s43")
    e(f"s_mov_b32 s{S_OUT+2}, {128*1152}")
    e(f"s_mov_b32 s{S_OUT+3}, 0x00020000")
    e(f"s_mov_b32 s{S_DBG}, s44")
    e(f"s_mov_b32 s{S_DBG+1}, s45")
    e(f"s_mov_b32 s{S_DBG+2}, 256")
    e(f"s_mov_b32 s{S_DBG+3}, 0x00020000")
    e(f"v_bfe_u32 v{A0}, v{AN}, 1, 1")
    e(f"v_lshrrev_b32 v{A1}, 2, v{AN}")
    e(f"v_lshl_add_u32 v{A0}, v{A0}, 2, v{A1}")
    e(f"v_mul_u32_u24 v{A0}, {OB_ROW}, v{A0}")
    e(f"v_lshl_add_u32 v{A0}, v{AG}, 5, v{A0}")
    e(f"v_and_b32 v{A1}, 1, v{AN}")
    e(f"v_lshl_add_u32 v{A0}, v{A1}, 4, v{A0}")
    e(f"v_add_u32 v{V_BRD}, {LDS_OB}, v{A0}")
    e(f"v_mul_u32_u24 v{A0}, {6*4096}, v{AG}")
    e(f"v_lshlrev_b32 v{A1}, 4, v{AN}")
    e(f"s_lshl_b32 s{S_T0}, s{S_T3}, 12")
    e(f"s_lshl_b32 s{S_T1}, s{S_HKV}, 8")
    e(f"s_add_u32 s{S_T1}, s{S_T1}, s{S_T0}")
    e(f"v_add3_u32 v{V_STO}, v{A0}, v{A1}, s{S_T1}")
    e(f"s_lshr_b32 s{S_T1}, s{S_HKV}, 1")
    e(f"s_mul_i32 s{S_T1}, s{S_T1}, {6*4096}")
    e(f"s_add_u32 s{S_T0}, s{S_T0}, s{S_T1}")
    e(f"s_and_b32 s{S_T1}, s{S_HKV}, 1")
    e(f"s_lshl_b32 s{S_T1}, s{S_T1}, 7")
    e(f"s_add_u32 s{S_T0}, s{S_T0}, s{S_T1}")
    e(f"v_lshrrev_b32 v{A0}, 3, v0")
    e(f"v_lshlrev_b32 v{A0}, 8, v{A0}")
    e(f"v_and_b32 v{A1}, 7, v0")
    e(f"v_lshlrev_b32 v{A1}, 4, v{A1}")
    e(f"v_add3_u32 v{V_PL}, v{A0}, v{A1}, s{S_T0}")
    def call():
        if pace: e("s_call_b64 s[20:21], L_agent")
    if pace:
        e(f"s_add_u32 s16, s46, 0x400000")
        e(f"s_addc_u32 s17, s47, 0")
        e(f"s_mov_b32 s18, 0x40000")
        e(f"s_mov_b32 s19, 0x00020000")
        e(f"s_cmp_eq_u32 s{S_WAVE}, {pace.get('wave', 7)}")
        e(f"s_mov_b32 s22, {8*pace['q0']}")
        e(f"s_cselect_b32 s22, s22, 0x1000")
        e(f"s_mov_b32 s23, 0")
        e(f"s_lshr_b32 s{S_T0}, s2, 5")
        e(f"s_lshl_b32 s{S_T0}, s{S_T0}, 3")
        e(f"s_and_b32 s{S_T1}, s2, 7")
        e(f"s_add_u32 s{S_T0}, s{S_T0}, s{S_T1}")
        e(f"s_lshl_b32 s4, s{S_T0}, 4")
        e(f"s_add_u32 s4, s4, {1152*pace['lag']}")
    e(f"s_lshl_b32 s{S_T0}, s2, 3")
    e(f"s_add_u32 s{S_T0}, s{S_T0}, s{S_WAVE}")
    e(f"s_cmp_lg_u32 s{S_T0}, 7")
    e("s_cbranch_scc1 L_notag")
    e(f"s_memrealtime s[{S_T1}:{S_T1+1}]")
    e("s_waitcnt lgkmcnt(0)")
    e(f"s_or_b32 s{S_T1}, s{S_T1}, 1")
    e(f"v_mov_b32 v{A1}, s{S_T1}")
    e("s_mov_b64 exec, 1")
    e(f"buffer_store_dword v{A1}, v{AZ}, s[{S_DBG}:{S_DBG+3}], 0 offen sc1")
    e("s_mov_b64 exec, -1")
    e.label("L_notag")
    if wostart:
        wait_flag("L_ws", LDS_FLAG+4, wostart, AS, A0, 8)
    stamp(4)
    if dsw is not None:
        e(f"s_bitcmp1_b32 s2, {dsw}")
        e(f"s_cselect_b32 s{S_NPRE}, {64*1152}, 0")
    def hook():
        if pace:
            call(); e("s_waitcnt vmcnt(0)")
    if wob:
        e(f"s_lshr_b32 s{S_T0}, s{S_BP}, 2")
        e(f"s_and_b32 s{S_T0}, s{S_T0}, {wob[2]-1}")
        e(f"s_lshl_b32 s{S_T0}, s{S_T0}, 3")
        e(f"v_add_u32 v{A2}, s{S_T0}, v{AS}")
    for j in range(4):
        for hh in range(2):
            for t in range(8):
                if wob and t % wog == 0:
                    gi = ((j*2+hh)*8 + t) // wog
                    wait_flag(f"L_wb{gi}", LDS_H + 8*int(wob[0] + gi*wob[1]), 1, A2, A0, 4, hook)
                if dsw is not None and t % 4 == 0:
                    if j & 1: e(f"s_sub_u32 s{S_T0}, {(64*j+32*hh+(t>>2)*8)*1152}, s{S_NPRE}")
                    else: e(f"s_add_u32 s{S_T0}, s{S_NPRE}, {(64*j+32*hh+(t>>2)*8)*1152}")
                elif t % 4 == 0 or (wob and t % wog == 0): e(f"s_mov_b32 s{S_T0}, {(64*j+32*hh+(t>>2)*8)*1152}")
                e(f"buffer_load_dwordx3 {vr(BF+4*t,3)}, v{V_WO}, s[{S_WO}:{S_WO+3}], s{S_T0} offen offset:{(t%4)*1152} {wopol}")
                if (t + 1) % wog == 0:
                    call()
                    e("s_waitcnt vmcnt(0)")
            for i in range(6):
                w_, h = i >> 1, i & 1
                sel = S_HI if h else S_LO
                for r in range(4):
                    tl_ = (r & 1) * 4 + ((r >> 1) & 1) * 2
                    e(f"v_perm_b32 v{WF+(j*6+i)*8+hh*4+r}, v{BF+(tl_+1)*4+w_}, v{BF+tl_*4+w_}, s{sel}")
    stamp(5)
    e(f"s_lshl_b32 s{S_T0}, s{S_BP}, 3")
    e(f"s_lshr_b32 s{S_T1}, s{S_HKV}, 1")
    e(f"s_add_u32 s{S_T0}, s{S_T0}, s{S_T1}")
    e(f"s_mul_i32 s{S_T0}, s{S_T0}, 1152")
    e(f"s_mul_i32 s{S_T1}, s{S_T3}, 192")
    e(f"s_add_u32 s{S_T0}, s{S_T0}, s{S_T1}")
    e(f"s_and_b32 s{S_T1}, s{S_HKV}, 1")
    e(f"s_mul_i32 s{S_T1}, s{S_T1}, 96")
    e(f"s_add_u32 s{S_T0}, s{S_T0}, s{S_T1}")
    e(f"v_mul_u32_u24 v{A0}, 12, v{AN}")
    e(f"v_lshl_add_u32 v{A0}, v{AG}, 2, v{A0}")
    e(f"v_add_u32 v{V_OO}, s{S_T0}, v{A0}")
    e(f"s_cmp_lg_u32 s{S_WAVE}, 3")
    e("s_cbranch_scc1 L_nochk")
    e(f"s_mov_b32 s{S_T1}, 0x40000")
    e.label("L_chk")
    e(f"buffer_load_dword v{A0}, v{AZ}, s[{S_DBG}:{S_DBG+3}], 0 offen sc1")
    e("s_waitcnt vmcnt(0)")
    e(f"v_readfirstlane_b32 s{S_T0}, v{A0}")
    e(f"s_sub_u32 s{S_T1}, s{S_T1}, 1")
    e("s_cbranch_scc1 L_chkd")
    e(f"s_cmp_lg_u32 s{S_T0}, 0")
    e("s_cbranch_scc1 L_chkd")
    e("s_sleep 8")
    e("s_branch L_chk")
    e.label("L_chkd")
    e(f"ds_write_b32 v{AS}, v{A0} offset:{LDS_FLAG+8-SB}")
    e(f"v_mov_b32 v{A1}, 1")
    e("s_mov_b64 exec, 1")
    e("s_waitcnt lgkmcnt(0)")
    e(f"ds_add_u32 v{AS}, v{A1} offset:{LDS_FLAG+12-SB}")
    e("s_mov_b64 exec, -1")
    e.label("L_nochk")
    AF, G, G0, SEL, DD = 200, 216, 220, 224, 228
    F = AF
    e(f"v_mov_b32 v{V_SB}, {SB}")
    e(f"v_and_b32 v{A1}, 1, v0")
    e(f"v_mul_u32_u24 v{V_IDX}, 0xaaaa, v{A1}")
    e(f"v_add_u32 v{V_IDX}, 0x4444, v{V_IDX}")
    e(f"v_lshlrev_b32 v{A1}, 4, v{A1}")
    e(f"v_mov_b32 v{A2}, 0x3f80")
    e(f"v_lshlrev_b32 v{A1}, v{A1}, v{A2}")
    e(f"v_and_b32 v{A2}, 14, v0")
    for q in range(3):
        e(f"v_cmp_eq_u32 vcc, {4*q}, v{A2}")
        e("s_nop 1")
        e(f"v_cndmask_b32 v{SEL+q}, 0, v{A1}, vcc")
    e(f"v_mov_b32 v{SEL+3}, 0")
    if tl:
        e(f"s_mov_b32 s27, {tl['c'] - pace['off']}")
        e(f"s_cmp_lt_u32 s{S_HKV}, 8")
        e(f"s_cselect_b32 s27, {tl.get('c0', tl['c']) - pace['off']}, s27")
    if own:
        e(f"s_and_b32 s{S_T0}, s{S_HKV}, 7")
        e(f"s_lshl_b32 s{S_T0}, s{S_T0}, 3")
        e(f"s_lshl_b64 s[24:25], 0xff, s{S_T0}")
        e(f"s_cmp_lt_u32 s{S_HKV}, 8")
        e(f"s_cselect_b64 s[24:25], 0, s[24:25]")
    e(f"s_mov_b32 s{S_PW}, 0")
    e(f"s_mov_b32 s{S_WS+2}, 0")
    e(f"s_mov_b32 s{S_OUT+2}, 0")
    e(f"s_mov_b32 s{S_CAP}, 0")
    wait_flag("L_w0", LDS_FLAG+12, 3, V_SB, F, 8, hook)
    call()
    if pace:
        e("s_waitcnt vmcnt(0)")
        e("s_mov_b32 s23, 0")
    e(f"ds_read_b32 v{V_TAG}, v{V_SB} offset:{LDS_FLAG+8-SB}")
    for i in range(24): e(f"v_mov_b32 v{PA+i}, 0")
    e("s_waitcnt lgkmcnt(0)")
    e(f"v_mov_b32 v{G+3}, v{V_TAG}")
    e("s_branch L_tail")
    e.label("L_barB")
    e("s_mov_b64 exec, -1")
    e("s_waitcnt vmcnt(0)")
    if pace:
        e.label("L_agl")
        e(f"s_cmp_gt_u32 s22, {8*pace['qend']}")
        e("s_cbranch_scc1 L_agd")
        call()
        e("s_waitcnt vmcnt(0)")
        e("s_sleep 4")
        e("s_branch L_agl")
        e.label("L_agd")
        call()
    for i in range(24): e(f"v_mov_b32 v{PA+i}, 0")
    for i in range(4): e(f"v_mov_b32 v{G0+i}, v{G+i}")
    e(f"v_add_u32 v{V_BRD}, {8*OB_ROW}, v{V_BRD}")
    e(f"s_mov_b32 s{S_PW}, {4*6*4096}")
    e(f"s_mov_b32 s{S_WS+2}, {GRP}")
    e(f"s_mov_b32 s{S_OUT+2}, {128*1152}")
    e(f"s_mov_b32 s{S_CAP}, 0x40000")
    if warm is not None:
        for x_ in range(2):
            e(f"buffer_load_dwordx4 {vr(F+4*x_,4)}, v{V_PL}, s[{S_WS}:{S_WS+3}], 0 offen offset:{2048*x_} {warm}")
        e("s_waitcnt vmcnt(0)")
    if g0early: e(f"buffer_store_dwordx4 {vr(G0,4)}, v{V_STO}, s[{S_WS}:{S_WS+3}], 0 offen {spol}")
    if tprio: e(f"s_setprio {tprio}")
    stamp(6)
    e("s_barrier")
    if not lite: stamp(7)
    e.label("L_tail")
    def adds(i):
        e(f"v_pk_add_f32 {vr(PA+4*i,2)}, {vr(PA+4*i,2)}, {vr(PA+4*i+2,2)}")
        e(f"v_add_f32 v{PA+4*i}, v{PA+4*i}, v{PA+4*i+1}")
        if i & 1: e(f"v_cvt_pk_bf16_f32 v{G+(i>>1)}, v{PA+4*i-4}, v{PA+4*i}")
    if dsplit:
        for hf in range(2):
            for j in (hf, hf + 2):
                e(f"ds_read_b128 {vr(AF+4*j,4)}, v{V_BRD} offset:{j*128}")
            if hf == dsplit - 1: e(f"buffer_store_dwordx4 {vr(G0,4)}, v{V_STO}, s[{S_WS}:{S_WS+3}], 0 offen {spol}")
            for i in range(6):
                for j in (hf, hf + 2):
                    if i == 0: e(f"s_waitcnt lgkmcnt({1 - (j >> 1)})")
                    e(f"v_smfmac_f32_16x16x64_bf16 {vr(PA+4*i,4)}, {vr(AF+4*j,4)}, {vr(WF+(j*6+i)*8,8)}, v{V_IDX}")
                if hf and i >= 4: adds(i - 4)
            if hf == 0:
                e(f"s_cmp_eq_u32 s{S_PW}, 0")
                e("s_cbranch_scc1 L_t2")
                e("s_barrier")
                e.label("L_t2")
        for i in range(2, 6): adds(i)
    else:
        for j in range(4):
            e(f"ds_read_b128 {vr(AF+4*j,4)}, v{V_BRD} offset:{j*128}")
        if tl: e(f"ds_read_b64 {vr(DD,2)}, v{V_SB} offset:{LDS_LINE-SB}")
        if not g0early: e(f"buffer_store_dwordx4 {vr(G0,4)}, v{V_STO}, s[{S_WS}:{S_WS+3}], 0 offen {spol}")
        def adds(i):
            e(f"v_pk_add_f32 {vr(PA+4*i,2)}, {vr(PA+4*i,2)}, {vr(PA+4*i+2,2)}")
            e(f"v_add_f32 v{PA+4*i}, v{PA+4*i}, v{PA+4*i+1}")
            if i & 1: e(f"v_cvt_pk_bf16_f32 v{G+(i>>1)}, v{PA+4*i-4}, v{PA+4*i}")
        for i in range(6):
            for j in range(4):
                if i == 0: e(f"s_waitcnt lgkmcnt({3-j+(1 if tl else 0)})")
                e(f"v_smfmac_f32_16x16x64_bf16 {vr(PA+4*i,4)}, {vr(AF+4*j,4)}, {vr(WF+(j*6+i)*8,8)}, v{V_IDX}")
            if tl and i == 0:
                e("s_waitcnt lgkmcnt(0)")
                e(f"v_readfirstlane_b32 s26, v{DD}")
                e(f"v_readfirstlane_b32 s{S_T2}, v{DD+1}")
            if tl and i == 1:
                e(f"s_mul_i32 s{S_T0}, s{S_T2}, 23")
                e(f"s_ashr_i32 s{S_T0}, s{S_T0}, 5")
                e(f"s_add_u32 s26, s26, s{S_T0}")
                e(f"s_add_u32 s26, s26, s27")
            if tl and i == 4: e("s_memrealtime s[20:21]")
            if i >= 2: adds(i - 2)
        e("s_nop 0")
        adds(4)
        e("s_nop 1")
        adds(5)
    e(f"buffer_store_dwordx4 {vr(G,4)}, v{V_STO}, s[{S_WS}:{S_WS+3}], s{S_PW} offen {spol}")
    e("s_setprio 0")
    stamp(8)
    if hint:
        HA, HD = PA, PA + 1
        e(f"s_cmp_lg_u32 s{S_PW}, 0")
        e("s_cbranch_scc1 L_hb")
        if hwarm: e(f"s_mov_b32 s{S_WS+2}, {GRP}")
        e.label("L_hp")
        if hd: e(f"s_sleep {hd}")
        e(f"v_lshlrev_b32 v{HA}, 7, v0")
        e(f"v_add_u32 v{HA}, {GD}, v{HA}")
        e("s_mov_b32 exec_hi, 0")
        e(f"s_mov_b32 s{S_T3}, s{S_CAP}")
        e.label("L_h1")
        e(f"buffer_load_dword v{HD+1}, v{HA}, s[{S_WS}:{S_WS+3}], 0 offen sc1")
        e("s_waitcnt vmcnt(0)")
        e(f"v_subrev_u32 v{HD}, s{S_H0}, v{HD+1}")
        e("s_mov_b32 exec_lo, -1")
        e.label("L_h2")
        e(f"s_memrealtime s[{S_T1}:{S_T1+1}]")
        e("s_waitcnt lgkmcnt(0)")
        e(f"s_sub_u32 s{S_T1}, s{S_T1}, s{S_H0}")
        e(f"s_sub_u32 s{S_T2}, s{S_T1}, s{S_H0+2}")
        e(f"s_add_u32 s{S_T1}, s{S_T1}, 8")
        e(f"v_cmp_lt_u32 s[{S_MASK}:{S_MASK+1}], s{S_T2}, v{HD}")
        e(f"v_cmp_lt_u32 vcc, s{S_T1}, v{HD}")
        e(f"s_sub_u32 s{S_T3}, s{S_T3}, 1")
        e("s_cbranch_scc1 L_h3")
        e(f"s_cmp_eq_u32 s{S_MASK}, 0")
        e("s_cbranch_scc1 L_h3")
        e("s_cmp_eq_u32 vcc_lo, 0")
        e("s_cbranch_scc1 L_h2")
        e("s_mov_b32 exec_lo, vcc_lo")
        if len(hint) > 2: e(f"s_sleep {hint[2]}")
        e("s_branch L_h1")
        e.label("L_h3")
        e("s_mov_b64 exec, -1")
        e(f"s_cmp_lg_u32 s{S_WAVE}, 0")
        if hwarm: e(f"s_mov_b32 s{S_WS+2}, 0")
        e("s_cbranch_scc1 L_hc")
        e("s_barrier")
        if stamps:
            stamp(8)
            e("s_branch L_sfin")
        else: e("s_endpgm")
        e.label("L_hb")
        e("s_barrier")
        e.label("L_hc")
    e(f"s_mov_b32 s{S_T1}, s{S_CAP}")
    if pp:
        SL = [208, 232, 240, 248][:pp['d']]
        D = len(SL)
        MS = S_MASK
        def issue(k):
            for x_ in range(2):
                e(f"buffer_load_dwordx4 {vr(SL[k]+4*x_,4)}, v{V_PL}, s[{S_WS}:{S_WS+3}], 0 offen offset:{2048*x_} {ppol}")
        e(f"v_mov_b32 v{F+3}, 0")
        e(f"v_mov_b32 v{F+7}, 0")
        e(f"s_mov_b64 s[{MS}:{MS+1}], -1")
        if pp['d0']: e(f"s_sleep {pp['d0']}")
        for k in range(D):
            issue(k)
            if k < D - 1: e(f"s_sleep {pp['gap']}")
        e.label("L_poll")
        for k in range(D):
            e(f"s_waitcnt vmcnt({2*(D-1)})")
            e(f"v_cmp_eq_u32 vcc, v{SL[k]+3}, v{V_TAG}")
            e(f"v_cmp_eq_u32 s[{S_T2-1}:{S_T2}], v{SL[k]+7}, v{V_TAG}")
            e(f"s_and_b64 exec, vcc, s[{S_T2-1}:{S_T2}]")
            e(f"s_andn2_b64 s[{MS}:{MS+1}], s[{MS}:{MS+1}], exec")
            for x_ in range(2):
                e(f"v_mov_b64 {vr(F+4*x_,2)}, {vr(SL[k]+4*x_,2)}")
                e(f"v_mov_b32 v{F+4*x_+2}, v{SL[k]+4*x_+2}")
            e("s_cbranch_scc0 L_pdone")
            e(f"s_mov_b64 exec, s[{MS}:{MS+1}]")
            e(f"s_sub_u32 s{S_CAP}, s{S_CAP}, 1")
            e("s_cbranch_scc1 L_pdone")
            if pp.get('bo'):
                e(f"s_bcnt1_i32_b64 s{S_T0}, exec")
                e(f"s_cmp_lt_u32 s{S_T0}, {pp['bo'][0]}")
                e(f"s_cbranch_scc1 L_pb{k}")
                e(f"s_sleep {pp['bo'][1]}")
                e.label(f"L_pb{k}")
            issue(k)
        e("s_branch L_poll")
        e.label("L_pdone")
        e("s_mov_b64 exec, -1")
        stamp(9)
        e("s_nop 0")
    else:
        if tl:
            e("s_waitcnt lgkmcnt(0)")
            e(f"s_sub_i32 s26, s26, s20")
            e(f"s_min_i32 s26, s26, {tl['dmax']}")
            e(f"s_cmp_lg_u32 s{S_T2}, 0")
            e(f"s_cselect_b32 s26, s26, {tl['ddef']}")
            if 'spin' in tl:
                e(f"s_cmp_lt_i32 s26, {tl.get('dmin', 12)}")
                e("s_cbranch_scc1 L_poll")
                e(f"s_add_u32 s26, s26, s20")
                e.label("L_pbo")
                if tl['spin'] is not None: e(f"s_sleep {tl['spin']}")
                e("s_memrealtime s[20:21]")
                e("s_waitcnt lgkmcnt(0)")
                e(f"s_sub_u32 s{S_T0}, s26, s20")
                e(f"s_cmp_gt_i32 s{S_T0}, 0")
                e("s_cbranch_scc1 L_pbo")
            else:
                e(f"s_cmp_lt_i32 s26, 3")
                e("s_cbranch_scc1 L_poll")
                e.label("L_pbo")
                e("s_sleep 1")
                e(f"s_sub_i32 s26, s26, {tl.get('dec', 3)}")
                e(f"s_cmp_ge_i32 s26, 3")
                e("s_cbranch_scc1 L_pbo")
        else:
            if pbo: e.label("L_pbo")
            if pdelay: e(f"s_sleep {pdelay}")
        e.label("L_poll")
        for x_ in range(2):
            e(f"buffer_load_dwordx4 {vr(F+4*x_,4)}, v{V_PL}, s[{S_WS}:{S_WS+3}], 0 offen offset:{2048*x_} {ppol}")
        e("s_waitcnt vmcnt(0)")
        e(f"v_cmp_ne_u32 vcc, v{F+3}, v{V_TAG}")
        e(f"v_cmp_ne_u32 s[{S_MASK}:{S_MASK+1}], v{F+7}, v{V_TAG}")
        if own: e(f"s_andn2_b64 s[{S_MASK}:{S_MASK+1}], s[{S_MASK}:{S_MASK+1}], s[24:25]")
        e(f"s_or_b64 exec, vcc, s[{S_MASK}:{S_MASK+1}]")
        e("s_cbranch_scc0 L_pdone")
        e(f"s_sub_u32 s{S_T1}, s{S_T1}, 1")
        if pbo:
            e("s_cbranch_scc1 L_pdone")
            e("s_cmp_eq_u64 exec, -1")
            e("s_cbranch_scc0 L_poll")
            e("s_branch L_pbo")
        elif slp is None:
            e("s_cbranch_scc0 L_poll")
        else:
            e("s_cbranch_scc1 L_pdone")
            e(f"s_bcnt1_i32_b64 s{S_T0}, exec")
            e(f"s_cmp_lt_u32 s{S_T0}, {slp[2]}")
            e("s_cbranch_scc1 L_poll")
            e(f"s_sleep {slp[3]}")
            e(f"s_cmp_lt_u32 s{S_T0}, {slp[0]}")
            e("s_cbranch_scc1 L_poll")
            e(f"s_sleep {slp[1]}")
            e("s_branch L_poll")
        e.label("L_pdone")
        e("s_mov_b64 exec, -1")
        stamp(9)
        e(f"v_mov_b32 v{F+3}, 0")
        e(f"v_mov_b32 v{F+7}, 0")
        if own:
            for i in range(3): e(f"v_cndmask_b32 v{F+4+i}, v{F+4+i}, v{G+i}, s[24:25]")
        e("s_nop 0")
    e(f"v_mfma_f32_16x16x32_bf16 {vr(DD,4)}, {vr(SEL,4)}, {vr(F,4)}, 0")
    e(f"v_mfma_f32_16x16x32_bf16 {vr(DD,4)}, {vr(SEL,4)}, {vr(F+4,4)}, {vr(DD,4)}")
    e("s_mov_b32 vcc_lo, 0x00ff00ff")
    e("s_mov_b32 vcc_hi, 0x000000ff")
    e("s_nop 5")
    for k in range(2):
        e(f"v_add_f32_dpp v{DD+k}, v{DD+k}, v{DD+k} row_ror:8 row_mask:0xf bank_mask:0xf")
    e("s_mov_b64 exec, vcc")
    e(f"v_cvt_pk_bf16_f32 v{DD+2}, v{DD}, v{DD+1}")
    e(f"buffer_store_dword v{DD+2}, v{V_OO}, s[{S_OUT}:{S_OUT+3}], 0 offen {opol}")
    e(f"s_cmp_eq_u32 s{S_PW}, 0")
    e("s_cbranch_scc1 L_barB")
    if stamps:
        e("s_mov_b64 exec, -1")
        stamp(10)
        e("s_waitcnt vmcnt(0)")
        stamp(11)
        e.label("L_dump")
        e(f"s_add_u32 s{S_WS}, s46, 0x800000")
        e(f"s_addc_u32 s{S_WS+1}, s47, 0")
        e(f"s_mov_b32 s{S_WS+2}, 0x100000")
        e(f"s_mov_b32 s{S_WS+3}, 0x00020000")
        e(f"s_lshl_b32 s{S_T0}, s2, 3")
        e(f"s_add_u32 s{S_T0}, s{S_T0}, s{S_WAVE}")
        e(f"s_lshl_b32 s{S_T0}, s{S_T0}, 6")
        e("v_mov_b32 v1, 0")
        for i in range(NST):
            e(f"v_mov_b32 v2, s{64+2*i}")
            e(f"buffer_store_dword v2, v1, s[{S_WS}:{S_WS+3}], s{S_T0} offen offset:{4*i}")
        e(f"s_getreg_b32 s{S_T1}, hwreg(HW_REG_XCC_ID)")
        e(f"v_mov_b32 v2, s{S_T1}")
        e(f"buffer_store_dword v2, v1, s[{S_WS}:{S_WS+3}], s{S_T0} offen offset:56")
        e("v_mov_b32 v2, s27" if pace else "v_mov_b32 v2, 0")
        e(f"buffer_store_dword v2, v1, s[{S_WS}:{S_WS+3}], s{S_T0} offen offset:52")
    e.label("L_end")
    e("s_endpgm")
    if pace:
        RS = 1152
        step, span, lag = pace['step'], pace['span'], pace['lag']
        R, T_, REF, AD = 244, 248, 252, 254
        e.label("L_agent")
        e("s_cmp_eq_u32 s23, 0")
        e("s_cbranch_scc1 L_ag1")
        e("s_mov_b32 s23, 0")
        for i in range(4):
            e(f"v_sub_u32 v{R+i}, v{R+i}, v{REF}")
            e(f"v_add_u32 v{T_+i}, 0x1000, v{R+i}")
        e(f"v_max_u32 v{T_}, v{T_}, v{T_+1}")
        e(f"v_max3_u32 v{T_}, v{T_}, v{T_+2}, v{T_+3}")
        e(f"v_cmp_gt_u32 vcc, 0x1200, v{T_}")
        e(f"v_add_u32 v{R}, v{R}, v{R+1}")
        e(f"v_add_u32 v{R+1}, v{R+2}, v{R+3}")
        e(f"v_cvt_f32_i32 v{R}, v{R}")
        e(f"v_cvt_f32_i32 v{R+1}, v{R+1}")
        e(f"v_cndmask_b32 v{R}, 0, v{R}, vcc")
        e(f"v_cndmask_b32 v{R+1}, 0, v{R+1}, vcc")
        e(f"s_bcnt1_i32_b64 s5, vcc")
        for sh_ in (8, 4, 2, 1):
            e("s_nop 0")
            for r_ in (R, R+1):
                e(f"v_add_f32_dpp v{r_}, v{r_}, v{r_} row_ror:{sh_} row_mask:0xf bank_mask:0xf")
        for op in ("v_permlane32_swap_b32", "v_permlane16_swap_b32"):
            e(f"v_mov_b32 v{R+2}, v{R}")
            e(f"v_mov_b32 v{R+3}, v{R+1}")
            e("s_nop 1")
            e(f"{op} v{R}, v{R+2}")
            e(f"{op} v{R+1}, v{R+3}")
            e("s_nop 1")
            e(f"v_add_f32 v{R}, v{R}, v{R+2}")
            e(f"v_add_f32 v{R+1}, v{R+1}, v{R+3}")
        e(f"v_cvt_f32_u32 v{R+2}, s5")
        e(f"v_rcp_f32 v{R+2}, v{R+2}")
        e(f"v_sub_f32 v{R}, v{R+1}, v{R}")
        e(f"v_mul_f32 v{R}, {f32((1.0 - pace.get('eps', 0.0)) / (2 * span))}, v{R}")
        e(f"v_mul_f32 v{R+1}, 0.5, v{R+1}")
        e(f"v_mul_f32 v{R}, v{R}, v{R+2}")
        e(f"v_mul_f32 v{R+1}, v{R+1}, v{R+2}")
        e(f"s_sub_i32 s6, {8*(pace['b'] + step + lag)}, s22")
        e(f"v_cvt_f32_i32 v{R+3}, s6")
        e(f"v_mul_f32 v{R+3}, 0x3e000000, v{R+3}")
        e(f"v_fmac_f32 v{R+1}, v{R+3}, v{R}")
        e(f"v_mul_f32 v{R}, 0x41800000, v{R}")
        e(f"v_cvt_i32_f32 v{R+3}, v{R}")
        e(f"v_cvt_i32_f32 v{R+2}, v{R+1}")
        e(f"v_add_u32 v{R+2}, {pace['off']}, v{R+2}")
        e(f"v_add_u32 v{R+2}, v{R+2}, v{REF}")
        e(f"v_mov_b32 v{AD}, {SB}")
        e(f"s_cmp_lt_u32 s5, 32")
        e("s_cbranch_scc1 L_ag1")
        e(f"ds_write_b64 v{AD}, {vr(R+2,2)} offset:{LDS_LINE-SB}")
        e.label("L_ag1")
        e(f"s_cmp_gt_u32 s22, {8*pace['qend']}")
        e("s_cbranch_scc1 L_agr")
        e(f"s_add_u32 s5, s22, {SB}")
        e(f"v_mov_b32 v{AD}, s5")
        e(f"ds_read_b64 {vr(T_,2)}, v{AD} offset:{LDS_H-SB-8*span}")
        e(f"ds_read_b64 {vr(T_+2,2)}, v{AD} offset:{LDS_H-SB}")
        e("s_waitcnt lgkmcnt(0)")
        e(f"v_min_u32 v{REF+1}, v{T_+2}, v{T_+3}")
        e(f"v_mov_b32 v{REF}, v{T_+2}")
        e(f"v_readfirstlane_b32 s5, v{REF+1}")
        e("s_cmp_eq_u32 s5, 0")
        e("s_cbranch_scc1 L_agr")
        e(f"s_mul_i32 s5, s22, {RS//8}")
        e(f"v_lshlrev_b32 v{AD}, 4, v0")
        e(f"buffer_load_dwordx4 {vr(R,4)}, v{AD}, s[16:19], s5 offen {pace.get('rpol', '')}")
        e(f"s_add_u32 s22, s22, {8*step}")
        e("s_mov_b32 s23, 1")
        e("s_and_b32 s6, s2, 24")
        e("s_cbranch_scc1 L_agr")
        e("s_add_u32 s5, s5, s4")
        e("s_mov_b64 exec, 1")
        e(f"buffer_store_dwordx4 {vr(T_,4)}, v{AD}, s[16:19], s5 offen sc1")
        e("s_mov_b64 exec, -1")
        e.label("L_agr")
        e("s_setpc_b64 s[20:21]")

    e.raw('.section .rodata,"a"')
    e.raw(f""".p2align 6
.amdhsa_kernel {KN}
  .amdhsa_next_free_vgpr 256
  .amdhsa_next_free_sgpr 96
  .amdhsa_accum_offset 256
  .amdhsa_group_segment_fixed_size 0
  .amdhsa_kernarg_size 64
  .amdhsa_user_sgpr_count 2
  .amdhsa_user_sgpr_kernarg_segment_ptr 1
  .amdhsa_system_sgpr_workgroup_id_x 1
.end_amdhsa_kernel""")
    open(name, "w").write(e.text())
    return name

PB = dict(b=16, sh=5, nmax=2, q0=4, qend=24, step=2, span=4, lag=2, off=0)
if __name__ == "__main__":
    S = dict(stamps=True, cks=(112, 108, 104))
    L = [gen("k10_t0.s", **S), gen("k10_p0.s", pace=PB, **S), gen("k10_p12.s", pace=dict(PB, off=12), **S), gen("k10_p-12.s", pace=dict(PB, off=-12), **S)]
    print(" ".join(L))
    print(" ".join(x[:-2] for x in L))
    import json; print(json.dumps(["work/bench.py", "work/an8.py", "cdna_kernels/cdna_launch.py", "cdna_kernels/cdna_unwritten_srd_check.py"] + ["work/"+x for x in L]))
```

```python
from gen14 import gen, PB
import mk
S=dict(slp=None, pbo=True, fast=2, fwarm=1, npre=(0,2,4,6), rho=True)
W=[16,12,8,4,0]
def lv(tab, off, sh=4, waits=W, norm=2, endcap=(21,0), **k): return dict(PB, sh=sh, off=off, lv=dict(tab=tab, waits=waits, norm=norm, endcap=endcap), **k)
B=[0,0,1,2,2,2,3,4]
P=lv(B,68)
L=[gen("k16h_a.s", pace=P, pdelay=20, **S), gen("k16h_b.s", pace=P, pdelay=22, **S)]
mk.show(L)
```

```python
import sys, math, struct
from gen2 import HEADER, E, vr

KN = "standalone__gqa_block_cached__sampling_kernel"
V_KOFF, V_VOFF, V_QRD, V_SA, V_MLW, V_OBW, V_MLR = 1, 2, 3, 4, 5, 6, 7
V_MC, V_L, V_AL, V_T0, V_T1, V_T2, V_N, V_G = 8, 9, 10, 11, 12, 13, 14, 15
QF, XT, V_FL, V_Z, V_LR, V_H, V_LN, OA = 16, 24, 25, 26, 28, 29, 30, 32
QF1, SH = 32, 40
BUF = [64, 96, 128, 160]
TMP, ST, PT, PP, SS = 192, 224, 240, 248, 252
XF, XB, QA, WB = 16, 36, 44, 76
WF, BF, PA = 8, 200, 232
S_K, S_V, S_WQ, S_X, S_WO, S_WS = 8, 12, 16, 20, 24, 28
S_OUT, S_DBG = 8, 12
S_WAVE, S_HKV, S_BP = 3, 48, 49
S_LO, S_HI, S_C = 50, 51, 52
S_IT, S_OFF, S_T0, S_T1, S_T2, S_T3 = 53, 54, 55, 56, 57, 58
S_NPRE = 59
S_MASK = 60
S_U, S_CAP = 62, 62
S_THR, S_Q, S_PH = 7, 6, 5
OB_ROW = 544; QP_ROW = 1040
LDS_ML = 131072
LDS_FLAG = LDS_ML + 512
LDS_OB = LDS_FLAG + 32
LDS_QP = LDS_OB + 16 * OB_ROW
LDS_H = LDS_QP + 16 * QP_ROW
LDS_LINE = LDS_H + 248
LDS_TOTAL = LDS_H + 256
NST = 12
GD = 48 * 4096
GRP = GD + 4096
NEG = "0xf149f2ca"
def f32(x): return "0x%08x" % struct.unpack("<I", struct.pack("<f", x))[0]

def gen(name, pol="nt", wpol="", wopol="", stamps=False, npre=(0,4,6,0,4,6,0,6),
        wog=2, prio=(3, 2), qdepth=3, nwb=4, wostart=2, bar1=8, nwarm=1,
        slp=(40, 16, 17, 4), qprio=3, kprio0=1, tprio=2, spol='sc1', ppol='sc1', opol='', hb=2, nq=9,
        pace=None, cks=None, g0early=False, pdelay=0, pp=None, warm=None, hint=None, lite=False, hwarm=False, hd=0, meter=None, sched=None, cmode=0, wob=None, pbo=False, dsplit=False, dsw=None, fast=False, fwarm=False, tl=None, own=False, rho=False, hpos=0):
    e = E()
    QT = WB + 32 * nwb
    SB = LDS_ML
    def stamp(i):
        if not stamps: return
        e(f"s_memrealtime s[{64+2*i}:{65+2*i}]")
        e("s_waitcnt lgkmcnt(0)")
    def table(vals):
        t = 0
        for i in range(8): t |= vals[i % len(vals)] << (4 * i)
        return t
    e.raw(HEADER.rstrip("\n"))
    e.raw(f"; @launch grid=(256,1,1) block=(512,1,1) lds={LDS_TOTAL}")
    if stamps: e.raw(f"; NSTAMPS={NST}")
    e.raw('.amdgcn_target "amdgcn-amd-amdhsa--gfx950"')
    e.raw(".text")
    e.raw(f".globl {KN}\n.p2align 8\n.type {KN},@function\n{KN}:")
    e("s_cmp_lt_u32 s2, 256")
    e("s_cbranch_scc1 L_main")
    e.label("L_end0")
    e("s_endpgm")
    e.label("L_main")
    stamp(0)
    e("s_load_dwordx8 s[32:39], s[0:1], 0")
    e("s_load_dwordx8 s[40:47], s[0:1], 32")
    e("v_lshrrev_b32 v1, 6, v0")
    e("v_and_b32 v0, 63, v0")
    e(f"v_readfirstlane_b32 s{S_WAVE}, v1")
    e(f"v_and_b32 v{V_N}, 15, v0")
    e(f"v_lshrrev_b32 v{V_G}, 4, v0")
    if hb == 0:
        e(f"s_and_b32 s{S_T0}, s2, 7")
        e(f"s_lshl_b32 s{S_HKV}, s{S_T0}, 1")
        e(f"s_bfe_u32 s{S_T0}, s2, 0x10003")
        e(f"s_add_u32 s{S_HKV}, s{S_HKV}, s{S_T0}")
    elif hb == 2:
        e(f"s_lshr_b32 s{S_T0}, s2, 1")
        e(f"s_xor_b32 s{S_T0}, s{S_T0}, s2")
        e(f"s_and_b32 s{S_T0}, s{S_T0}, 4")
        e(f"s_mul_i32 s{S_T0}, s{S_T0}, 3")
        e(f"s_xor_b32 s{S_HKV}, s{S_T0}, s2")
        e(f"s_and_b32 s{S_HKV}, s{S_HKV}, 15")
    else:
        e(f"s_and_b32 s{S_HKV}, s2, 15")
    e(f"s_lshr_b32 s{S_BP}, s2, 4")
    if stamps:
        for i in range(1, NST): e(f"s_mov_b32 s{64+2*i}, s64")
    e(f"s_cmp_lt_u32 s{S_WAVE}, 4")
    e("s_cbranch_scc1 L_kv")

    def consts():
        e(f"s_mov_b32 s{S_LO}, 0x05040100")
        e(f"s_mov_b32 s{S_HI}, 0x07060302")
        e(f"s_mov_b32 s{S_MASK}, 0xff00ff00")
        e(f"s_mov_b32 s{S_MASK+1}, 0xff00ff00")
    def unit_mma(buf, bfrag, acc, first, T0):
        def perms(i):
            w_, h = i >> 1, i & 1
            sel = S_HI if h else S_LO
            T = T0 + (i & 1) * 4
            for u_ in range(4):
                e(f"v_perm_b32 v{T+u_}, v{buf+(2*u_+1)*4+w_}, v{buf+(2*u_)*4+w_}, s{sel}")
        perms(0)
        for i in range(8):
            if i + 1 < 8: perms(i + 1)
            else: e("s_nop 1")
            T = T0 + (i & 1) * 4
            cc = "0" if first else vr(acc+4*i, 4)
            e(f"v_mfma_f32_16x16x32_bf16 {vr(acc+4*i,4)}, {vr(T,4)}, {vr(bfrag,4)}, {cc}")
    def wait_flag(lab, off, val, vz, vt, slp_=1, hook=None):
        e.label(lab)
        if hook: hook()
        e(f"ds_read_b32 v{vt}, v{vz} offset:{off-SB}")
        e("s_waitcnt lgkmcnt(0)")
        e(f"v_readfirstlane_b32 s{S_T0}, v{vt}")
        e(f"s_cmp_ge_u32 s{S_T0}, {val}")
        e(f"s_cbranch_scc1 {lab}_d")
        e(f"s_sleep {slp_}")
        e(f"s_branch {lab}")
        e.label(lab + "_d")

    V_WOFF, XO, V_QW = 1, 2, 7
    if qprio: e(f"s_setprio {qprio}")
    e(f"v_lshlrev_b32 v{V_T0}, 16, v{V_G}")
    e(f"v_lshl_add_u32 v{V_WOFF}, v{V_N}, 4, v{V_T0}")
    e(f"v_and_b32 v{V_T1}, 7, v{V_N}")
    e(f"v_mul_u32_u24 v{V_T0}, 1152, v{V_T1}")
    e(f"v_lshl_add_u32 v{V_T0}, v{V_G}, 4, v{V_T0}")
    e(f"s_mul_i32 s{S_U}, s{S_BP}, 9")
    e(f"s_lshr_b32 s{S_U}, s{S_U}, 4")
    e(f"v_lshrrev_b32 v{V_T2}, 3, v{V_N}")
    e(f"v_add_u32 v{V_AL}, s{S_U}, v{V_T2}")
    e(f"v_lshlrev_b32 v{V_AL}, 6, v{V_AL}")
    e(f"s_mov_b32 s{S_WQ+3}, 0x00020000")
    e(f"s_mov_b32 s{S_X+3}, 0x00020000")
    e(f"s_and_b32 s{S_T1}, s{S_WAVE}, 1")
    e(f"s_bfe_u32 s{S_T3}, s{S_WAVE}, 0x10001")
    e(f"s_mul_i32 s{S_T2}, s{S_T1}, {288*8192}")
    e(f"s_lshl_b32 s{S_T0}, s{S_HKV}, 9")
    e(f"s_add_u32 s{S_T2}, s{S_T2}, s{S_T0}")
    e(f"s_lshl_b32 s{S_T0}, s{S_T3}, 8")
    e(f"s_add_u32 s{S_T2}, s{S_T2}, s{S_T0}")
    e(f"s_sub_u32 s{S_WQ+2}, {576*8192}, s{S_T2}")
    e(f"s_mul_i32 s{S_IT}, s{S_T1}, 576")
    e(f"s_mul_i32 s{S_T0}, s{S_BP}, {8*1152}")
    e(f"s_add_u32 s{S_IT}, s{S_IT}, s{S_T0}")
    e(f"s_sub_u32 s{S_X+2}, {128*1152}, s{S_IT}")
    for i in range(5):
        e(f"v_add_u32 v{V_MC}, {i*128}, v{V_AL}")
        e(f"v_add_u32 v{V_L}, {i*128-576}, v{V_AL}")
        e(f"v_min_u32 v{V_MC}, v{V_MC}, v{V_L}")
        e(f"v_add_u32 v{XO+i}, v{V_MC}, v{V_T0}")
    e("s_waitcnt lgkmcnt(0)")
    e(f"s_add_u32 s{S_WQ}, s38, s{S_T2}")
    e(f"s_addc_u32 s{S_WQ+1}, s39, 0")
    e(f"s_add_u32 s{S_X}, s32, s{S_IT}")
    e(f"s_addc_u32 s{S_X+1}, s33, 0")
    stamp(1)
    for i in range(5):
        e(f"buffer_load_dwordx4 {vr(XF+4*i,4)}, v{XO+i}, s[{S_X}:{S_X+3}], 0 offen")
    def q_setup():
        consts()
        e(f"v_mul_u32_u24 v{V_T0}, {QP_ROW}, v{V_T1}")
        e(f"v_lshl_add_u32 v{V_T2}, v{V_G}, 1, v{V_T2}")
        e(f"v_lshl_add_u32 v{V_T0}, v{V_T2}, 6, v{V_T0}")
        e(f"s_mul_i32 s{S_T0}, s{S_T1}, {8*QP_ROW}")
        e(f"s_lshl_b32 s{S_T3}, s{S_T3}, 9")
        e(f"s_add_u32 s{S_T0}, s{S_T0}, s{S_T3}")
        e(f"s_add_u32 s{S_T0}, s{S_T0}, {LDS_QP}")
        e(f"v_add_u32 v{V_QW}, s{S_T0}, v{V_T0}")
        e(f"v_mov_b32 v{V_MC}, {SB}")
        e(f"v_mov_b32 v{V_L}, 1")
    def q_comp(s_):
        xb = XB + 4 * (s_ & 1); xf = XF + 4 * (s_ >> 1)
        for r in range(4):
            e(f"v_mov_b32_dpp v{xb+r}, v{xf+r} quad_perm:[0,1,2,3] row_mask:0xf bank_mask:{'0xc' if s_ & 1 else '0x3'}")
            e(f"v_mov_b32_dpp v{xb+r}, v{xf+r} row_ror:8 row_mask:0xf bank_mask:{'0x3' if s_ & 1 else '0xc'}")
        unit_mma(WB + 32 * (s_ % nwb), xb, QA, s_ == 0, QT)
    if meter:
        qg, qlw = meter['qg'], meter['qlw']
        done = 0
        for i in range(0, 72, qg):
            if i > 0: e(f"s_waitcnt vmcnt({qlw})")
            landed = max(0, i - qlw) if i > 0 else 0
            for t in range(i, i + qg):
                s_, tt = t >> 3, t & 7
                assert s_ - done < nwb
                if tt == 0: e(f"s_lshl_b32 s{S_OFF}, s{S_U}, 18")
                e(f"buffer_load_dwordx4 {vr(WB+32*(s_%nwb)+4*tt,4)}, v{V_WOFF}, s[{S_WQ}:{S_WQ+3}], s{S_OFF} offen {wpol}")
                if tt < 7: e(f"s_add_u32 s{S_OFF}, s{S_OFF}, 8192")
                elif s_ < 8:
                    e(f"s_add_u32 s{S_U}, s{S_U}, 1")
                    e(f"s_cmp_eq_u32 s{S_U}, 9")
                    e(f"s_cselect_b32 s{S_U}, 0, s{S_U}")
            if i == 0:
                q_setup()
                e("s_barrier")
            if landed >= 8 * (done + 1):
                q_comp(done); done += 1
        stamp(2)
        while done < 9:
            e(f"s_waitcnt vmcnt({72 - 8*(done+1)})")
            q_comp(done); done += 1
    else:
        def q_issue(s_):
            if s_ == nwarm: e("s_barrier")
            buf = WB + 32 * (s_ % nwb)
            e(f"s_lshl_b32 s{S_OFF}, s{S_U}, 18")
            for t in range(8):
                e(f"buffer_load_dwordx4 {vr(buf+4*t,4)}, v{V_WOFF}, s[{S_WQ}:{S_WQ+3}], s{S_OFF} offen {wpol}")
                if t < 7: e(f"s_add_u32 s{S_OFF}, s{S_OFF}, 8192")
            if s_ < nq - 1:
                e(f"s_add_u32 s{S_U}, s{S_U}, 1")
                e(f"s_cmp_eq_u32 s{S_U}, 9")
                e(f"s_cselect_b32 s{S_U}, 0, s{S_U}")
            else:
                stamp(2)
            if s_ == min(bar1, nq - 1): e("s_barrier")
        assert nwarm < qdepth
        for s_ in range(qdepth): q_issue(s_)
        consts()
        e(f"v_mul_u32_u24 v{V_T0}, {QP_ROW}, v{V_T1}")
        e(f"v_lshl_add_u32 v{V_T2}, v{V_G}, 1, v{V_T2}")
        e(f"v_lshl_add_u32 v{V_T0}, v{V_T2}, 6, v{V_T0}")
        e(f"s_mul_i32 s{S_T0}, s{S_T1}, {8*QP_ROW}")
        e(f"s_lshl_b32 s{S_T3}, s{S_T3}, 9")
        e(f"s_add_u32 s{S_T0}, s{S_T0}, s{S_T3}")
        e(f"s_add_u32 s{S_T0}, s{S_T0}, {LDS_QP}")
        e(f"v_add_u32 v{V_QW}, s{S_T0}, v{V_T0}")
        e(f"v_mov_b32 v{V_MC}, {SB}")
        e(f"v_mov_b32 v{V_L}, 1")
        assert qdepth < nwb
        for s_ in range(nq):
            nxt = s_ + qdepth
            inflight = min(nq, nxt) - s_ - 1
            e(f"s_waitcnt vmcnt({8*inflight})")
            if nxt < nq: q_issue(nxt)
            xb = XB + 4 * (s_ & 1); xf = XF + 4 * (s_ >> 1)
            for r in range(4):
                e(f"v_mov_b32_dpp v{xb+r}, v{xf+r} quad_perm:[0,1,2,3] row_mask:0xf bank_mask:{'0xc' if s_ & 1 else '0x3'}")
                e(f"v_mov_b32_dpp v{xb+r}, v{xf+r} row_ror:8 row_mask:0xf bank_mask:{'0x3' if s_ & 1 else '0xc'}")
            unit_mma(WB + 32 * (s_ % nwb), xb, QA, s_ == 0, QT)
    e("s_nop 0")
    QCC = WB + 32 * (9 % nwb)
    for i in range(8):
        for ee in range(2):
            e(f"v_cndmask_b32 v{QCC+ee*8+i}, v{QA+4*i+ee}, v{QA+4*i+2+ee}, s[{S_MASK}:{S_MASK+1}]")
    for x_ in range(4):
        e(f"ds_write_b128 v{V_QW}, {vr(QCC+4*x_,4)} offset:{16*x_}")
    e("s_mov_b64 exec, 1")
    e("s_waitcnt lgkmcnt(0)")
    e(f"ds_add_u32 v{V_MC}, v{V_L} offset:{LDS_FLAG-SB}")
    e("s_mov_b64 exec, -1")
    stamp(3)
    e("s_branch L_wo")

    e.label("L_kv")
    if kprio0: e(f"s_setprio {kprio0}")
    e(f"v_lshrrev_b32 v{V_T0}, 1, v{V_N}")
    e(f"v_lshlrev_b32 v{V_T0}, 10, v{V_T0}")
    e(f"v_and_b32 v{V_T1}, 1, v{V_N}")
    e(f"v_lshlrev_b32 v{V_T1}, 4, v{V_T1}")
    e(f"v_lshlrev_b32 v{V_T2}, 5, v{V_G}")
    e(f"v_add3_u32 v{V_KOFF}, v{V_T0}, v{V_T1}, v{V_T2}")
    e(f"v_mov_b32 v{V_Z}, 0")
    e(f"v_mov_b32 v{V_Z+1}, 0")
    e(f"v_mov_b32 v{V_T2}, {SB}")
    e(f"v_lshl_add_u32 v{V_T1}, v0, 2, v{V_T2}")
    for i in range(3): e(f"ds_write_b64 v{V_T2}, {vr(V_Z,2)} offset:{LDS_FLAG+8*i-SB}")
    if pace: e(f"ds_write_b32 v{V_T1}, v{V_Z} offset:{LDS_H-SB}")
    e(f"s_lshl_b32 s{S_T0}, s{S_BP}, 5")
    e(f"s_add_u32 s{S_T0}, s{S_T0}, s{S_HKV}")
    e(f"s_lshl_b32 s{S_T0}, s{S_T0}, 19")
    if len(npre) == 4: e(f"s_and_b32 s{S_T1}, s{S_BP}, 12")
    elif cmode == 0: e(f"s_lshl_b32 s{S_T1}, s{S_BP}, 2")
    else:
        e(f"s_bfe_u32 s{S_T1}, s2, {0x10000 + cmode - 1}")
        e(f"s_lshl_b32 s{S_T1}, s{S_T1}, 4")
        e(f"s_and_b32 s{S_NPRE}, s{S_BP}, 12")
        e(f"s_or_b32 s{S_T1}, s{S_T1}, s{S_NPRE}")
    e(f"s_lshr_b32 s{S_NPRE}, 0x{table(npre):08x}, s{S_T1}")
    e(f"s_and_b32 s{S_NPRE}, s{S_NPRE}, 15")
    e(f"s_mov_b32 s{S_K+2}, 0x880000")
    e(f"s_mov_b32 s{S_K+3}, 0x00020000")
    e(f"s_lshl_b32 s{S_OFF}, s{S_WAVE}, 13")
    e(f"s_lshl_b32 s{S_T2}, s{S_WAVE}, 16")
    e(f"s_lshl_b32 s{S_T3}, s{S_WAVE}, 14")
    e(f"s_or_b32 s{S_T2}, s{S_T2}, s{S_T3}")
    e(f"s_and_b32 s{S_T2}, s{S_T2}, 0x18000")
    e(f"s_add_u32 m0, s{S_T2}, 8192")
    e("s_waitcnt lgkmcnt(0)")
    e(f"s_add_u32 s{S_K}, s34, s{S_T0}")
    e(f"s_addc_u32 s{S_K+1}, s35, 0")
    stamp(1)
    def ld_k(buf):
        for u in range(4):
            for j in range(2):
                e(f"buffer_load_dwordx4 {vr(buf+(u*2+j)*4,4)}, v{V_KOFF}, s[{S_K}:{S_K+3}], s{S_OFF} offen offset:{u*256+j*128} {pol}")
    def ld_v(buf, vo=V_VOFF):
        for t in range(8):
            e(f"buffer_load_dwordx4 {vr(buf+t*4,4)}, v{vo}, s[{S_V}:{S_V+3}], s{S_OFF} offen offset:{t*256} {pol}")
    def ld_lds(lastw):
        for i in range(8):
            e(f"buffer_load_dwordx4 v{V_KOFF}, s[{S_K}:{S_K+3}], s{S_OFF} offen offset:{i*128} {pol} lds")
            e(f"s_add_u32 m0, m0, {896 if i < 7 else 8192-7*896}")
            if i < 7: e("s_nop 0")
        if lastw: e("s_waitcnt vmcnt(55)")
    def gate(g):
        e(f"s_cmp_lg_u32 s{S_NPRE}, {g}")
        e(f"s_cbranch_scc1 L_g{g}")
        e("s_barrier")
        e("s_barrier")
        e.label(f"L_g{g}")
    def k_setup(sfx=""):
        e(f"s_add_u32 s{S_V}, s36, s{S_T0}")
        e(f"s_addc_u32 s{S_V+1}, s37, 0")
        e(f"s_mov_b32 s{S_V+2}, 0x880000")
        e(f"s_mov_b32 s{S_V+3}, 0x00020000")
        e(f"s_setprio {prio[1]}")
        if prio[0] != prio[1]:
            e(f"s_cmp_ge_u32 s{S_WAVE}, 2")
            e(f"s_cbranch_scc1 L_pr{sfx}")
            e(f"s_setprio {prio[0]}")
            e.label(f"L_pr{sfx}")
        consts()
        e(f"s_mov_b32 s{S_THR}, {pace['lv']['norm'] if pace and pace.get('lv') else 0}")
        if pace:
            e(f"s_mov_b32 s{S_Q}, {-pace['b'] * 2}")
            e(f"s_mov_b32 s27, 0")
        e(f"s_mov_b32 s{S_C}, {f32(math.log2(math.e) / math.sqrt(128.0))}")
        A0, A1, A2, A3 = TMP, TMP+1, TMP+2, TMP+3
        e(f"v_lshlrev_b32 v{A0}, 11, v{V_G}")
        e(f"v_lshl_add_u32 v{V_VOFF}, v{V_N}, 4, v{A0}")
        e(f"v_lshrrev_b32 v{A3}, 3, v0")
        e(f"v_and_b32 v{A1}, 3, v{V_N}")
        e(f"v_mul_u32_u24 v{A0}, {QP_ROW}, v{A1}")
        e(f"v_bfe_u32 v{A2}, v{V_N}, 2, 1")
        e(f"v_lshl_add_u32 v{A0}, v{A2}, 9, v{A0}")
        e(f"v_lshl_add_u32 v{A0}, v{A3}, 5, v{A0}")
        e(f"v_add_u32 v{V_QRD}, {LDS_QP}, v{A0}")
        e(f"v_mul_u32_u24 v{A0}, {OB_ROW}, v{A1}")
        e(f"v_lshl_add_u32 v{A0}, v{A2}, 8, v{A0}")
        if dsw is not None:
            e(f"s_bfe_u32 s{S_T0}, s2, {0x10000 + dsw}")
            e(f"s_lshl_b32 s{S_T0}, s{S_T0}, 2")
            e(f"v_xor_b32 v{A3}, s{S_T0}, v{A3}")
        e(f"v_lshl_add_u32 v{A0}, v{A3}, 5, v{A0}")
        e(f"s_mul_i32 s{S_T0}, s{S_WAVE}, {4*OB_ROW}")
        e(f"s_add_u32 s{S_T3}, s{S_T0}, {LDS_OB}")
        e(f"v_add_u32 v{V_OBW}, s{S_T3}, v{A0}")
        e(f"v_lshlrev_b32 v{A0}, 4, v0")
        e(f"v_add_u32 v{V_LR}, s{S_T2}, v{A0}")
        e(f"v_add_u32 v{V_SA}, 8192, v{V_LR}")
        e(f"v_and_b32 v{A2}, 7, v{V_N}")
        e(f"v_lshl_add_u32 v{V_MLR}, v{A2}, 5, v{V_T2}")
        e(f"s_lshl_b32 s{S_T0}, s{S_WAVE}, 3")
        e(f"v_add_u32 v{V_MLW}, s{S_T0}, v{V_MLR}")
        e(f"v_mov_b32 v{V_FL}, {SB}")
        if pace:
            e(f"s_lshl_b32 s{S_T0}, s{S_WAVE}, 2")
            e(f"v_add_u32 v{V_H}, s{S_T0}, v{V_T2}")
        e(f"v_mov_b32 v{V_MC}, {NEG}")
        e(f"v_mov_b32 v{V_L}, 0")
        e(f"v_mov_b32 v{XT}, {NEG}")
    def qload(dst, b):
        for j in range(2):
            for ee in range(2):
                for h in range(2):
                    e(f"ds_read_b128 {vr(TMP+j*16+ee*8+h*4,4)}, v{V_QRD} offset:{b*4*QP_ROW+ee*8*QP_ROW+j*256+h*16}")
        for j in range(2):
            e(f"s_waitcnt lgkmcnt({4-4*j})")
            for i in range(4):
                e(f"v_pk_add_f32 {vr(TMP+j*16+2*i,2)}, {vr(TMP+j*16+2*i,2)}, {vr(TMP+j*16+8+2*i,2)}")
            for i in range(4):
                e(f"v_cvt_pk_bf16_f32 v{dst+j*4+i}, v{TMP+j*16+2*i}, v{TMP+j*16+2*i+1}")

    def adv():
        e(f"s_add_u32 s{S_OFF}, s{S_OFF}, 0x4000")
        e(f"s_bitcmp1_b32 s{S_OFF}, 19")
        e(f"s_cselect_b32 s{S_T0}, 0x880000, 0")
        e(f"s_xor_b32 s{S_OFF}, s{S_OFF}, s{S_T0}")
    def xreduce(r, op):
        e("s_nop 1")
        e(f"{op}_dpp v{r}, v{r}, v{r} row_ror:8 row_mask:0xf bank_mask:0xf")
        for sw in ("v_permlane32_swap_b32", "v_permlane16_swap_b32"):
            e(f"v_mov_b32 v{V_T1}, v{r}")
            e("s_nop 1")
            e(f"{sw} v{r}, v{V_T1}")
            e(f"{op} v{r}, v{r}, v{V_T1}")
    def merge(acc, dst):
        for i in range(8):
            for ee in range(2):
                e(f"v_add_f32_dpp v{dst+ee*8+i}, v{acc+4*i+ee}, v{acc+4*i+ee} row_ror:8 row_mask:0xf bank_mask:0x3")
                e(f"v_add_f32_dpp v{dst+ee*8+i}, v{acc+4*i+2+ee}, v{acc+4*i+2+ee} row_ror:8 row_mask:0xf bank_mask:0xc")
    def thp(lab):
        e(f"s_cmp_eq_u32 s{S_THR}, 0")
        e(f"s_cbranch_scc1 {lab}")
        e(f"s_sub_u32 s{S_THR}, s{S_THR}, 1")
        e("s_waitcnt vmcnt(0)")
        e.label(lab)
    LV = pace.get('lv') if pace else None
    def gate(lab, add=0):
        for i_, w_ in enumerate(LV['waits'][1:]):
            e(f"s_cmp_lt_u32 s{S_THR}, {i_+1}")
            e(f"s_cbranch_scc1 {lab}")
            e(f"s_waitcnt vmcnt({w_+add})")
        e.label(lab)
    def probe():
        e("s_memrealtime s[20:21]")
        e(f"ds_read_b64 {vr(V_LN,2)}, v{V_T2} offset:{LDS_LINE-SB}")
    def decide(rec, ec=False):
        e("s_waitcnt lgkmcnt(0)")
        e(f"v_readfirstlane_b32 s{S_T0}, v{V_LN}")
        e(f"v_readfirstlane_b32 s{S_T1}, v{V_LN+1}")
        if rec:
            e(f"v_or_b32_e64 v{V_LN}, 1, s20")
            e("s_mov_b64 exec, 1")
            e(f"ds_write_b32 v{V_H}, v{V_LN} offset:{LDS_H-SB}")
            e("s_mov_b64 exec, -1")
            e(f"v_add_u32 v{V_H}, 8, v{V_H}")
        e(f"s_mul_i32 s{S_T2}, s{S_T1}, s{S_Q}")
        e(f"s_ashr_i32 s{S_T2}, s{S_T2}, 5")
        e(f"s_add_u32 s{S_T0}, s{S_T0}, s{S_T2}")
        e(f"s_sub_u32 s{S_T0}, s{S_T0}, s20")
        e(f"s_ashr_i32 s{S_T0}, s{S_T0}, {pace['sh']}")
        e(f"s_max_i32 s{S_T0}, s{S_T0}, 0")
        if LV:
            e(f"s_min_i32 s{S_T0}, s{S_T0}, 7")
            e(f"s_lshl_b32 s{S_T0}, s{S_T0}, 2")
            e(f"s_lshr_b32 s{S_T0}, {table(LV['tab'])}, s{S_T0}")
            e(f"s_and_b32 s{S_T0}, s{S_T0}, 15")
            e(f"s_cmp_lg_u32 s{S_T1}, 0")
            e(f"s_cselect_b32 s{S_THR}, s{S_T0}, {LV['norm']}")
            if LV.get('endcap') and ec:
                e(f"s_cmp_ge_i32 s{S_Q}, {LV['endcap'][0]}")
                e(f"s_cselect_b32 s{S_T0}, {LV['endcap'][1]}, 15")
                e(f"s_min_u32 s{S_THR}, s{S_THR}, s{S_T0}")
        else:
            e(f"s_min_i32 s{S_T0}, s{S_T0}, {pace['nmax']}")
            e(f"s_cmp_lg_u32 s{S_T1}, 0")
            e(f"s_cselect_b32 s{S_THR}, s{S_T0}, 0")
        e(f"s_add_u32 s{S_Q}, s{S_Q}, 1")
        if stamps: e(f"s_add_u32 s27, s27, s{S_THR}")
    def ckpts(base, first=False):
        if not cks: return
        for i_, ck in enumerate(cks):
            if ck // 100 != base: continue
            if first:
                if ck == 12: stamp(2 + i_)
                continue
            e(f"s_cmp_lg_u32 s{S_IT}, {ck % 100}")
            e(f"s_cbranch_scc1 L_ck{i_}")
            stamp(2 + i_)
            e.label(f"L_ck{i_}")

    def kcomp(kb, S, lds=None, mid=None, wr=None):
        for j in range(2):
            if lds == 'pre' and j == 0: e("s_waitcnt lgkmcnt(0)")
            if lds == 'now': e(f"s_waitcnt lgkmcnt({4-4*j})")
            for u in range(4):
                cc = "0" if j == 0 else vr(ST+u*4, 4)
                e(f"v_mfma_f32_16x16x32_bf16 {vr(ST+u*4,4)}, {vr(kb+(u*2+j)*4,4)}, {vr(QF+j*4,4)}, {cc}")
        if mid: mid()
        else: e("s_nop 4")
        for u in range(4):
            a = ST + 4*u
            e(f"v_add_f32_dpp v{S+u}, v{a+1}, v{a} row_ror:8 row_mask:0xf bank_mask:0x3")
            e(f"v_add_f32_dpp v{S+u}, v{a+2}, v{a+3} row_ror:8 row_mask:0xf bank_mask:0xc")
        if wr is not None: e(f"ds_write_b128 v{wr[0]}, {vr(S,4)} offset:{wr[1]}")
        e(f"v_max3_f32 v{V_T0}, v{S}, v{S+1}, v{XT}")
        e(f"v_max3_f32 v{XT}, v{S+2}, v{S+3}, v{V_T0}")
        e(f"v_mul_f32 v{V_T0}, s{S_C}, v{XT}")
        e(f"v_sub_f32 v{V_AL}, v{V_MC}, v{V_T0}")
        e(f"v_exp_f32 v{V_AL}, v{V_AL}")
        e(f"v_mov_b32 v{V_MC}, v{V_T0}")
        for i in range(4): e(f"v_fma_f32 v{PT+i}, v{S+i}, s{S_C}, -v{V_T0}")
        for i in range(4): e(f"v_exp_f32 v{PT+i}, v{PT+i}")
        e(f"v_fma_f32 v{V_L}, v{V_L}, v{V_AL}, v{PT}")
        e(f"v_add_f32 v{V_T0}, v{PT+1}, v{PT+2}")
        e(f"v_add_f32 v{V_L}, v{V_L}, v{PT+3}")
        e(f"v_add_f32 v{V_L}, v{V_L}, v{V_T0}")

    XB_ = OA
    DEST0 = [0, 1, 2, 3, 'X', 'L', 'L', 'L']
    class St: pass
    def fresh():
        st = St(); st.iss = {'S': [], 'E': []}; st.known = {'S': 0, 'E': 0}; st.loc = {}; st.nl = 0; st.nr = 0; st.pre = None; st.n = 0
        return st
    def guard(st, ty):
        if 8 * (len(st.iss[ty]) - st.known[ty]) + 8 > 63: e("s_waitcnt vmcnt(55)")
    def issue(st, j, d):
        guard(st, 'S')
        if d == 'L':
            st.nl += 1; assert st.nl <= 3
            st.loc[j] = ('L', st.nl * 8192); ld_lds(False)
        else:
            st.loc[j] = ('R', XB_ if d == 'X' else BUF[d]); ld_k(st.loc[j][1])
        e(f"s_add_u32 s{S_OFF}, s{S_OFF}, 0x8000")
        for ty in 'SE': st.iss[ty].append(j)
    def refill(st, c, w=None):
        assert len(st.iss['E']) == 8
        st.n += 1
        e(f"s_cmp_ge_u32 s{S_WAVE}, 2")
        e(f"s_cbranch_scc1 L_ni{c}_{st.n}")
        if w is not None:
            e(f"s_waitcnt vmcnt({w})")
            st.known['S'] = max(st.known['S'], len(st.iss['S']) - w // 8)
        guard(st, 'S')
        ld_k(BUF[st.nr]); adv()
        e.label(f"L_ni{c}_{st.n}")
        st.iss['S'].append(f"R{st.nr}"); st.nr += 1
    def wait(st, c, j):
        n = {}
        for ty in 'SE':
            k = st.iss[ty].index(j) + 1
            n[ty] = None if st.known[ty] >= k else 8 * (len(st.iss[ty]) - k)
            st.known[ty] = max(st.known[ty], k)
        if n['E'] is not None and n['E'] != n['S']:
            st.n += 1
            e(f"s_cmp_lt_u32 s{S_WAVE}, 2")
            e(f"s_cbranch_scc1 L_pw{c}_{st.n}")
            e(f"s_waitcnt vmcnt({n['E']})")
            e.label(f"L_pw{c}_{st.n}")
        if n['S'] is not None: e(f"s_waitcnt vmcnt({min(n['S'], 63)})")
    def lread(off):
        for jj in range(2):
            for u in range(4):
                e(f"ds_read_b128 {vr(TMP+(u*2+jj)*4,4)}, v{V_LR} offset:{off+(u*2+jj)*1024}")
    def run(st, c, toks):
        for t in toks:
            if t[0] == 'I': issue(st, int(t[1]), t[2] if t[2] in 'XL' else int(t[2]))
            elif t[0] == 'R': refill(st, c, int(t[1:]) if len(t) > 1 else None)
            elif t[0] == 'W': wait(st, c, int(t[1]))
            elif t[0] == 'Q':
                stamp(2)
                wait_flag(f"L_wq{c}", LDS_FLAG, 4, V_T2, V_T0)
                stamp(3)
                qload(QF, 0)
            elif t[0] == 'P':
                j = int(t[1]); wait(st, c, j); lread(st.loc[j][1]); st.pre = j
            elif t[0] == 'C':
                j = int(t[1]); wait(st, c, j)
                mid = None
                if len(t) > 2:
                    def mid(): run(st, c, t[3:].split('+')); e("s_nop 2")
                if st.loc[j][0] == 'R': kcomp(st.loc[j][1], SS, mid=mid, wr=(V_LR, j*1024))
                else:
                    if st.pre != j: lread(st.loc[j][1])
                    kcomp(TMP, SS, lds='pre' if st.pre == j else 'now', mid=mid, wr=(V_LR, j*1024))
    SCH = {
        0: "I00 I11 Q W0 I22 C0 W1 I33 C1 W2 I40 C2 W3 I51 C3 W4 I62 C4 W5 I73 C5 W6 R C6 W7 R C7",
        2: "I22 I33 Q C0:I40 C1:I51 C2:I62 C3:I73 C4:R C5:R C6 C7",
        4: "I4X I5L Q C2:I62 C0 C3:I73 C1 C4 P5 R C5 W6 R C6 C7",
        5: "I5L I6L Q C3:I73 C0 C1 C2:R C4 P5 R C5 C6 C7",
        6: "I6L I7L Q P5 C0:R C1:R C5 C2 P6 C3 C6 R8 P7 C4 C7 R8",
        7: "I7L Q P5 C0:R C1:R C5 P6 C2 C6 R8 P7 C3 C7 R8 C4",
        8: "Q P5 C0:R C1:R C5 P6 C2:R C6 P7 C3:R C7 C4",
    }
    if sched: SCH.update(sched)
    classes = sorted(set(npre))
    st0 = fresh()
    import copy
    states = {}
    for j in range(classes[-1] + 1):
        if j in classes:
            states[j] = copy.deepcopy(st0)
            if j != classes[-1]:
                e(f"s_cmp_eq_u32 s{S_NPRE}, {j}")
                e(f"s_cbranch_scc1 L_path{j}")
        if j < classes[-1]: issue(st0, j, DEST0[j])
    for c in reversed(classes):
        st = states[c]
        e.label(f"L_path{c}")
        e("s_barrier")
        k_setup(str(c))
        e("s_barrier")
        run(st, c, SCH[c].split())
        assert st.nr in (2, 4) and len(st.iss['E']) == 8
        e(f"s_mov_b32 s{S_IT}, {12 + (0x100 if st.nr == 4 else 0)}")
        if c != classes[0]: e("s_branch L_pdn")
    e.label("L_pdn")
    e(f"s_cmp_ge_u32 s{S_WAVE}, 2")
    e("s_cbranch_scc1 L_kfin")
    wait_flag("L_wp", LDS_FLAG+4, 2, V_T2, V_T0)
    e(f"s_cmp_eq_u32 s{S_IT}, 12")
    e("s_cbranch_scc1 L_kloop")
    e(f"s_mov_b32 s{S_IT}, 12")
    ckpts(0, True)
    for p in range(2):
        e(f"s_waitcnt vmcnt({24-8*p})")
        if pace and p & 1: probe()
        kcomp(BUF[p], SS, wr=(V_SA, (p & 1)*32768))
        if pace and p & 1: decide(True)
    e("s_branch L_kp2")
    e.label("L_kb1")
    qload(QF, 1)
    e.label("L_kloop")
    ckpts(0)
    for p in range(4):
        if p == 2: e.label("L_kp2")
        if LV: gate(f"L_tk{p}")
        else:
            e("s_waitcnt vmcnt(8)")
            if pace: thp(f"L_tk{p}")
            if pace and p & 1: probe()
        if p >= 2:
            e(f"s_cmp_eq_u32 s{S_IT}, 1")
            e(f"s_cbranch_scc1 L_kv{p}")
        ld_k(BUF[(p+2) & 3])
        if p >= 2: e.label(f"L_kr{p}")
        if LV:
            e("s_waitcnt vmcnt(16)")
            if p & 1: probe()
        kcomp(BUF[p], SS, mid=lambda: (adv(), e("s_nop 0")), wr=(V_SA, (p & 1)*32768 + (p >> 1)*1024))
        if pace and p & 1: decide(p == 1)
    e(f"v_add_u32 v{V_SA}, 2048, v{V_SA}")
    e(f"s_sub_u32 s{S_IT}, s{S_IT}, 1")
    e(f"s_and_b32 s{S_T0}, s{S_IT}, 7")
    e("s_cbranch_scc1 L_kloop")
    e.label("L_kfin")
    e(f"v_mov_b32 v{V_T0}, v{V_MC}")
    xreduce(V_MC, "v_max_f32")
    e(f"v_sub_f32 v{V_T0}, v{V_T0}, v{V_MC}")
    e(f"v_exp_f32 v{V_T0}, v{V_T0}")
    e("s_nop 0")
    e(f"v_mul_f32 v{V_L}, v{V_L}, v{V_T0}")
    xreduce(V_L, "v_add_f32")
    e(f"ds_write_b64 v{V_MLW}, {vr(V_MC,2)} offset:{LDS_ML-SB}")
    e(f"v_mov_b32 v{V_T0}, 1")
    e(f"v_add_u32 v{V_MLW}, 256, v{V_MLW}")
    e(f"v_mov_b32 v{V_MC}, {NEG}")
    e(f"v_mov_b32 v{V_L}, 0")
    e(f"v_mov_b32 v{XT}, {NEG}")
    e(f"s_cmp_lt_u32 s{S_WAVE}, 2")
    e("s_cbranch_scc1 L_kf1")
    e(f"ds_write_b64 v{V_MLW}, {vr(V_MC,2)} offset:{LDS_ML-SB}")
    e.label("L_kf1")
    e("s_mov_b64 exec, 1")
    e("s_waitcnt lgkmcnt(0)")
    e(f"ds_add_u32 v{V_FL}, v{V_T0} offset:{LDS_FLAG+4-SB}")
    e("s_mov_b64 exec, -1")
    e(f"v_add_u32 v{V_FL}, 12, v{V_FL}")
    if fwarm: e(f"s_not_b64 s[32:33], s[{S_MASK}:{S_MASK+1}]")
    e(f"s_cmp_ge_u32 s{S_WAVE}, 2")
    e("s_cbranch_scc1 L_dry" if fwarm == 2 else "s_cbranch_scc1 L_vr1" if fwarm else "s_cbranch_scc1 L_wo")
    e(f"s_cmp_lg_u32 s{S_IT}, 0")
    e("s_cbranch_scc1 L_kb1")
    stamp(5)
    e(f"v_mov_b32 v{V_SA}, v{V_LR}")
    e(f"v_mov_b32 v{V_FL}, {SB}")
    e(f"s_mov_b32 s{S_IT}, 16")
    e(f"s_mov_b32 s{S_PH}, 4")
    V_HO, V_HD = QF, QF + 1
    V_A0, V_A1, V_AN, PB_ = QF, QF + 1, QF + 2, QF + 4
    S_XA = 36 if hint else 32
    if fast: e(f"s_not_b64 s[{S_XA}:{S_XA+1}], s[{S_MASK}:{S_MASK+1}]")
    if dsplit:
        e(f"v_lshrrev_b32 v{V_A1}, 3, v0")
        e(f"v_and_b32 v{V_A0}, 7, v0")
        e(f"v_lshlrev_b32 v{V_A0}, 4, v{V_A0}")
        e(f"v_lshl_add_u32 v{V_A0}, v{V_A1}, 10, v{V_A0}")
        if dsw is not None:
            e(f"s_bitcmp1_b32 s2, {dsw}")
            e(f"s_cselect_b32 s{S_T0}, 1152, 0")
            e(f"s_cselect_b32 s{S_XA}, 0, 0x00ff00ff")
            e(f"s_cselect_b32 s{S_XA+1}, 0x00ff00ff, 0")
            e(f"v_xor_b32 v{V_A0}, s{S_T0}, v{V_A0}")
        else:
            e(f"s_mov_b32 s{S_XA}, 0x00ff00ff")
            e(f"s_mov_b32 s{S_XA+1}, 0")
        e(f"s_mov_b32 s{S_XA+2}, s{S_XA+1}")
        e(f"s_mov_b32 s{S_XA+3}, s{S_XA}")
        e(f"v_xor_b32 v{V_A1}, 1152, v{V_A0}")
    S_H0 = 32
    if hint:
        e(f"s_mul_i32 s{S_T0}, s{S_BP}, {GRP}")
        e(f"s_add_u32 s{S_WS}, s46, s{S_T0}")
        e(f"s_addc_u32 s{S_WS+1}, s47, 0")
        e(f"s_mov_b32 s{S_WS+2}, {GRP if fast else 0}")
        e(f"s_mov_b32 s{S_WS+3}, 0x00020000")
        e(f"s_lshl_b32 s{S_T0}, s{S_HKV}, 1")
        e(f"s_add_u32 s{S_T0}, s{S_T0}, s{S_WAVE}")
        e(f"s_lshl_b32 s{S_T0}, s{S_T0}, 7")
        e(f"s_add_u32 s{S_T0}, s{S_T0}, {GD}")
        e(f"v_lshlrev_b32 v{V_HO}, 2, v0")
        e(f"v_add_u32 v{V_HO}, s{S_T0}, v{V_HO}")
        e(f"s_memrealtime s[{S_H0}:{S_H0+1}]")
        e(f"s_mov_b32 s{S_H0+2}, {hint[1]}")
        e(f"s_bitcmp0_b32 s{S_HKV}, {2 if rho else 3}")
        e(f"s_cselect_b32 s{S_H0+2}, {hint[0]}, s{S_H0+2}")
        e(f"s_mov_b32 s{S_CAP}, 0x40000")
    e.label("L_vstart")
    e.label("L_wk")
    e(f"ds_read_b32 v{V_T0}, v{V_FL} offset:{LDS_FLAG+4-SB}")
    e("s_waitcnt lgkmcnt(0)")
    e(f"v_readfirstlane_b32 s{S_T0}, v{V_T0}")
    e(f"s_cmp_lt_u32 s{S_T0}, s{S_PH}")
    e("s_cbranch_scc1 L_wk")
    e(f"ds_read_b128 {vr(TMP,4)}, v{V_MLR} offset:{LDS_ML-SB}")
    e(f"ds_read_b128 {vr(TMP+4,4)}, v{V_MLR} offset:{LDS_ML+16-SB}")
    e(f"ds_read_b128 {vr(SS,4)}, v{V_SA}")
    for i in range(16):
        e(f"v_pk_mul_f32 {vr(OA+2*i,2)}, {vr(V_Z,2)}, {vr(V_Z,2)}")
    e(f"v_add_u32 v{V_FL}, 12, v{V_FL}")
    e(f"v_add_u32 v{V_MLR}, 256, v{V_MLR}")
    e(f"s_mov_b32 s{S_PH}, 2")
    e("s_waitcnt lgkmcnt(1)")
    e(f"v_max3_f32 v{V_MC}, v{TMP}, v{TMP+2}, v{TMP+4}")
    e(f"v_max_f32 v{V_MC}, v{V_MC}, v{TMP+6}")
    for p in range(4): e(f"v_sub_f32 v{TMP+2*p}, v{TMP+2*p}, v{V_MC}")
    for p in range(4): e(f"v_exp_f32 v{TMP+2*p}, v{TMP+2*p}")
    e(f"v_mul_f32 v{V_L}, v{TMP}, v{TMP+1}")
    for p in range(1, 4): e(f"v_fmac_f32 v{V_L}, v{TMP+2*p}, v{TMP+2*p+1}")
    e(f"v_log_f32 v{V_L}, v{V_L}")
    e("s_nop 0")
    e(f"v_add_f32 v{V_MC}, v{V_MC}, v{V_L}")
    if dsplit or fast:
        assert LV and not (hint and dsplit) and not (hint and fwarm)
        def pgen(p, D, nxt=True):
            e("s_waitcnt lgkmcnt(0)")
            for i in range(4): e(f"v_fma_f32 v{SS+i}, v{SS+i}, s{S_C}, -v{V_MC}")
            for i in range(4): e(f"v_exp_f32 v{SS+i}, v{SS+i}")
            if p == 3: e(f"v_add_u32 v{V_SA}, 2048, v{V_SA}")
            else: e("s_nop 0")
            for i in range(4): e(f"v_cvt_pk_bf16_f32 v{D+i}, v{SS+2*(i&1)}, v{SS+2*(i&1)+1}")
            q_ = (p + 1) & 3
            if nxt: e(f"ds_read_b128 {vr(SS,4)}, v{V_SA} offset:{(q_ & 1)*32768 + (q_ >> 1)*1024}")
            else: e("s_nop 0")
            for i in range(4): e(f"v_mov_b32_dpp v{D+i}, v{D+i} row_ror:8 row_mask:0xf bank_mask:{'0xc' if i < 2 else '0x3'}")
        nW = [0]
        def W2(a_, b_):
            e(f"s_waitcnt vmcnt({a_})")
            e(f"s_cbranch_scc1 L_ww{nW[0]}")
            e(f"s_waitcnt vmcnt({b_})")
            e.label(f"L_ww{nW[0]}")
            nW[0] += 1
        def ld_h(buf, vo):
            for t in range(4):
                e(f"buffer_load_dwordx4 {vr(buf+t*4,4)}, v{vo}, s[{S_V}:{S_V+3}], s{S_OFF} offen offset:{t*256} {pol}")
        def fastmma(buf, T, D, w0, w1, half):
            def pm(i, u_):
                e(f"v_perm_b32 v{T+4*i+u_}, v{buf+(2*u_+1)*4+(i>>1)}, v{buf+(2*u_)*4+(i>>1)}, s{S_HI if i & 1 else S_LO}")
            def dp(i, u_): e(f"v_mov_b32_dpp v{T+4*i+2+u_}, v{T+4*i+u_} row_ror:8 row_mask:0xf bank_mask:0xf")
            def mf(i): e(f"v_mfma_f32_16x16x32_bf16 {vr(D+4*i,4)}, {vr(T+4*i,4)}, {vr(PB_,4)}, {vr(OA+4*i,4)}")
            def cv(k, r): e(f"v_cvt_pk_bf16_f32 v{ST+4*r+k}, v{D+8*k+r}, v{D+8*k+4+r}")
            W2(w0 + 2, w1 + 2)
            for i in range(8): pm(i, 0)
            for i in range(8): dp(i, 0)
            W2(w0, w1)
            if half and stamps: e(f"s_memrealtime s[{64+14}:{64+15}]")
            pm(0, 1); pm(1, 1); pm(2, 1); dp(0, 1); pm(3, 1); dp(1, 1)
            for i in range(4):
                mf(i); pm(i + 4, 1); dp(i + 2, 1)
            mf(4); dp(6, 1); dp(7, 1)
            mf(5); cv(0, 0); cv(0, 1); mf(6); cv(0, 2); cv(0, 3); mf(7)
            for k in (1, 2):
                for r in range(4): cv(k, r)
            e(f"s_mov_b64 exec, s[{S_XA+2*half}:{S_XA+2*half+1}]")
            for r in range(4):
                cv(3, r)
                e(f"ds_write_b128 v{V_OBW}, {vr(ST+4*r,4)} offset:{16*r}")
            e("s_mov_b64 exec, -1")
    if fast:
        def fastfull(buf, T):
            def pm(i, u_):
                e(f"v_perm_b32 v{T+4*i+u_}, v{buf+(2*u_+1)*4+(i>>1)}, v{buf+(2*u_)*4+(i>>1)}, s{S_HI if i & 1 else S_LO}")
            def mf(i): e(f"v_mfma_f32_16x16x32_bf16 {vr(OA+4*i,4)}, {vr(T+4*i,4)}, {vr(PP,4)}, {vr(OA+4*i,4)}")
            def cv(k, r): e(f"v_cvt_pk_bf16_f32 v{ST+4*r+k}, v{OA+8*k+r}, v{OA+8*k+4+r}")
            for u_ in range(3):
                W2(22 - 2*u_, 6 - 2*u_)
                for i in range(8): pm(i, u_)
            W2(16, 0)
            if stamps: e(f"s_memrealtime s[{64+14}:{64+15}]")
            if hint: e(f"s_memrealtime s[38:39]")
            pm(0, 3); pm(1, 3); pm(2, 3)
            for i in range(5):
                mf(i); pm(i + 3, 3)
            mf(5); cv(0, 0); cv(0, 1); mf(6); cv(0, 2); cv(0, 3); mf(7)
            for k in (1, 2):
                for r in range(4): cv(k, r)
            e(f"s_mov_b64 exec, s[{S_XA}:{S_XA+1}]")
            for r in range(4):
                cv(3, r)
                e(f"ds_write_b128 v{V_OBW}, {vr(ST+4*r,4)} offset:{16*r}")
            e("s_mov_b64 exec, -1")
        e.label("L_vloop")
        ckpts(1)
        for p in range(4):
            pgen(p, PP)
            if p == 2:
                e(f"s_cmp_eq_u32 s{S_IT}, 1")
                e(f"s_cbranch_scc1 L_vl2")
            if p == 3 and fast == 2:
                e(f"s_cmp_lg_u32 s{S_IT}, 1")
                e(f"s_cbranch_scc0 L_vr1")
            elif p == 3:
                e(f"s_and_b32 s{S_T0}, s{S_IT}, 7")
                e(f"s_cmp_eq_u32 s{S_T0}, 1")
                e(f"s_cbranch_scc1 L_vlast")
            gate(f"L_tv{p}")
            ld_v(BUF[(p+2) & 3])
            adv()
            e("s_waitcnt vmcnt(16)")
            if p & 1: probe()
            if p == 3 and fast == 2:
                e(f"s_cmp_eq_u32 s{S_IT}, 9")
                e(f"s_cbranch_scc1 L_vr1")
            if p == 2:
                e("s_branch L_vc2")
                e.label("L_vl2")
                e("s_waitcnt vmcnt(8)")
                e.label("L_vc2")
            unit_mma(BUF[p], PP, OA, False, PT)
            if p & 1: decide(p == 1, True)
        e(f"s_sub_u32 s{S_IT}, s{S_IT}, 1")
        e("s_branch L_vloop")
        if fast != 2:
            e.label("L_vn1")
            gate("L_tw2")
            ld_v(BUF[1]); adv()
            e("s_waitcnt vmcnt(16)")
            probe()
            e(f"s_cmp_lg_u32 s{S_IT}, 1")
            e("s_branch L_vr1")
            e.label("L_vlast")
            e(f"s_cmp_lg_u32 s{S_IT}, 1")
            e("s_cbranch_scc1 L_vn1")
        e.label("L_vr1")
        fastfull(BUF[3], TMP)
        e("s_cbranch_scc1 L_vnext")
        e("s_waitcnt lgkmcnt(0)")
        if hint and hpos == 0:
            e(f"v_mov_b32 v{V_HD}, s38")
            e("s_mov_b32 exec_hi, 0")
            e(f"buffer_store_dword v{V_HD}, v{V_HO}, s[{S_WS}:{S_WS+3}], 0 offen sc1")
            e("s_mov_b32 exec_hi, -1")
        e("s_barrier")
        if hint:
            e("s_setprio 0")
            e(f"s_cmp_eq_u32 s{S_WAVE}, 0")
            e("s_cbranch_scc1 L_hp")
            e("s_barrier")
        e.label("L_sfin")
        if stamps:
            stamp(9); stamp(10); stamp(11)
            e("s_branch L_dump")
        else:
            e("s_endpgm")
        e.label("L_vnext")
        if fwarm:
            e(f"s_cmp_ge_u32 s{S_WAVE}, 2")
            e("s_cbranch_scc1 L_wo")
        e(f"s_mov_b32 s{S_IT}, 8")
        e(f"v_mov_b32 v{V_T0}, 1")
        e("s_waitcnt lgkmcnt(0)")
        e("s_mov_b64 exec, 1")
        e(f"ds_add_u32 v{V_T2}, v{V_T0} offset:{LDS_FLAG+12-SB}")
        e("s_mov_b64 exec, -1")
        e(f"v_add_u32 v{V_OBW}, {8*OB_ROW}, v{V_OBW}")
        decide(False)
        e("s_branch L_vstart")
    elif dsplit:
        e.label("L_vloop")
        ckpts(1)
        for p in range(4):
            pgen(p, PP)
            gate(f"L_tv{p}")
            ld_v(BUF[(p+2) & 3])
            adv()
            e("s_waitcnt vmcnt(16)")
            if p & 1: probe()
            unit_mma(BUF[p], PP, OA, False, PT)
            if p & 1: decide(p == 1, True)
        e(f"s_sub_u32 s{S_IT}, s{S_IT}, 1")
        e(f"s_and_b32 s{S_T0}, s{S_IT}, 7")
        e(f"s_cmp_lg_u32 s{S_T0}, 1")
        e("s_cbranch_scc1 L_vloop")
        pgen(0, PP)
        gate("L_tw0")
        ld_v(BUF[2]); adv(); ld_h(BUF[3], V_A0)
        e("s_waitcnt vmcnt(20)")
        unit_mma(BUF[0], PP, OA, False, PT)
        pgen(1, PP)
        gate("L_tw1", 4)
        ld_h(BUF[3] + 16, V_A1); adv()
        e("s_waitcnt vmcnt(16)")
        probe()
        unit_mma(BUF[1], PP, OA, False, PT)
        decide(True, True)
        pgen(2, PP)
        pgen(3, PB_, False)
        e(f"s_cmp_lg_u32 s{S_IT}, 1")
        e("s_cbranch_scc1 L_vn0")
        e.label("L_vr0")
        W2(16, 8)
        unit_mma(BUF[2], PP, OA, False, PT)
        fastmma(BUF[3], BUF[2], TMP, 12, 4, 0)
        e("s_cbranch_scc1 L_vn1")
        e("s_waitcnt lgkmcnt(0)")
        e("s_barrier")
        e.label("L_vr1")
        fastmma(BUF[3] + 16, BUF[2], TMP, 16, 0, 1)
        e("s_cbranch_scc1 L_vnext")
        e("s_waitcnt lgkmcnt(0)")
        e("s_barrier")
        e.label("L_sfin")
        if stamps:
            stamp(9); stamp(10); stamp(11)
            e("s_branch L_dump")
        else:
            e("s_endpgm")
        e.label("L_vn0")
        gate("L_tw2")
        ld_v(BUF[0]); adv()
        e(f"s_cmp_lg_u32 s{S_IT}, 1")
        e("s_branch L_vr0")
        e.label("L_vn1")
        ld_v(BUF[1]); adv()
        e(f"s_cmp_lg_u32 s{S_IT}, 1")
        e("s_branch L_vr1")
        e.label("L_vnext")
        probe()
        e(f"s_mov_b32 s{S_IT}, 8")
        e(f"v_mov_b32 v{V_T0}, 1")
        e("s_waitcnt lgkmcnt(0)")
        e("s_mov_b64 exec, 1")
        e(f"ds_add_u32 v{V_T2}, v{V_T0} offset:{LDS_FLAG+12-SB}")
        e("s_mov_b64 exec, -1")
        e(f"v_add_u32 v{V_OBW}, {8*OB_ROW}, v{V_OBW}")
        decide(False)
        e("s_branch L_vstart")
    else:
        e.label("L_vloop")
        ckpts(1)
        for p in range(4):
            e("s_waitcnt lgkmcnt(0)")
            for i in range(4): e(f"v_fma_f32 v{SS+i}, v{SS+i}, s{S_C}, -v{V_MC}")
            for i in range(4): e(f"v_exp_f32 v{SS+i}, v{SS+i}")
            if p == 3: e(f"v_add_u32 v{V_SA}, 2048, v{V_SA}")
            else: e("s_nop 0")
            e(f"v_cvt_pk_bf16_f32 v{V_T0}, v{SS}, v{SS+1}")
            e(f"v_cvt_pk_bf16_f32 v{V_T1}, v{SS+2}, v{SS+3}")
            e(f"v_cndmask_b32 v{PP}, v{V_T0}, 0, s[{S_MASK}:{S_MASK+1}]")
            e(f"v_cndmask_b32 v{PP+1}, v{V_T1}, 0, s[{S_MASK}:{S_MASK+1}]")
            e(f"v_cndmask_b32 v{PP+2}, 0, v{V_T0}, s[{S_MASK}:{S_MASK+1}]")
            e(f"v_cndmask_b32 v{PP+3}, 0, v{V_T1}, s[{S_MASK}:{S_MASK+1}]")
            q_ = (p + 1) & 3
            e(f"ds_read_b128 {vr(SS,4)}, v{V_SA} offset:{(q_ & 1)*32768 + (q_ >> 1)*1024}")
            if p >= 2:
                e(f"s_cmp_eq_u32 s{S_IT}, 1")
                e(f"s_cbranch_scc1 L_vl{p}")
            if LV: gate(f"L_tv{p}")
            else:
                e("s_waitcnt vmcnt(8)")
                if pace: thp(f"L_tv{p}")
                if pace and p & 1: probe()
            ld_v(BUF[(p+2) & 3])
            adv()
            if LV:
                e("s_waitcnt vmcnt(16)")
                if p & 1: probe()
            if p >= 2:
                e(f"s_branch L_vc{p}")
                e.label(f"L_vl{p}")
                if p == 3 and not lite: stamp(6)
                e(f"s_waitcnt vmcnt({8 if p == 2 else 0})")
                if p == 3 and not lite: stamp(7)
                if p == 3 and (hint or (lite and stamps)): e("s_memrealtime s[20:21]")
                e.label(f"L_vc{p}")
            unit_mma(BUF[p], PP, OA, False, PT)
            if p == 1 and pace: decide(True, True)
        e(f"s_sub_u32 s{S_IT}, s{S_IT}, 1")
        e(f"s_and_b32 s{S_T0}, s{S_IT}, 7")
        e("s_cbranch_scc0 L_vfin")
        if pace: decide(False, True)
        e("s_branch L_vloop")
        e.label("L_vfin")
        if hint:
            e("s_waitcnt lgkmcnt(0)")
            e(f"v_mov_b32 v{V_HD}, s20")
            e("s_mov_b32 exec_hi, 0")
            e(f"buffer_store_dword v{V_HD}, v{V_HO}, s[{S_WS}:{S_WS+3}], 0 offen sc1")
            e("s_mov_b32 exec_hi, -1")
        merge(OA, TMP)
        for i in range(8):
            e(f"v_cvt_pk_bf16_f32 v{TMP+16+i}, v{TMP+2*i}, v{TMP+2*i+1}")
        e(f"ds_write_b128 v{V_OBW}, {vr(TMP+16,4)}")
        e(f"ds_write_b128 v{V_OBW}, {vr(TMP+20,4)} offset:16")
        e(f"s_cmp_lg_u32 s{S_IT}, 0")
        e("s_waitcnt lgkmcnt(0)")
        e("s_cbranch_scc1 L_vnext")
        if not lite: stamp(8)
        e("s_barrier")
        if stamps and lite: e(f"s_mov_b32 s{64+14}, s20")
        if hint:
            e("s_setprio 0")
            e(f"s_cmp_eq_u32 s{S_WAVE}, 0")
            e("s_cbranch_scc1 L_hp")
            e("s_barrier")
        e.label("L_sfin")
        if stamps:
            stamp(9); stamp(10); stamp(11)
            e("s_branch L_dump")
        else:
            e("s_endpgm")
        e.label("L_vnext")
        e(f"v_mov_b32 v{V_T0}, 1")
        e("s_mov_b64 exec, 1")
        e(f"ds_add_u32 v{V_T2}, v{V_T0} offset:{LDS_FLAG+12-SB}")
        e("s_mov_b64 exec, -1")
        e(f"v_add_u32 v{V_OBW}, {8*OB_ROW}, v{V_OBW}")
        if hint: e(f"s_mov_b32 s{S_WS+2}, {GRP}")
        if pace: decide(False)
        e("s_branch L_vstart")
    if fwarm == 2:
        e.label("L_dry")
        e(f"s_mov_b32 s{S_V+2}, 0")
        e(f"s_mov_b32 s{S_IT}, 9")
        e(f"s_mov_b32 s{S_PH}, 0")
        e(f"v_mov_b32 v{V_H}, {LDS_OB + 8*OB_ROW - (LDS_H - SB)}")
        e(f"s_cmp_eq_u32 s{S_WAVE}, 3")
        e("s_cbranch_scc1 L_wo")
    for p in (2, 3):
        e.label(f"L_kv{p}")
        ld_v(BUF[(p+2) & 3])
        e(f"s_cbranch_scc1 L_kr{p}" if fwarm == 2 else f"s_branch L_kr{p}")
    if fwarm == 2: e("s_branch L_vstart")

    e.label("L_wo")
    e("s_setprio 0")
    V_WO, V_BRD, V_STO, V_PL, V_OO, V_TAG, V_SB, V_IDX = 1, 5, 6, 7, 1, 2, 3, 4
    A0, A1, A2, AN, AG, AZ, AS = 232, 233, 234, 235, 236, 237, 238
    S_PW = S_OFF
    e(f"v_and_b32 v{AN}, 15, v0")
    e(f"v_lshrrev_b32 v{AG}, 4, v0")
    e(f"v_mov_b32 v{AZ}, 0")
    e(f"v_mov_b32 v{AS}, {SB}")
    e(f"s_sub_u32 s{S_T3}, s{S_WAVE}, 2")
    e(f"v_lshrrev_b32 v{A0}, 5, v0")
    e(f"v_mul_u32_u24 v{A0}, {16*1152}, v{A0}")
    e(f"v_and_b32 v{A1}, 1, v{AG}")
    e(f"v_mul_u32_u24 v{A1}, {4*1152}, v{A1}")
    e(f"v_mul_u32_u24 v{A2}, 12, v{AN}")
    e(f"v_add3_u32 v{A0}, v{A0}, v{A1}, v{A2}")
    e(f"s_mul_i32 s{S_T0}, s{S_T3}, 192")
    e(f"v_add_u32 v{V_WO}, s{S_T0}, v{A0}")
    e(f"s_mul_i32 s{S_T0}, s{S_HKV}, {256*1152}")
    e(f"s_add_u32 s{S_WO}, s40, s{S_T0}")
    e(f"s_addc_u32 s{S_WO+1}, s41, 0")
    e(f"s_mov_b32 s{S_WO+2}, {256*1152}")
    if rho:
        e(f"s_lshr_b32 s{S_T0}, s{S_HKV}, 1")
        e(f"s_xor_b32 s{S_T0}, s{S_T0}, s{S_HKV}")
        e(f"s_and_b32 s{S_T0}, s{S_T0}, 4")
        e(f"s_mul_i32 s{S_T0}, s{S_T0}, 3")
        e(f"s_xor_b32 s{S_HKV}, s{S_HKV}, s{S_T0}")
    e(f"s_mov_b32 s{S_WO+3}, 0x00020000")
    e(f"s_mul_i32 s{S_T0}, s{S_BP}, {GRP}")
    e(f"s_add_u32 s{S_WS}, s46, s{S_T0}")
    e(f"s_addc_u32 s{S_WS+1}, s47, 0")
    e(f"s_mov_b32 s{S_WS+2}, {GRP}")
    e(f"s_mov_b32 s{S_WS+3}, 0x00020000")
    e(f"s_mov_b32 s{S_OUT}, s42")
    e(f"s_mov_b32 s{S_OUT+1}, s43")
    e(f"s_mov_b32 s{S_OUT+2}, {128*1152}")
    e(f"s_mov_b32 s{S_OUT+3}, 0x00020000")
    e(f"s_mov_b32 s{S_DBG}, s44")
    e(f"s_mov_b32 s{S_DBG+1}, s45")
    e(f"s_mov_b32 s{S_DBG+2}, 256")
    e(f"s_mov_b32 s{S_DBG+3}, 0x00020000")
    e(f"v_bfe_u32 v{A0}, v{AN}, 1, 1")
    e(f"v_lshrrev_b32 v{A1}, 2, v{AN}")
    e(f"v_lshl_add_u32 v{A0}, v{A0}, 2, v{A1}")
    e(f"v_mul_u32_u24 v{A0}, {OB_ROW}, v{A0}")
    e(f"v_lshl_add_u32 v{A0}, v{AG}, 5, v{A0}")
    e(f"v_and_b32 v{A1}, 1, v{AN}")
    e(f"v_lshl_add_u32 v{A0}, v{A1}, 4, v{A0}")
    e(f"v_add_u32 v{V_BRD}, {LDS_OB}, v{A0}")
    e(f"v_mul_u32_u24 v{A0}, {6*4096}, v{AG}")
    e(f"v_lshlrev_b32 v{A1}, 4, v{AN}")
    e(f"s_lshl_b32 s{S_T0}, s{S_T3}, 12")
    e(f"s_lshl_b32 s{S_T1}, s{S_HKV}, 8")
    e(f"s_add_u32 s{S_T1}, s{S_T1}, s{S_T0}")
    e(f"v_add3_u32 v{V_STO}, v{A0}, v{A1}, s{S_T1}")
    e(f"s_lshr_b32 s{S_T1}, s{S_HKV}, 1")
    e(f"s_mul_i32 s{S_T1}, s{S_T1}, {6*4096}")
    e(f"s_add_u32 s{S_T0}, s{S_T0}, s{S_T1}")
    e(f"s_and_b32 s{S_T1}, s{S_HKV}, 1")
    e(f"s_lshl_b32 s{S_T1}, s{S_T1}, 7")
    e(f"s_add_u32 s{S_T0}, s{S_T0}, s{S_T1}")
    e(f"v_lshrrev_b32 v{A0}, 3, v0")
    e(f"v_lshlrev_b32 v{A0}, 8, v{A0}")
    e(f"v_and_b32 v{A1}, 7, v0")
    e(f"v_lshlrev_b32 v{A1}, 4, v{A1}")
    e(f"v_add3_u32 v{V_PL}, v{A0}, v{A1}, s{S_T0}")
    def call():
        if pace: e("s_call_b64 s[20:21], L_agent")
    if pace:
        e(f"s_add_u32 s16, s46, 0x400000")
        e(f"s_addc_u32 s17, s47, 0")
        e(f"s_mov_b32 s18, 0x40000")
        e(f"s_mov_b32 s19, 0x00020000")
        e(f"s_cmp_eq_u32 s{S_WAVE}, {pace.get('wave', 7)}")
        e(f"s_mov_b32 s22, {8*pace['q0']}")
        e(f"s_cselect_b32 s22, s22, 0x1000")
        e(f"s_mov_b32 s23, 0")
        e(f"s_lshr_b32 s{S_T0}, s2, 5")
        e(f"s_lshl_b32 s{S_T0}, s{S_T0}, 3")
        e(f"s_and_b32 s{S_T1}, s2, 7")
        e(f"s_add_u32 s{S_T0}, s{S_T0}, s{S_T1}")
        e(f"s_lshl_b32 s4, s{S_T0}, 4")
        e(f"s_add_u32 s4, s4, {1152*pace['lag']}")
    e(f"s_lshl_b32 s{S_T0}, s2, 3")
    e(f"s_add_u32 s{S_T0}, s{S_T0}, s{S_WAVE}")
    e(f"s_cmp_lg_u32 s{S_T0}, 7")
    e("s_cbranch_scc1 L_notag")
    e(f"s_memrealtime s[{S_T1}:{S_T1+1}]")
    e("s_waitcnt lgkmcnt(0)")
    e(f"s_or_b32 s{S_T1}, s{S_T1}, 1")
    e(f"v_mov_b32 v{A1}, s{S_T1}")
    e("s_mov_b64 exec, 1")
    e(f"buffer_store_dword v{A1}, v{AZ}, s[{S_DBG}:{S_DBG+3}], 0 offen sc1")
    e("s_mov_b64 exec, -1")
    e.label("L_notag")
    if wostart:
        wait_flag("L_ws", LDS_FLAG+4, wostart, AS, A0, 8)
    stamp(4)
    if dsw is not None:
        e(f"s_bitcmp1_b32 s2, {dsw}")
        e(f"s_cselect_b32 s{S_NPRE}, {64*1152}, 0")
    def hook():
        if pace:
            call(); e("s_waitcnt vmcnt(0)")
    if wob:
        e(f"s_lshr_b32 s{S_T0}, s{S_BP}, 2")
        e(f"s_and_b32 s{S_T0}, s{S_T0}, {wob[2]-1}")
        e(f"s_lshl_b32 s{S_T0}, s{S_T0}, 3")
        e(f"v_add_u32 v{A2}, s{S_T0}, v{AS}")
    for j in range(4):
        for hh in range(2):
            for t in range(8):
                if wob and t % wog == 0:
                    gi = ((j*2+hh)*8 + t) // wog
                    wait_flag(f"L_wb{gi}", LDS_H + 8*int(wob[0] + gi*wob[1]), 1, A2, A0, 4, hook)
                if dsw is not None and t % 4 == 0:
                    if j & 1: e(f"s_sub_u32 s{S_T0}, {(64*j+32*hh+(t>>2)*8)*1152}, s{S_NPRE}")
                    else: e(f"s_add_u32 s{S_T0}, s{S_NPRE}, {(64*j+32*hh+(t>>2)*8)*1152}")
                elif t % 4 == 0 or (wob and t % wog == 0): e(f"s_mov_b32 s{S_T0}, {(64*j+32*hh+(t>>2)*8)*1152}")
                e(f"buffer_load_dwordx3 {vr(BF+4*t,3)}, v{V_WO}, s[{S_WO}:{S_WO+3}], s{S_T0} offen offset:{(t%4)*1152} {wopol}")
                if (t + 1) % wog == 0:
                    call()
                    e("s_waitcnt vmcnt(0)")
            for i in range(6):
                w_, h = i >> 1, i & 1
                sel = S_HI if h else S_LO
                for r in range(4):
                    tl_ = (r & 1) * 4 + ((r >> 1) & 1) * 2
                    e(f"v_perm_b32 v{WF+(j*6+i)*8+hh*4+r}, v{BF+(tl_+1)*4+w_}, v{BF+tl_*4+w_}, s{sel}")
    stamp(5)
    e(f"s_lshl_b32 s{S_T0}, s{S_BP}, 3")
    e(f"s_lshr_b32 s{S_T1}, s{S_HKV}, 1")
    e(f"s_add_u32 s{S_T0}, s{S_T0}, s{S_T1}")
    e(f"s_mul_i32 s{S_T0}, s{S_T0}, 1152")
    e(f"s_mul_i32 s{S_T1}, s{S_T3}, 192")
    e(f"s_add_u32 s{S_T0}, s{S_T0}, s{S_T1}")
    e(f"s_and_b32 s{S_T1}, s{S_HKV}, 1")
    e(f"s_mul_i32 s{S_T1}, s{S_T1}, 96")
    e(f"s_add_u32 s{S_T0}, s{S_T0}, s{S_T1}")
    e(f"v_mul_u32_u24 v{A0}, 12, v{AN}")
    e(f"v_lshl_add_u32 v{A0}, v{AG}, 2, v{A0}")
    e(f"v_add_u32 v{V_OO}, s{S_T0}, v{A0}")
    e(f"s_cmp_lg_u32 s{S_WAVE}, 3")
    e("s_cbranch_scc1 L_nochk")
    e(f"s_mov_b32 s{S_T1}, 0x40000")
    e.label("L_chk")
    e(f"buffer_load_dword v{A0}, v{AZ}, s[{S_DBG}:{S_DBG+3}], 0 offen sc1")
    e("s_waitcnt vmcnt(0)")
    e(f"v_readfirstlane_b32 s{S_T0}, v{A0}")
    e(f"s_sub_u32 s{S_T1}, s{S_T1}, 1")
    e("s_cbranch_scc1 L_chkd")
    e(f"s_cmp_lg_u32 s{S_T0}, 0")
    e("s_cbranch_scc1 L_chkd")
    e("s_sleep 8")
    e("s_branch L_chk")
    e.label("L_chkd")
    e(f"ds_write_b32 v{AS}, v{A0} offset:{LDS_FLAG+8-SB}")
    e(f"v_mov_b32 v{A1}, 1")
    e("s_mov_b64 exec, 1")
    e("s_waitcnt lgkmcnt(0)")
    e(f"ds_add_u32 v{AS}, v{A1} offset:{LDS_FLAG+12-SB}")
    e("s_mov_b64 exec, -1")
    e.label("L_nochk")
    AF, G, G0, SEL, DD = 200, 216, 220, 224, 228
    F = AF
    e(f"v_mov_b32 v{V_SB}, {SB}")
    e(f"v_and_b32 v{A1}, 1, v0")
    e(f"v_mul_u32_u24 v{V_IDX}, 0xaaaa, v{A1}")
    e(f"v_add_u32 v{V_IDX}, 0x4444, v{V_IDX}")
    e(f"v_lshlrev_b32 v{A1}, 4, v{A1}")
    e(f"v_mov_b32 v{A2}, 0x3f80")
    e(f"v_lshlrev_b32 v{A1}, v{A1}, v{A2}")
    e(f"v_and_b32 v{A2}, 14, v0")
    for q in range(3):
        e(f"v_cmp_eq_u32 vcc, {4*q}, v{A2}")
        e("s_nop 1")
        e(f"v_cndmask_b32 v{SEL+q}, 0, v{A1}, vcc")
    e(f"v_mov_b32 v{SEL+3}, 0")
    if tl:
        e(f"s_mov_b32 s27, {tl['c'] - pace['off']}")
        e(f"s_cmp_lt_u32 s{S_HKV}, 8")
        e(f"s_cselect_b32 s27, {tl.get('c0', tl['c']) - pace['off']}, s27")
    if own:
        e(f"s_and_b32 s{S_T0}, s{S_HKV}, 7")
        e(f"s_lshl_b32 s{S_T0}, s{S_T0}, 3")
        e(f"s_lshl_b64 s[24:25], 0xff, s{S_T0}")
        e(f"s_cmp_lt_u32 s{S_HKV}, 8")
        e(f"s_cselect_b64 s[24:25], 0, s[24:25]")
    e(f"s_mov_b32 s{S_PW}, 0")
    e(f"s_mov_b32 s{S_WS+2}, 0")
    e(f"s_mov_b32 s{S_OUT+2}, 0")
    e(f"s_mov_b32 s{S_CAP}, 0")
    wait_flag("L_w0", LDS_FLAG+12, 3, V_SB, F, 8, hook)
    call()
    if pace:
        e("s_waitcnt vmcnt(0)")
        e("s_mov_b32 s23, 0")
    e(f"ds_read_b32 v{V_TAG}, v{V_SB} offset:{LDS_FLAG+8-SB}")
    for i in range(24): e(f"v_mov_b32 v{PA+i}, 0")
    e("s_waitcnt lgkmcnt(0)")
    e(f"v_mov_b32 v{G+3}, v{V_TAG}")
    e("s_branch L_tail")
    e.label("L_barB")
    e("s_mov_b64 exec, -1")
    e("s_waitcnt vmcnt(0)")
    if pace:
        e.label("L_agl")
        e(f"s_cmp_gt_u32 s22, {8*pace['qend']}")
        e("s_cbranch_scc1 L_agd")
        call()
        e("s_waitcnt vmcnt(0)")
        e("s_sleep 4")
        e("s_branch L_agl")
        e.label("L_agd")
        call()
    for i in range(24): e(f"v_mov_b32 v{PA+i}, 0")
    for i in range(4): e(f"v_mov_b32 v{G0+i}, v{G+i}")
    e(f"v_add_u32 v{V_BRD}, {8*OB_ROW}, v{V_BRD}")
    e(f"s_mov_b32 s{S_PW}, {4*6*4096}")
    e(f"s_mov_b32 s{S_WS+2}, {GRP}")
    e(f"s_mov_b32 s{S_OUT+2}, {128*1152}")
    e(f"s_mov_b32 s{S_CAP}, 0x40000")
    if warm is not None:
        for x_ in range(2):
            e(f"buffer_load_dwordx4 {vr(F+4*x_,4)}, v{V_PL}, s[{S_WS}:{S_WS+3}], 0 offen offset:{2048*x_} {warm}")
        e("s_waitcnt vmcnt(0)")
    if g0early: e(f"buffer_store_dwordx4 {vr(G0,4)}, v{V_STO}, s[{S_WS}:{S_WS+3}], 0 offen {spol}")
    if tprio: e(f"s_setprio {tprio}")
    stamp(6)
    e("s_barrier")
    if not lite: stamp(7)
    e.label("L_tail")
    def adds(i):
        e(f"v_pk_add_f32 {vr(PA+4*i,2)}, {vr(PA+4*i,2)}, {vr(PA+4*i+2,2)}")
        e(f"v_add_f32 v{PA+4*i}, v{PA+4*i}, v{PA+4*i+1}")
        if i & 1: e(f"v_cvt_pk_bf16_f32 v{G+(i>>1)}, v{PA+4*i-4}, v{PA+4*i}")
    if dsplit:
        for hf in range(2):
            for j in (hf, hf + 2):
                e(f"ds_read_b128 {vr(AF+4*j,4)}, v{V_BRD} offset:{j*128}")
            if hf == dsplit - 1: e(f"buffer_store_dwordx4 {vr(G0,4)}, v{V_STO}, s[{S_WS}:{S_WS+3}], 0 offen {spol}")
            for i in range(6):
                for j in (hf, hf + 2):
                    if i == 0: e(f"s_waitcnt lgkmcnt({1 - (j >> 1)})")
                    e(f"v_smfmac_f32_16x16x64_bf16 {vr(PA+4*i,4)}, {vr(AF+4*j,4)}, {vr(WF+(j*6+i)*8,8)}, v{V_IDX}")
                if hf and i >= 4: adds(i - 4)
            if hf == 0:
                e(f"s_cmp_eq_u32 s{S_PW}, 0")
                e("s_cbranch_scc1 L_t2")
                e("s_barrier")
                e.label("L_t2")
        for i in range(2, 6): adds(i)
    else:
        for j in range(4):
            e(f"ds_read_b128 {vr(AF+4*j,4)}, v{V_BRD} offset:{j*128}")
        if tl: e(f"ds_read_b64 {vr(DD,2)}, v{V_SB} offset:{LDS_LINE-SB}")
        if not g0early: e(f"buffer_store_dwordx4 {vr(G0,4)}, v{V_STO}, s[{S_WS}:{S_WS+3}], 0 offen {spol}")
        def adds(i):
            e(f"v_pk_add_f32 {vr(PA+4*i,2)}, {vr(PA+4*i,2)}, {vr(PA+4*i+2,2)}")
            e(f"v_add_f32 v{PA+4*i}, v{PA+4*i}, v{PA+4*i+1}")
            if i & 1: e(f"v_cvt_pk_bf16_f32 v{G+(i>>1)}, v{PA+4*i-4}, v{PA+4*i}")
        for i in range(6):
            for j in range(4):
                if i == 0: e(f"s_waitcnt lgkmcnt({3-j+(1 if tl else 0)})")
                e(f"v_smfmac_f32_16x16x64_bf16 {vr(PA+4*i,4)}, {vr(AF+4*j,4)}, {vr(WF+(j*6+i)*8,8)}, v{V_IDX}")
            if tl and i == 0:
                e("s_waitcnt lgkmcnt(0)")
                e(f"v_readfirstlane_b32 s26, v{DD}")
                e(f"v_readfirstlane_b32 s{S_T2}, v{DD+1}")
            if tl and i == 1:
                e(f"s_mul_i32 s{S_T0}, s{S_T2}, 23")
                e(f"s_ashr_i32 s{S_T0}, s{S_T0}, 5")
                e(f"s_add_u32 s26, s26, s{S_T0}")
                e(f"s_add_u32 s26, s26, s27")
            if tl and i == 4: e("s_memrealtime s[20:21]")
            if i >= 2: adds(i - 2)
        e("s_nop 0")
        adds(4)
        e("s_nop 1")
        adds(5)
    e(f"buffer_store_dwordx4 {vr(G,4)}, v{V_STO}, s[{S_WS}:{S_WS+3}], s{S_PW} offen {spol}")
    e("s_setprio 0")
    stamp(8)
    if hint:
        HA, HD = PA, PA + 1
        e(f"s_cmp_lg_u32 s{S_PW}, 0")
        e("s_cbranch_scc1 L_hb")
        if hwarm: e(f"s_mov_b32 s{S_WS+2}, {GRP}")
        e.label("L_hp")
        if hd: e(f"s_sleep {hd}")
        e(f"v_lshlrev_b32 v{HA}, 7, v0")
        e(f"v_add_u32 v{HA}, {GD}, v{HA}")
        e("s_mov_b32 exec_hi, 0")
        e(f"s_mov_b32 s{S_T3}, s{S_CAP}")
        e.label("L_h1")
        e(f"buffer_load_dword v{HD+1}, v{HA}, s[{S_WS}:{S_WS+3}], 0 offen sc1")
        e("s_waitcnt vmcnt(0)")
        e(f"v_subrev_u32 v{HD}, s{S_H0}, v{HD+1}")
        e("s_mov_b32 exec_lo, -1")
        e.label("L_h2")
        e(f"s_memrealtime s[{S_T1}:{S_T1+1}]")
        e("s_waitcnt lgkmcnt(0)")
        e(f"s_sub_u32 s{S_T1}, s{S_T1}, s{S_H0}")
        e(f"s_sub_u32 s{S_T2}, s{S_T1}, s{S_H0+2}")
        e(f"s_add_u32 s{S_T1}, s{S_T1}, 8")
        e(f"v_cmp_lt_u32 s[{S_MASK}:{S_MASK+1}], s{S_T2}, v{HD}")
        e(f"v_cmp_lt_u32 vcc, s{S_T1}, v{HD}")
        e(f"s_sub_u32 s{S_T3}, s{S_T3}, 1")
        e("s_cbranch_scc1 L_h3")
        e(f"s_cmp_eq_u32 s{S_MASK}, 0")
        e("s_cbranch_scc1 L_h3")
        e("s_cmp_eq_u32 vcc_lo, 0")
        e("s_cbranch_scc1 L_h2")
        e("s_mov_b32 exec_lo, vcc_lo")
        if len(hint) > 2: e(f"s_sleep {hint[2]}")
        e("s_branch L_h1")
        e.label("L_h3")
        e("s_mov_b64 exec, -1")
        e(f"s_cmp_lg_u32 s{S_WAVE}, 0")
        if hwarm: e(f"s_mov_b32 s{S_WS+2}, 0")
        e("s_cbranch_scc1 L_hc")
        e("s_barrier")
        if stamps:
            stamp(8)
            e("s_branch L_sfin")
        else: e("s_endpgm")
        e.label("L_hb")
        e("s_barrier")
        e.label("L_hc")
    e(f"s_mov_b32 s{S_T1}, s{S_CAP}")
    if pp:
        SL = [208, 232, 240, 248][:pp['d']]
        D = len(SL)
        MS = S_MASK
        def issue(k):
            for x_ in range(2):
                e(f"buffer_load_dwordx4 {vr(SL[k]+4*x_,4)}, v{V_PL}, s[{S_WS}:{S_WS+3}], 0 offen offset:{2048*x_} {ppol}")
        e(f"v_mov_b32 v{F+3}, 0")
        e(f"v_mov_b32 v{F+7}, 0")
        e(f"s_mov_b64 s[{MS}:{MS+1}], -1")
        if pp['d0']: e(f"s_sleep {pp['d0']}")
        for k in range(D):
            issue(k)
            if k < D - 1: e(f"s_sleep {pp['gap']}")
        e.label("L_poll")
        for k in range(D):
            e(f"s_waitcnt vmcnt({2*(D-1)})")
            e(f"v_cmp_eq_u32 vcc, v{SL[k]+3}, v{V_TAG}")
            e(f"v_cmp_eq_u32 s[{S_T2-1}:{S_T2}], v{SL[k]+7}, v{V_TAG}")
            e(f"s_and_b64 exec, vcc, s[{S_T2-1}:{S_T2}]")
            e(f"s_andn2_b64 s[{MS}:{MS+1}], s[{MS}:{MS+1}], exec")
            for x_ in range(2):
                e(f"v_mov_b64 {vr(F+4*x_,2)}, {vr(SL[k]+4*x_,2)}")
                e(f"v_mov_b32 v{F+4*x_+2}, v{SL[k]+4*x_+2}")
            e("s_cbranch_scc0 L_pdone")
            e(f"s_mov_b64 exec, s[{MS}:{MS+1}]")
            e(f"s_sub_u32 s{S_CAP}, s{S_CAP}, 1")
            e("s_cbranch_scc1 L_pdone")
            if pp.get('bo'):
                e(f"s_bcnt1_i32_b64 s{S_T0}, exec")
                e(f"s_cmp_lt_u32 s{S_T0}, {pp['bo'][0]}")
                e(f"s_cbranch_scc1 L_pb{k}")
                e(f"s_sleep {pp['bo'][1]}")
                e.label(f"L_pb{k}")
            issue(k)
        e("s_branch L_poll")
        e.label("L_pdone")
        e("s_mov_b64 exec, -1")
        stamp(9)
        e("s_nop 0")
    else:
        if tl:
            e("s_waitcnt lgkmcnt(0)")
            e(f"s_sub_i32 s26, s26, s20")
            e(f"s_min_i32 s26, s26, {tl['dmax']}")
            e(f"s_cmp_lg_u32 s{S_T2}, 0")
            e(f"s_cselect_b32 s26, s26, {tl['ddef']}")
            if 'spin' in tl:
                e(f"s_cmp_lt_i32 s26, {tl.get('dmin', 12)}")
                e("s_cbranch_scc1 L_poll")
                e(f"s_add_u32 s26, s26, s20")
                e.label("L_pbo")
                if tl['spin'] is not None: e(f"s_sleep {tl['spin']}")
                e("s_memrealtime s[20:21]")
                e("s_waitcnt lgkmcnt(0)")
                e(f"s_sub_u32 s{S_T0}, s26, s20")
                e(f"s_cmp_gt_i32 s{S_T0}, 0")
                e("s_cbranch_scc1 L_pbo")
            else:
                e(f"s_cmp_lt_i32 s26, 3")
                e("s_cbranch_scc1 L_poll")
                e.label("L_pbo")
                e("s_sleep 1")
                e(f"s_sub_i32 s26, s26, {tl.get('dec', 3)}")
                e(f"s_cmp_ge_i32 s26, 3")
                e("s_cbranch_scc1 L_pbo")
        else:
            if pbo: e.label("L_pbo")
            if pdelay: e(f"s_sleep {pdelay}")
        e.label("L_poll")
        for x_ in range(2):
            e(f"buffer_load_dwordx4 {vr(F+4*x_,4)}, v{V_PL}, s[{S_WS}:{S_WS+3}], 0 offen offset:{2048*x_} {ppol}")
        e("s_waitcnt vmcnt(0)")
        e(f"v_cmp_ne_u32 vcc, v{F+3}, v{V_TAG}")
        e(f"v_cmp_ne_u32 s[{S_MASK}:{S_MASK+1}], v{F+7}, v{V_TAG}")
        if own: e(f"s_andn2_b64 s[{S_MASK}:{S_MASK+1}], s[{S_MASK}:{S_MASK+1}], s[24:25]")
        e(f"s_or_b64 exec, vcc, s[{S_MASK}:{S_MASK+1}]")
        e("s_cbranch_scc0 L_pdone")
        e(f"s_sub_u32 s{S_T1}, s{S_T1}, 1")
        if pbo:
            e("s_cbranch_scc1 L_pdone")
            e("s_cmp_eq_u64 exec, -1")
            e("s_cbranch_scc0 L_poll")
            e("s_branch L_pbo")
        elif slp is None:
            e("s_cbranch_scc0 L_poll")
        else:
            e("s_cbranch_scc1 L_pdone")
            e(f"s_bcnt1_i32_b64 s{S_T0}, exec")
            e(f"s_cmp_lt_u32 s{S_T0}, {slp[2]}")
            e("s_cbranch_scc1 L_poll")
            e(f"s_sleep {slp[3]}")
            e(f"s_cmp_lt_u32 s{S_T0}, {slp[0]}")
            e("s_cbranch_scc1 L_poll")
            e(f"s_sleep {slp[1]}")
            e("s_branch L_poll")
        e.label("L_pdone")
        e("s_mov_b64 exec, -1")
        stamp(9)
        e(f"v_mov_b32 v{F+3}, 0")
        e(f"v_mov_b32 v{F+7}, 0")
        if own:
            for i in range(3): e(f"v_cndmask_b32 v{F+4+i}, v{F+4+i}, v{G+i}, s[24:25]")
        e("s_nop 0")
    e(f"v_mfma_f32_16x16x32_bf16 {vr(DD,4)}, {vr(SEL,4)}, {vr(F,4)}, 0")
    e(f"v_mfma_f32_16x16x32_bf16 {vr(DD,4)}, {vr(SEL,4)}, {vr(F+4,4)}, {vr(DD,4)}")
    e("s_mov_b32 vcc_lo, 0x00ff00ff")
    e("s_mov_b32 vcc_hi, 0x000000ff")
    e("s_nop 5")
    for k in range(2):
        e(f"v_add_f32_dpp v{DD+k}, v{DD+k}, v{DD+k} row_ror:8 row_mask:0xf bank_mask:0xf")
    e("s_mov_b64 exec, vcc")
    e(f"v_cvt_pk_bf16_f32 v{DD+2}, v{DD}, v{DD+1}")
    e(f"buffer_store_dword v{DD+2}, v{V_OO}, s[{S_OUT}:{S_OUT+3}], 0 offen {opol}")
    e(f"s_cmp_eq_u32 s{S_PW}, 0")
    e("s_cbranch_scc1 L_barB")
    if stamps:
        e("s_mov_b64 exec, -1")
        stamp(10)
        e("s_waitcnt vmcnt(0)")
        stamp(11)
        e.label("L_dump")
        e(f"s_add_u32 s{S_WS}, s46, 0x800000")
        e(f"s_addc_u32 s{S_WS+1}, s47, 0")
        e(f"s_mov_b32 s{S_WS+2}, 0x100000")
        e(f"s_mov_b32 s{S_WS+3}, 0x00020000")
        e(f"s_lshl_b32 s{S_T0}, s2, 3")
        e(f"s_add_u32 s{S_T0}, s{S_T0}, s{S_WAVE}")
        e(f"s_lshl_b32 s{S_T0}, s{S_T0}, 6")
        e("v_mov_b32 v1, 0")
        for i in range(NST):
            e(f"v_mov_b32 v2, s{64+2*i}")
            e(f"buffer_store_dword v2, v1, s[{S_WS}:{S_WS+3}], s{S_T0} offen offset:{4*i}")
        e(f"s_getreg_b32 s{S_T1}, hwreg(HW_REG_XCC_ID)")
        e(f"v_mov_b32 v2, s{S_T1}")
        e(f"buffer_store_dword v2, v1, s[{S_WS}:{S_WS+3}], s{S_T0} offen offset:56")
        e("v_mov_b32 v2, s27" if pace else "v_mov_b32 v2, 0")
        e(f"buffer_store_dword v2, v1, s[{S_WS}:{S_WS+3}], s{S_T0} offen offset:52")
    e.label("L_end")
    e("s_endpgm")
    if pace:
        RS = 1152
        step, span, lag = pace['step'], pace['span'], pace['lag']
        R, T_, REF, AD = 244, 248, 252, 254
        e.label("L_agent")
        e("s_cmp_eq_u32 s23, 0")
        e("s_cbranch_scc1 L_ag1")
        e("s_mov_b32 s23, 0")
        for i in range(4):
            e(f"v_sub_u32 v{R+i}, v{R+i}, v{REF}")
            e(f"v_add_u32 v{T_+i}, 0x1000, v{R+i}")
        e(f"v_max_u32 v{T_}, v{T_}, v{T_+1}")
        e(f"v_max3_u32 v{T_}, v{T_}, v{T_+2}, v{T_+3}")
        e(f"v_cmp_gt_u32 vcc, 0x1200, v{T_}")
        e(f"v_add_u32 v{R}, v{R}, v{R+1}")
        e(f"v_add_u32 v{R+1}, v{R+2}, v{R+3}")
        e(f"v_cvt_f32_i32 v{R}, v{R}")
        e(f"v_cvt_f32_i32 v{R+1}, v{R+1}")
        e(f"v_cndmask_b32 v{R}, 0, v{R}, vcc")
        e(f"v_cndmask_b32 v{R+1}, 0, v{R+1}, vcc")
        e(f"s_bcnt1_i32_b64 s5, vcc")
        for sh_ in (8, 4, 2, 1):
            e("s_nop 0")
            for r_ in (R, R+1):
                e(f"v_add_f32_dpp v{r_}, v{r_}, v{r_} row_ror:{sh_} row_mask:0xf bank_mask:0xf")
        for op in ("v_permlane32_swap_b32", "v_permlane16_swap_b32"):
            e(f"v_mov_b32 v{R+2}, v{R}")
            e(f"v_mov_b32 v{R+3}, v{R+1}")
            e("s_nop 1")
            e(f"{op} v{R}, v{R+2}")
            e(f"{op} v{R+1}, v{R+3}")
            e("s_nop 1")
            e(f"v_add_f32 v{R}, v{R}, v{R+2}")
            e(f"v_add_f32 v{R+1}, v{R+1}, v{R+3}")
        e(f"v_cvt_f32_u32 v{R+2}, s5")
        e(f"v_rcp_f32 v{R+2}, v{R+2}")
        e(f"v_sub_f32 v{R}, v{R+1}, v{R}")
        e(f"v_mul_f32 v{R}, {f32((1.0 - pace.get('eps', 0.0)) / (2 * span))}, v{R}")
        e(f"v_mul_f32 v{R+1}, 0.5, v{R+1}")
        e(f"v_mul_f32 v{R}, v{R}, v{R+2}")
        e(f"v_mul_f32 v{R+1}, v{R+1}, v{R+2}")
        e(f"s_sub_i32 s6, {8*(pace['b'] + step + lag)}, s22")
        e(f"v_cvt_f32_i32 v{R+3}, s6")
        e(f"v_mul_f32 v{R+3}, 0x3e000000, v{R+3}")
        e(f"v_fmac_f32 v{R+1}, v{R+3}, v{R}")
        e(f"v_mul_f32 v{R}, 0x41800000, v{R}")
        e(f"v_cvt_i32_f32 v{R+3}, v{R}")
        e(f"v_cvt_i32_f32 v{R+2}, v{R+1}")
        e(f"v_add_u32 v{R+2}, {pace['off']}, v{R+2}")
        e(f"v_add_u32 v{R+2}, v{R+2}, v{REF}")
        e(f"v_mov_b32 v{AD}, {SB}")
        e(f"s_cmp_lt_u32 s5, 32")
        e("s_cbranch_scc1 L_ag1")
        e(f"ds_write_b64 v{AD}, {vr(R+2,2)} offset:{LDS_LINE-SB}")
        e.label("L_ag1")
        e(f"s_cmp_gt_u32 s22, {8*pace['qend']}")
        e("s_cbranch_scc1 L_agr")
        e(f"s_add_u32 s5, s22, {SB}")
        e(f"v_mov_b32 v{AD}, s5")
        e(f"ds_read_b64 {vr(T_,2)}, v{AD} offset:{LDS_H-SB-8*span}")
        e(f"ds_read_b64 {vr(T_+2,2)}, v{AD} offset:{LDS_H-SB}")
        e("s_waitcnt lgkmcnt(0)")
        e(f"v_min_u32 v{REF+1}, v{T_+2}, v{T_+3}")
        e(f"v_mov_b32 v{REF}, v{T_+2}")
        e(f"v_readfirstlane_b32 s5, v{REF+1}")
        e("s_cmp_eq_u32 s5, 0")
        e("s_cbranch_scc1 L_agr")
        e(f"s_mul_i32 s5, s22, {RS//8}")
        e(f"v_lshlrev_b32 v{AD}, 4, v0")
        e(f"buffer_load_dwordx4 {vr(R,4)}, v{AD}, s[16:19], s5 offen {pace.get('rpol', '')}")
        e(f"s_add_u32 s22, s22, {8*step}")
        e("s_mov_b32 s23, 1")
        e("s_and_b32 s6, s2, 24")
        e("s_cbranch_scc1 L_agr")
        e("s_add_u32 s5, s5, s4")
        e("s_mov_b64 exec, 1")
        e(f"buffer_store_dwordx4 {vr(T_,4)}, v{AD}, s[16:19], s5 offen sc1")
        e("s_mov_b64 exec, -1")
        e.label("L_agr")
        e("s_setpc_b64 s[20:21]")

    e.raw('.section .rodata,"a"')
    e.raw(f""".p2align 6
.amdhsa_kernel {KN}
  .amdhsa_next_free_vgpr 256
  .amdhsa_next_free_sgpr 96
  .amdhsa_accum_offset 256
  .amdhsa_group_segment_fixed_size 0
  .amdhsa_kernarg_size 64
  .amdhsa_user_sgpr_count 2
  .amdhsa_user_sgpr_kernarg_segment_ptr 1
  .amdhsa_system_sgpr_workgroup_id_x 1
.end_amdhsa_kernel""")
    open(name, "w").write(e.text())
    return name

PB = dict(b=16, sh=5, nmax=2, q0=4, qend=24, step=2, span=4, lag=2, off=0)
if __name__ == "__main__":
    S = dict(stamps=True, cks=(112, 108, 104))
    L = [gen("k10_t0.s", **S), gen("k10_p0.s", pace=PB, **S), gen("k10_p12.s", pace=dict(PB, off=12), **S), gen("k10_p-12.s", pace=dict(PB, off=-12), **S)]
    print(" ".join(L))
    print(" ".join(x[:-2] for x in L))
    import json; print(json.dumps(["work/bench.py", "work/an8.py", "cdna_kernels/cdna_launch.py", "cdna_kernels/cdna_unwritten_srd_check.py"] + ["work/"+x for x in L]))
```

```python
from gen14 import gen, PB
import mk
S=dict(slp=None, fast=2, rho=True, npre=(0,2,4,6), pbo=True, fwarm=1)
def lv(tab, off, waits, sh=4, norm=2, endcap=(21,2), **k): return dict(PB, sh=sh, off=off, lv=dict(tab=tab, waits=waits, norm=norm, endcap=endcap), **k)
P3=lv([0,1,1,2,2,2,3,4],76,[16,12,8,7,5],eps=0.002)
L=[gen("k19h_d.s", pace=P3, pdelay=20, **S)]
mk.show(L)
```
